```python
import torch

def _softmax(x, axis=-1):
    return torch.softmax(x, dim=axis)

def _gelu(x):
    return torch.nn.functional.gelu(x, approximate='tanh')

def _silu(x):
    return torch.nn.functional.silu(x)

def _sigmoid(x):
    return torch.sigmoid(x)

def _layernorm(x, axis=-1, eps=1e-05):
    m = x.mean(dim=axis, keepdim=True)
    v = x.var(dim=axis, keepdim=True, unbiased=False)
    return (x - m) / torch.sqrt(v + eps)

def _scatter_add(tgt, idx, src, axis=0):
    return tgt.clone().index_add_(axis, idx, src)

def _segment_sum(src, seg, n):
    out = torch.zeros((n,) + src.shape[1:], dtype=src.dtype)
    return out.index_add_(0, seg, src)

def _pad(x, pw):
    flat = tuple((v for pair in reversed(pw) for v in pair))
    return torch.nn.functional.pad(x, flat)
kernel_name = 'interleave_layers__memory_aug_recurrent_mem_tr__glu_gated_glu__prompt'

def setup_inputs():

    _w = lambda a: (lambda t: t.to(torch.bfloat16) if t.is_floating_point() else t)(torch.as_tensor(a))

    def _A_setup():
        B, S, Dm = (1, 2048, 448)
        H, Dh = (16, 256)
        M, seg = (8, 32)
        seg = min(seg, S)
        S = S // seg * seg
        return {'x': _w((lambda *s: torch.randn(*s, dtype=torch.bfloat16) * 0.05)(B, S, Dm)), 'mem0': _w((lambda *s: torch.randn(*s, dtype=torch.bfloat16) * 0.8)(B, M, Dm)), 'Wq': _w((lambda *s: torch.randn(*s, dtype=torch.bfloat16) * 0.8)(Dm, H, Dh) * Dm ** (-0.5)), 'Wk': _w((lambda *s: torch.randn(*s, dtype=torch.bfloat16) * 0.8)(Dm, H, Dh) * Dm ** (-0.5)), 'Wv': _w((lambda *s: torch.randn(*s, dtype=torch.bfloat16) * 0.8)(Dm, H, Dh) * Dm ** (-0.5)), 'Wo': _w((lambda *s: torch.randn(*s, dtype=torch.bfloat16) * 0.8)(H, Dh, Dm) * (H * Dh) ** (-0.5)), 'seg_len': seg}
    _A_in = _A_setup()

    def _B_setup():
        B, S, D, F = (1, 2048, 448, 1792)
        return {'x': _w((lambda *s: torch.randn(*s, dtype=torch.bfloat16) * 0.05)(B, S, D)), 'w_gate': _w((lambda *s: torch.randn(*s, dtype=torch.bfloat16) * 0.05)(D, F)), 'w_up': _w((lambda *s: torch.randn(*s, dtype=torch.bfloat16) * 0.05)(D, F)), 'w_down': _w((lambda *s: torch.randn(*s, dtype=torch.bfloat16) * 0.05)(F, D))}
    _B_in = _B_setup()
    return {'A_x': _A_in['x'], 'A_mem0': _A_in['mem0'], 'A_Wq': _A_in['Wq'], 'A_Wk': _A_in['Wk'], 'A_Wv': _A_in['Wv'], 'A_Wo': _A_in['Wo'], 'A_seg_len': _A_in['seg_len'], 'B_x': _B_in['x'], 'B_w_gate': _B_in['w_gate'], 'B_w_up': _B_in['w_up'], 'B_w_down': _B_in['w_down']}

def reference(A_x, A_mem0, A_Wq, A_Wk, A_Wv, A_Wo, A_seg_len, B_x, B_w_gate, B_w_up, B_w_down):

    def _A_ref(x, mem0, Wq, Wk, Wv, Wo, seg_len):
        B, S, Dm = x.shape
        H, Dh = (Wq.shape[1], Wq.shape[2])
        M = mem0.shape[1]
        scale = Dh ** (-0.5)
        n_seg = S // seg_len
        L = M + seg_len
        idx = torch.arange(L)
        mask = (idx[:, None] < M) | (idx[:, None] >= idx[None, :])
        mem = mem0
        outs = []
        for s in range(n_seg):
            xs = x[:, s * seg_len:(s + 1) * seg_len, :].clone()
            h = torch.concatenate([mem, xs], axis=1)
            q = torch.einsum('btd,dhe->bhte', h, Wq)
            k = torch.einsum('btd,dhe->bhte', h, Wk)
            v = torch.einsum('btd,dhe->bhte', h, Wv)
            scores = torch.einsum('bhqe,bhke->bhqk', q, k) * scale
            scores = torch.where(mask[None, None], scores, -1000000000.0)
            p = _softmax(scores, axis=-1)
            o = torch.einsum('bhqk,bhke->bhqe', p, v)
            o = torch.einsum('bhte,hed->btd', o, Wo)
            mem = o[:, :M, :].clone()
            outs.append(o[:, M:, :])
        return torch.concatenate(outs, axis=1)

    def _B_ref(x, w_gate, w_up, w_down):
        g = torch.einsum('bsd,df->bsf', x, w_gate)
        u = torch.einsum('bsd,df->bsf', x, w_up)
        h = _sigmoid(g) * u
        return torch.einsum('bsf,fd->bsd', h, w_down)
    x = A_x
    x = x + _A_ref(_layernorm(x, axis=-1), A_mem0, A_Wq, A_Wk, A_Wv, A_Wo, A_seg_len)
    x = x + _B_ref(_layernorm(x, axis=-1), B_w_gate, B_w_up, B_w_down)
    x = x + _A_ref(_layernorm(x, axis=-1), A_mem0, A_Wq, A_Wk, A_Wv, A_Wo, A_seg_len)
    x = x + _B_ref(_layernorm(x, axis=-1), B_w_gate, B_w_up, B_w_down)
    return x
```

```python
class Asm:
    def __init__(self):
        self.lines = []
        self._lab = 0
    def __call__(self, s):
        for ln in s.split('\n'):
            ln = ln.strip()
            if not ln: continue
            if ln.endswith(':') or ln.startswith('.') or ln.startswith(';'):
                self.lines.append(ln)
            else:
                self.lines.append('    ' + ln)
    def label(self, base='L'):
        self._lab += 1
        return f'{base}_{self._lab}'
    def text(self):
        return '\n'.join(self.lines) + '\n'

def vr(b, n=1):
    return f'v{b}' if n == 1 else f'v[{b}:{b+n-1}]'
def ar(b, n=1):
    return f'a{b}' if n == 1 else f'a[{b}:{b+n-1}]'
def sr(b, n=1):
    return f's{b}' if n == 1 else f's[{b}:{b+n-1}]'

def interleave(main, fillers):
    out = []
    out += fillers.get(-1, [])
    for i, m in enumerate(main):
        out.append(m)
        out += fillers.get(i, [])
    for k in sorted(fillers):
        if k >= len(main): out += fillers[k]
    return out
```

```python
from asmlib import *
from layout import *

SRD = 's[8:11]'
S_W, S_SLOT, S_L, S_P, S_FAST, S_STEP, S_TO, S_U = 12, 13, 14, 15, 16, 17, 18, 19
NSTEP = 64
P_ENTRY, PV_ENTRY = 'Lp_from_k', 'Lpv_from_v'
HANDOVER = True
OPT = dict(mem2=True, p2=True, xk3late=False, stag=2, pcan=False, fpos=7, novx=False, nost=False, noxk=False)
STAMP_OP = 's_memtime'
DPP = 'row_mask:0xf bank_mask:0xf'

def wreg(G, nA, vbase):
    return ar(8*G, 8) if G < nA else vr(vbase + 8*(G-nA), 8)
def wreg4(G, half, nA, vbase):
    return ar(8*G+4*half, 4) if G < nA else vr(vbase + 8*(G-nA) + 4*half, 4)

class Stamps:
    def __init__(self, a, on, base=60):
        self.a, self.on, self.base, self.n = a, on, base, 0
    def mark(self, lvl=1):
        if self.on >= lvl:
            self.a(f'{STAMP_OP} s[{self.base+2*self.n}:{self.base+2*self.n+1}]'); self.n += 1
    def flush(self, vt0, soff, sstep=S_STEP):
        if not self.on: return
        a = self.a
        a(f"""s_waitcnt lgkmcnt(0)
        s_lshl_b32 s{soff}, s{S_W}, 7
        s_add_u32 s{soff}, s{soff}, s{sstep}
        s_lshl_b32 s{soff}, s{soff}, 5
        s_add_u32 s{soff}, s{soff}, {STL}
        v_mov_b32 v{vt0}, s{soff}""")
        for k in range(0, self.n, 2):
            a(f'v_mov_b32 v{vt0+1}, s{self.base+2*k}')
            a(f'ds_write_b16 v{vt0}, v{vt0+1} offset:{2*k}')
            if k+1 < self.n:
                a(f'v_mov_b32 v{vt0+1}, s{self.base+2*k+2}')
                a(f'ds_write_b16 v{vt0}, v{vt0+1} offset:{2*k+2}')
        self.n = 0

STL = 147456
def stamp_dump(a, EXIT):
    a(f"""s_memrealtime s[22:23]
    s_waitcnt lgkmcnt(0)
    v_and_b32 v1, 63, v0
    v_lshlrev_b32 v1, 4, v1
    s_lshl_b32 s20, s{S_W}, 12
    s_add_u32 s21, s20, {STL}
    v_mov_b32 v2, s21
    v_mov_b32 v3, s98
    ds_write_b16 v2, v3 offset:24
    v_mov_b32 v3, s100
    ds_write_b16 v2, v3 offset:26
    v_mov_b32 v3, s22
    ds_write_b16 v2, v3 offset:28
    v_add_u32 v2, s21, v1
    s_lshl_b32 s21, s{S_SLOT}, 14
    s_add_u32 s20, s20, s21
    s_add_u32 s20, s20, {STAMP}""")
    for k in range(4):
        a(f"""ds_read_b128 v[4:7], v2 offset:{k*1024}
        s_waitcnt lgkmcnt(0)
        buffer_store_dwordx4 v[4:7], v1, {SRD}, s20 offen offset:{k*1024}
        s_nop 1""")
    if EXIT: a(f's_branch {EXIT}')
    else: a(f's_add_u32 s{S_SLOT}, s{S_SLOT}, 256\ns_waitcnt vmcnt(0)')

def poll_mem(a, soff, d, t, EXIT, MEMS, d2):
    L = a.label('Lpm'); OK = a.label('Lpmok')
    def issue(r):
        a(f"""buffer_load_dwordx4 {vr(r[0],4)}, v2, {SRD}, s{soff} offen sc1
        buffer_load_dwordx4 {vr(r[1],4)}, v3, {SRD}, s{soff} offen sc1""")
    def check(r, n=2):
        p, q = r
        a(f"""s_waitcnt vmcnt({n})
        v_max3_u32 v{t}, v{p}, v{p+1}, v{p+2}
        v_max3_u32 v{t+1}, v{p+3}, v{q}, v{q+1}
        v_max3_u32 v{t}, v{t}, v{q+2}, v{q+3}
        v_max_u32 v{t}, v{t}, v{t+1}
        v_cmp_eq_u32 vcc, -1, v{t}
        ds_write_b128 v2, {vr(p,4)} offset:{MEMS}
        ds_write_b128 v3, {vr(q,4)} offset:{MEMS}""")
    if not OPT['mem2']:
        a(f'{L}:')
        issue(d)
        a(f's_sub_u32 s{S_TO}, s{S_TO}, 1\ns_cbranch_scc1 {EXIT}')
        check(d, 0)
        a(f's_cbranch_vccnz {L}')
        return
    issue(d)
    a('s_nop 15\n'*OPT['stag'])
    a(f'{L}:')
    issue(d2)
    check(d)
    a(f's_cbranch_vccz {OK}')
    issue(d)
    a(f"""s_sub_u32 s{S_TO}, s{S_TO}, 1
    s_cbranch_scc1 {EXIT}""")
    check(d2)
    a(f's_cbranch_vccnz {L}')
    a(f'{OK}:')

def mem_addr_setup(a):
    a(f'''v_and_b32 v7, 63, v0
    v_lshlrev_b32 v1, 4, v7
    s_mul_i32 s20, s{S_W}, 112
    v_add_u32 v2, s20, v7
    v_min_u32 v3, 47, v7
    s_add_u32 s20, s20, 64
    v_add_u32 v3, s20, v3
    v_lshlrev_b32 v2, 4, v2
    v_lshlrev_b32 v3, 4, v3
    v_and_b32 v8, 8, v7
    v_cmp_eq_u32 vcc, 0, v8
    v_mov_b32 v6, 0xeeee
    v_mov_b32 v8, 0x4444
    v_cndmask_b32 v6, v6, v8, vcc''')

def wait_flags(a, voff, soff, vd, EXIT):
    L = a.label('Lwf'); Lok = a.label('Lwfok')
    a(f'''{L}:
    buffer_load_dword v{vd}, v{voff}, {SRD}, s{soff} offen sc1
    s_sub_u32 s{S_TO}, s{S_TO}, 1
    s_cbranch_scc1 {EXIT}
    s_waitcnt vmcnt(0)
    v_cmp_eq_u32 vcc, 0, v{vd}
    s_cbranch_vccz {Lok}
    s_sleep 2
    s_branch {L}
    {Lok}:''')

PREP = True
def wait_done(a, voff, vd, EXIT):
    if not PREP: return
    L = a.label('Lwd'); OK = a.label('Lwdok')
    a(f"""s_mov_b32 s20, {DONEF}
    {L}:
    buffer_load_dwordx2 {vr(vd,2)}, v{voff}, {SRD}, s20 offen sc1
    s_sub_u32 s{S_TO}, s{S_TO}, 1
    s_cbranch_scc1 {EXIT}
    s_waitcnt vmcnt(0)
    v_xor_b32 v{vd}, s78, v{vd}
    v_xor_b32 v{vd+1}, s79, v{vd+1}
    v_or_b32 v{vd}, v{vd}, v{vd+1}
    v_cmp_ne_u32 vcc, 0, v{vd}
    s_cbranch_vccz {OK}
    s_sleep 2
    s_branch {L}
    {OK}:""")

def need_head(a, typ, EXIT, t=16):
    if not PREP: return
    a(f"""s_and_b32 s20, s{S_P}, 1
    s_add_u32 s20, s20, {2*typ}
    s_mul_i32 s20, s20, 56
    s_lshr_b32 s21, s{S_P}, 1
    s_sub_u32 s21, s21, {2*typ}
    s_and_b32 s21, s21, 7
    s_add_u32 s20, s20, s21
    v_and_b32 v{t}, 7, v0
    v_min_u32 v{t}, 6, v{t}
    v_lshlrev_b32 v{t}, 3, v{t}
    v_add_u32 v{t}, s20, v{t}
    v_lshlrev_b32 v{t}, 7, v{t}""")
    wait_done(a, t, t+2, EXIT)

def need_cols(a, EXIT, t=16):
    if not PREP: return
    a(f"""v_and_b32 v{t}, 15, v0
    v_and_b32 v{t+1}, 1, v{t}
    v_mul_u32_u24 v{t+1}, 56, v{t+1}
    v_lshrrev_b32 v{t}, 1, v{t}
    v_subrev_u32 v{t}, 2, v{t}
    v_and_b32 v{t}, 7, v{t}
    v_add_u32 v{t}, v{t}, v{t+1}
    s_lshr_b32 s20, s{S_P}, 1
    s_lshl_b32 s20, s20, 3
    s_add_u32 s20, s20, 112
    v_add_u32 v{t}, s20, v{t}
    v_lshlrev_b32 v{t}, 7, v{t}""")
    wait_done(a, t, t+2, EXIT)

def all_done(a, EXIT, t=16):
    if not PREP: return
    a(f'v_lshlrev_b32 v{t}, 7, v0')
    wait_done(a, t, t+2, EXIT)
    a('s_barrier')

def hold_back(a, EXIT, t=16):
    if not PREP: return
    L = a.label('Lhb')
    a(f's_cmp_eq_u32 s{S_L}, 0\ns_cbranch_scc1 {L}')
    all_done(a, EXIT, t)
    a(f'v_and_b32 v{t}, 15, v0\nv_lshlrev_b32 v{t}, 7, v{t}\ns_mov_b32 s21, {flag_base(F_VX)}')
    wait_flags(a, t, 21, t+2, EXIT)
    a(f'{L}:')

def ring_off(a, dst, step_plus, seg, base_s):
    sh = seg.bit_length()-1
    a(f'''s_add_u32 s{dst}, s{S_STEP}, {step_plus & 3}
    s_and_b32 s{dst}, s{dst}, 3
    s_lshl_b32 s{dst}, s{dst}, {sh}
    s_add_u32 s{dst}, s{dst}, s{base_s}''')

def k_cu(a, EXIT, stamps=0, mode_fn=None):
    MEMS, TIMG, PART = 0, 8192, 24576
    SW = 2048
    nA, vb = 32, 120
    memA, tb, sc, pd, tmp = 16, 60, 92, 92, 112
    X, Mx = 60, 112
    D2 = (60, 100)
    ACC = [44, 48, 52, 56, 44, 48, 64]
    mk, mk2, tb2 = 116, 52, 56
    XKR = {(0, 0): 68, (0, 1): 70, (1, 0): 72, (1, 1): 76, (2, 0): 80, (2, 1): 84, (3, 0): 104, (3, 1): 108}
    S_D = 36
    S_FS = 40
    S_MEM, S_PM, S_XN, S_FX, S_T0, S_T1, S_XP, S_XS, S_MB, S_PB, S_RA = 24, 25, 26, 27, 28, 29, 30, 31, 32, 33, 34
    DONE = a.label('Ldone')
    hold_back(a, EXIT)
    need_head(a, 0, EXIT)
    mem_addr_setup(a)
    a(f'''s_mul_i32 s20, s{S_P}, 28
    s_mul_i32 s21, s{S_W}, 7
    s_add_u32 s20, s20, s21
    s_and_b32 s22, s{S_W}, 1
    s_add_u32 s21, s20, s22
    s_mul_i32 s21, s21, 14336
    s_add_u32 s21, s21, {WA}
    s_xor_b32 s22, s22, 1
    s_mul_i32 s22, s22, 6
    s_add_u32 s20, s20, s22
    s_mul_i32 s20, s20, 14336
    s_add_u32 s20, s20, {WA}''')
    n = 0
    for u in range(7):
        sreg = 20 if u == 0 else 21
        for ks in range(14):
            G = u*7 + ks//2
            fi = ks if u == 0 else (u-1)*14 + ks
            a(f'buffer_load_dwordx4 {wreg4(G, ks & 1, nA, vb)}, v1, {SRD}, s{sreg} offen offset:{(fi & 3)*1024} sc1')
            if (fi & 3) == 3: a(f's_add_u32 s{sreg}, s{sreg}, 4096')
            n += 1
            if n >= 48 and n % 8 == 0: a('s_waitcnt vmcnt(40)')
    a(f'''v_mov_b32 v114, v7
    v_and_b32 v112, 15, v114
    v_lshrrev_b32 v113, 4, v114
    s_mul_i32 s20, s{S_W}, 3584
    s_add_u32 s20, s20, {TIMG}
    v_lshlrev_b32 v8, 3, v114
    v_add_u32 v8, s20, v8
    v_lshlrev_b32 v7, 5, v112
    v_lshl_add_u32 v7, v113, 3, v7
    v_add_u32 v7, s20, v7
    s_mul_i32 s20, s{S_W}, 7
    s_add_u32 s20, s20, 1
    s_lshr_b32 s20, s20, 1
    s_lshr_b32 s21, s{S_W}, 1
    s_mul_i32 s21, s21, 7
    s_add_u32 s21, s21, 3
    s_lshl_b32 s{S_XP}, s20, 10
    s_lshl_b32 s{S_XS}, s21, 10
    s_and_b32 s22, s{S_W}, 1
    v_and_b32 v115, 7, v114
    v_lshlrev_b32 v116, 4, v115
    v_lshrrev_b32 v117, 1, v113
    v_lshl_add_u32 v116, v117, 8, v116
    v_and_b32 v117, 1, v113
    v_lshl_add_u32 v116, v117, 3, v116
    s_lshl_b32 s20, s20, 9
    s_add_u32 s20, s20, {MEMS}
    v_add_u32 v9, s20, v116
    v_add_u32 v4, 1024, v9
    s_lshl_b32 s21, s21, 9
    s_lshl_b32 s23, s22, 2
    s_add_u32 s21, s21, s23
    s_add_u32 s21, s21, {MEMS}
    v_add_u32 v10, s21, v116
    s_lshl_b32 s22, s22, 3
    v_add_u32 v12, s22, v1''')
    a(f'''s_lshl_b32 s20, s{S_W}, 11
    s_add_u32 s20, s20, {PART}
    v_bfe_u32 v117, v114, 3, 1
    v_lshl_add_u32 v118, v117, 2, v113
    v_mul_u32_u24 v13, 144, v118
    v_lshl_add_u32 v13, v115, 4, v13
    v_add_u32 v13, s20, v13
    v_lshl_add_u32 v118, v113, 1, v117
    v_mul_u32_u24 v5, 80, v118
    v_lshl_add_u32 v5, v115, 3, v5
    s_add_u32 s20, s20, 1152
    v_add_u32 v5, s20, v5''')
    a(f'''v_and_b32 v115, 31, v114
    v_lshrrev_b32 v116, 5, v114
    s_lshl_b32 s20, s{S_W}, 1
    v_add_u32 v116, s20, v116
    v_lshrrev_b32 v117, 1, v115
    v_and_b32 v118, 1, v115
    v_mul_u32_u24 v14, 144, v117
    v_lshl_add_u32 v14, v116, 4, v14
    v_lshl_add_u32 v14, v118, 3, v14
    v_min_u32 v119, 19, v115
    v_subrev_u32 v119, 16, v119
    v_mul_u32_u24 v119, 80, v119
    v_lshl_add_u32 v119, v116, 3, v119
    v_add_u32 v119, 1152, v119
    v_cmp_gt_u32 vcc, 16, v115
    s_nop 1
    v_cndmask_b32 v14, v119, v14, vcc
    v_add_u32 v14, {PART}, v14''')
    a(f'''s_lshr_b32 s20, s{S_P}, 1
    s_lshl_b32 s20, s20, 10
    s_and_b32 s21, s{S_P}, 1
    s_lshl_b32 s22, s21, 7
    s_add_u32 s20, s20, s22
    v_and_b32 v119, 3, v117
    v_lshlrev_b32 v15, 8, v119
    v_lshl_add_u32 v15, v116, 4, v15
    v_lshl_add_u32 v15, v118, 2, v15
    v_lshrrev_b32 v119, 3, v115
    v_lshl_add_u32 v15, v119, 3, v15
    v_add_u32 v15, s20, v15
    s_lshr_b32 s20, s{S_P}, 2
    s_lshl_b32 s20, s20, 9
    s_add_u32 s20, s20, 8192
    s_lshl_b32 s21, s21, 3
    s_add_u32 s20, s20, s21
    s_and_b32 s21, s{S_P}, 2
    s_lshl_b32 s21, s21, 7
    s_add_u32 s20, s20, s21
    v_and_b32 v119, 1, v117
    v_lshlrev_b32 v119, 7, v119
    v_lshl_add_u32 v119, v116, 4, v119
    v_lshl_add_u32 v119, v118, 2, v119
    v_add_u32 v119, s20, v119
    v_cndmask_b32 v15, v119, v15, vcc
    v_cmp_gt_u32 vcc, 20, v115
    v_mov_b32 v117, 0x7f000000
    v_mov_b32 v118, 0xff800000
    v_mov_b32 v119, 0x7f800000
    v_cndmask_b32 v15, v117, v15, vcc
    v_cndmask_b32 v90, v118, v119, vcc
    v_and_b32 v91, 7, v114
    v_min_u32 v91, 6, v91
    v_lshlrev_b32 v91, 7, v91
    v_mov_b32 v88, -1''')
    a(f'''s_lshl_b32 s{S_MB}, s{S_L}, 15
    s_add_u32 s{S_MB}, s{S_MB}, {MEMF}
    s_lshl_b32 s{S_PB}, s{S_L}, 16
    s_add_u32 s{S_PB}, s{S_PB}, {PM}
    s_lshl_b32 s20, s{S_L}, 6
    s_mul_i32 s{S_XN}, s20, {XN_SEG}
    s_add_u32 s{S_XN}, s{S_XN}, {XN}
    s_mul_i32 s{S_FX}, s20, {flag_seg(F_XN)}
    s_add_u32 s{S_FX}, s{S_FX}, {flag_base(F_XN)}
    s_mul_i32 s{S_FS}, s{S_L}, {flag_seg(F_XN)}
    s_cmp_eq_u32 s{S_L}, 0
    s_cselect_b32 s{S_FX}, {ST+7168}, s{S_FX}
    s_mov_b32 s{S_STEP}, 0
    s_mov_b32 s{S_MEM}, s{S_MB}
    s_mov_b32 s{S_PM}, s{S_PB}
    s_add_u32 s{S_RA}, s{S_PB}, {3*PM_SEG}''')
    def xk_setup():
        if OPT['noxk']: a(f's_sub_u32 s{S_XN}, s{S_XN}, {XN_SEG}')
        a(f"""s_add_u32 s{S_D}, s{S_XN}, s{S_XP}
        s_add_u32 s{S_D+1}, s{S_XN}, s{S_XS}
        s_add_u32 s{S_D+2}, s{S_D}, 14336
        s_add_u32 s{S_D+3}, s{S_D+1}, 14336
        s_add_u32 s{S_XN}, s{S_XN}, {XN_SEG}
        s_add_u32 s{S_FX}, s{S_FX}, s{S_FS}""")
    def xk_load(unit, kt):
        if unit == 0:
            return f'buffer_load_dwordx2 {vr(XKR[(0,kt)],2)}, v12, {SRD}, s{S_D+1+2*kt} offen sc1'
        return f'buffer_load_dwordx4 {vr(XKR[(unit,kt)],4)}, v1, {SRD}, s{S_D+2*kt} offen offset:{(unit-1)*1024} sc1'
    FLAGLD = f'buffer_load_dword v89, v91, {SRD}, s{S_FX} offen sc1'
    all_done(a, EXIT)
    if mode_fn: mode_fn(92, 93)
    wait_flags(a, 91, S_FX, 89, EXIT)
    xk_setup()
    for u in range(4):
        for kt in range(2): a(xk_load(u, kt))
    a(FLAGLD)
    a('s_waitcnt vmcnt(0)')
    LS = a.label('Lkslow')
    a(f's_cmp_eq_u32 s{S_FAST}, 1\ns_cbranch_scc0 {LS}')
    def loop(sc1):
        st = Stamps(a, stamps)
        LOOP = a.label('Lk'); Lok = a.label('Lkf')
        KB = a.label('Lkb'); KC = a.label('Lkc')
        a(f'{LOOP}:\ns_waitcnt vmcnt(1)\n{KC}:')
        a(f"""v_max3_u32 v{tmp}, v68, v70, v72
        v_max3_u32 v{tmp+1}, v76, v80, v84
        v_max3_u32 v{tmp}, v{tmp}, v104, v108
        v_max_u32 v{tmp}, v{tmp}, v{tmp+1}
        v_cmp_eq_u32 vcc, -1, v{tmp}
        s_cbranch_vccnz {KB}
        v_cmp_eq_u32 vcc, 0, v89
        s_cbranch_vccz {Lok}""")
        wait_flags(a, 91, S_FX, 89, EXIT)
        a(f'{Lok}:')
        xk_setup()
        for u in (0, 1, 2, 3, 6): a(f'v_mov_b64 {vr(ACC[u],2)}, 0\nv_mov_b64 {vr(ACC[u]+2,2)}, 0')
        st.mark()
        poll_mem(a, S_MEM, (pd, pd+4), tmp, EXIT, MEMS, D2)
        st.mark(2)
        a('s_waitcnt lgkmcnt(0)\ns_barrier')
        st.mark(2)
        for b in range(7): a(f'ds_read_b128 {vr(memA+4*b,4)}, v1 offset:{MEMS+1024*b}')
        main = []
        for u in range(7):
            for b in range(7):
                main.append(f'v_smfmac_f32_16x16x64_bf16 {vr(ACC[u],4)}, {vr(memA+4*b,4)}, {wreg(u*7+b, nA, vb)}, v6')
        F = {}
        def add(slot, *ins): F.setdefault(slot, []).extend(ins)
        def spread(slot, ins, step=1):
            for k, x in enumerate(ins): add(slot+k*step, x)
        [add(b-1, f's_waitcnt lgkmcnt({6-b})') for b in range(7)]
        def mkread(unit, R):
            if unit == 0: return [f'ds_read2_b32 {vr(R,2)}, v10 offset0:0 offset1:32']
            p = unit-1
            ar_, o = (9, p*128) if p < 2 else (4, 0)
            return [f'ds_read2_b32 {vr(R,2)}, v{ar_} offset0:{o} offset1:{o+32}', f'ds_read2_b32 {vr(R+2,2)}, v{ar_} offset0:{o+1} offset1:{o+33}']
        def tail_tile(u, half, tb=tb):
            A = ACC[u]; t = tmp+2*half
            return [f'v_cvt_pk_bf16_f32 v{t}, v{A}, v{A+1}', f'v_cvt_pk_bf16_f32 v{t+1}, v{A+2}, v{A+3}',
                    f'ds_write_b64 v7, {vr(t,2)} offset:{u*512}', f'ds_read_b64_tr_b16 {vr(tb+2*half,2)}, v8 offset:{u*512}']
        def score(unit, mkr=mk, tb=tb):
            K = [XKR[(unit, 0)], XKR[(unit, 1)], mkr]
            if unit == 0:
                return [f'v_mfma_f32_16x16x16_bf16 {vr(sc+4*k,4)}, {vr(K[k],2)}, {vr(tb,2)}, 0' for k in range(3)]
            return [f'v_mfma_f32_16x16x32_bf16 {vr(sc+4*k,4)}, {vr(K[k],4)}, {vr(tb,4)}, {vr(sc+4*k,4)}' for k in range(3)]
        def put_score(slot, sc_ins, fill):
            add(slot, 's_waitcnt lgkmcnt(0)')
            for k in range(3):
                add(slot, sc_ins[k])
                if k < len(fill): add(slot, fill[k])
        def z(u): return [f'v_mov_b64 {vr(ACC[u],2)}, 0', f'v_mov_b64 {vr(ACC[u]+2,2)}, 0']
        spread(7, mkread(0, mk)); add(10, FLAGLD)
        add(8, f'buffer_store_dword v88, v15, {SRD}, s{S_RA} offen {sc1}')
        add(13, 's_waitcnt vmcnt(2)')
        spread(14, tail_tile(0, 0))
        spread(18, z(4))
        t1 = tail_tile(1, 0); spread(20, t1[:2])
        put_score(22, score(0), [t1[2], xk_load(0, 0), t1[3]])
        spread(23, mkread(1, mk)); spread(25, z(5)); add(27, xk_load(0, 1))
        spread(28, tail_tile(2, 1))
        spread(32, mkread(3, mk2))
        t3 = tail_tile(3, 0); add(35, t3[0]); add(36, t3[1])
        put_score(36, score(1), [t3[2], xk_load(1, 0), t3[3]])
        spread(37, mkread(2, mk)); add(40, xk_load(1, 1))
        t4 = tail_tile(4, 1); spread(42, t4)
        t5 = tail_tile(5, 0, tb2)
        add(48, t5[0])
        put_score(48, score(2), [t5[1], t5[2], t5[3]])
        for ins in interleave(main, F): a(ins)
        st.mark(2)
        t6 = tail_tile(6, 1, tb2)
        for ins in t6: a(ins)
        a(xk_load(2, 0)); ring_off(a, S_MEM, 1, MEM_SEG, S_MB); a(xk_load(2, 1))
        a('s_waitcnt lgkmcnt(0)')
        s3 = score(3, mk2, tb2)
        for ins in (s3[2], s3[0], s3[1]): a(ins)
        st.mark(2)
        if OPT['xk3late']: a(f's_mov_b32 s{S_RA}, s{S_PM}\ns_nop 4')
        else: a(xk_load(3, 0)); a(f's_mov_b32 s{S_RA}, s{S_PM}'); a(xk_load(3, 1)); a('s_nop 2')
        for q in range(2):
            a(f'v_add_f32_dpp v{Mx+q}, v{sc+8+q}, v{sc+8+q} row_ror:8 row_mask:0xf bank_mask:0x3')
            a(f'v_add_f32_dpp v{Mx+q}, v{sc+10+q}, v{sc+10+q} row_ror:8 row_mask:0xf bank_mask:0xc')
        a(f'ds_write_b64 v5, {vr(Mx,2)}')
        for r in range(4):
            a(f'v_add_f32_dpp v{X+r}, v{sc+r}, v{sc+r} row_ror:8 row_mask:0xf bank_mask:0x3')
            a(f'v_add_f32_dpp v{X+r}, v{sc+4+r}, v{sc+4+r} row_ror:8 row_mask:0xf bank_mask:0xc')
        a(f'ds_write_b128 v13, {vr(X,4)}')
        a('s_waitcnt lgkmcnt(0)\ns_barrier')
        st.mark(2)
        R = 44
        for w in range(4): a(f'ds_read_b64 {vr(R+2*w,2)}, v14 offset:{w*SW}')
        a(f"""s_waitcnt lgkmcnt(2)
        v_pk_add_f32 {vr(R,2)}, {vr(R,2)}, {vr(R+2,2)}
        s_waitcnt lgkmcnt(0)
        v_pk_add_f32 {vr(R+4,2)}, {vr(R+4,2)}, {vr(R+6,2)}
        v_pk_add_f32 {vr(R,2)}, {vr(R,2)}, {vr(R+4,2)}
        v_min_f32 v{R}, v{R}, v90
        v_min_f32 v{R+1}, v{R+1}, v90
        v_max_f32 v{R+4}, v{R}, v{R+1}""")
        st.mark(2)
        for k in (8, 4, 2, 1):
            a(f's_nop 1\nv_max_f32_dpp v{R+4}, v{R+4}, v{R+4} row_ror:{k} {DPP}')
        a(f"""v_mov_b32 v{R+5}, v{R+4}
        s_nop 1
        v_permlane16_swap_b32 v{R+4}, v{R+5}
        v_max_f32 v{R+4}, v{R+4}, v{R+5}
        v_sub_f32 v{R}, v{R}, v{R+4}
        v_sub_f32 v{R+1}, v{R+1}, v{R+4}
        v_exp_f32 v{R}, v{R}
        v_exp_f32 v{R+1}, v{R+1}
        s_nop 0
        v_add_f32 v{R+4}, v{R}, v{R+1}""")
        for k in (8, 4, 2, 1):
            a(f's_nop 1\nv_add_f32_dpp v{R+4}, v{R+4}, v{R+4} row_ror:{k} {DPP}')
        a(f"""v_mov_b32 v{R+5}, v{R+4}
        s_nop 1
        v_permlane16_swap_b32 v{R+4}, v{R+5}
        v_add_f32 v{R+4}, v{R+4}, v{R+5}
        v_rcp_f32 v{R+4}, v{R+4}
        s_add_u32 s{S_STEP}, s{S_STEP}, 1
        v_mul_f32 v{R}, v{R}, v{R+4}
        v_mul_f32 v{R+1}, v{R+1}, v{R+4}
        v_cvt_pk_bf16_f32 v{R}, v{R}, v{R+1}
        v_min_u32 v{R}, 0xfffffffe, v{R}
        buffer_store_dword v{R}, v15, {SRD}, s{S_PM} offen {sc1}""")
        st.mark(2)
        st.flush(tmp, 20)
        a(f"""s_cmp_ge_u32 s{S_STEP}, {NSTEP-1}
        s_cbranch_scc1 {DONE}""")
        ring_off(a, S_PM, 0, PM_SEG, S_PB)
        if OPT['xk3late']: a(xk_load(3, 0)); a(xk_load(3, 1)); a('s_waitcnt vmcnt(0)')
        a(f's_branch {LOOP}')
        a(f'{KB}:\ns_sub_u32 s{S_TO}, s{S_TO}, 1\ns_cbranch_scc1 {EXIT}')
        for u in range(4):
            for kt in range(2): a(xk_load(u, kt))
        a(f's_waitcnt vmcnt(0)\ns_branch {KC}')
    loop('')
    a(f'{LS}:')
    loop('sc1')
    a(f'{DONE}:')
    if stamps: stamp_dump(a, None)
    if HANDOVER: a(f's_waitcnt vmcnt(0) lgkmcnt(0)\ns_barrier\ns_cmp_eq_u32 s{S_L}, 0\ns_cbranch_scc1 {P_ENTRY}')
    a(f's_branch {EXIT}')

def v_cu(a, EXIT, stamps=0, mode_fn=None):
    MEMS, PART, WL = 0, 8192, 16384
    nA, vb = 32, 176
    memA, acc, wr, vx, pf, vmf, oa, pd, fl, tmp = 16, 44, 76, 92, 124, 136, 144, 160, 168, 170
    S_MEM, S_PM, S_VX, S_FV, S_T0, S_MG, S_VM, S_FM, S_MB, S_PB, S_RA, S_MN, S_MGN, S_VMN = 24, 25, 26, 27, 28, 29, 30, 31, 32, 33, 34, 35, 40, 41
    DONE = a.label('Ldone')
    hold_back(a, EXIT)
    need_cols(a, EXIT)
    mem_addr_setup(a)
    a(f'''s_mul_i32 s20, s{S_W}, 28672
    s_add_u32 s20, s20, {WL}
    s_mul_i32 s21, s{S_W}, 112
    s_lshl_b32 s{S_T0}, s{S_P}, 1
    s_add_u32 s21, s21, s{S_T0}
    s_mul_i32 s21, s21, 14336
    s_add_u32 s21, s21, {WV}''')
    n = 0
    a(f's_add_u32 s{S_T0}, s21, {3*28*14336}')
    for fi in range(28):
        if (fi & 3) == 0:
            a(f's_add_u32 m0, s20, {fi*1024}\ns_nop 0')
        a(f'buffer_load_dwordx4 v1, {SRD}, s{S_T0} offen offset:{(fi&3)*1024} sc1 lds')
        if (fi & 3) == 3: a(f's_add_u32 s{S_T0}, s{S_T0}, 4096')
        n += 1
    for hh in range(3):
        a(f's_add_u32 s{S_T0}, s21, {hh*28*14336}')
        for fi in range(28):
            G = hh*14 + fi//2
            a(f'buffer_load_dwordx4 {wreg4(G, fi & 1, nA, vb)}, v1, {SRD}, s{S_T0} offen offset:{(fi&3)*1024} sc1')
            if (fi & 3) == 3: a(f's_add_u32 s{S_T0}, s{S_T0}, 4096')
            n += 1
            if n >= 48 and n % 8 == 0: a('s_waitcnt vmcnt(40)')
    a(f'''v_mov_b32 v14, v7
    v_add_u32 v7, s20, v1
    v_and_b32 v15, 7, v14
    v_lshrrev_b32 v{tmp}, 4, v14
    v_bfe_u32 v{tmp+1}, v14, 3, 1
    v_lshrrev_b32 v{tmp+2}, 5, v14
    s_lshl_b32 s20, s{S_W}, 11
    v_add_u32 v8, s20, v1
    v_lshlrev_b32 v9, 7, v{tmp}
    v_lshl_add_u32 v9, v15, 4, v9
    v_lshl_add_u32 v10, v{tmp+1}, 9, v9
    s_lshl_b32 s20, s{S_W}, 10
    s_add_u32 s20, s20, {PART}
    v_add_u32 v10, s20, v10
    s_lshl_b32 s21, s{S_W}, 9
    s_add_u32 s21, s21, 8192
    v_add_u32 v9, s21, v9
    v_and_b32 v11, 15, v14
    v_lshlrev_b32 v11, 4, v11
    v_lshl_add_u32 v11, v{tmp}, 10, v11
    s_lshl_b32 s20, s{S_W}, 8
    s_add_u32 s20, s20, {PART}
    v_add_u32 v11, s20, v11
    v_lshlrev_b32 v12, 4, v15
    v_lshl_add_u32 v4, v{tmp+1}, 3, v12
    v_lshl_add_u32 v4, v{tmp+2}, 2, v4
    s_lshl_b32 s20, s{S_P}, 2
    s_add_u32 s20, s20, s{S_W}
    s_lshl_b32 s21, s20, 7
    v_add_u32 v4, s21, v4
    v_lshl_add_u32 v12, v{tmp+2}, 7, v12
    v_lshl_add_u32 v12, v{tmp+1}, 2, v12
    s_lshr_b32 s21, s20, 1
    s_lshl_b32 s21, s21, 8
    s_and_b32 s20, s20, 1
    s_lshl_b32 s20, s20, 3
    s_add_u32 s21, s21, s20
    v_add_u32 v12, s21, v12
    v_and_b32 v13, 3, v14
    s_lshl_b32 s20, s{S_W}, 2
    v_add_u32 v13, s20, v13
    v_lshlrev_b32 v13, 7, v13
    v_mov_b32 v5, -1
    v_cmp_eq_u32 vcc, 0, v0
    v_mov_b32 v14, 0x7f000000
    v_mov_b32 v15, 1
    v_cndmask_b32 v14, v14, 0, vcc''')
    a(f'''s_lshl_b32 s{S_MB}, s{S_L}, 15
    s_add_u32 s{S_MB}, s{S_MB}, {MEMF}
    s_lshl_b32 s{S_PB}, s{S_L}, 16
    s_add_u32 s{S_PB}, s{S_PB}, {PM}
    s_lshl_b32 s20, s{S_L}, 6
    s_lshl_b32 s{S_MGN}, s20, 13
    s_add_u32 s{S_MGN}, s{S_MGN}, {MEMG+MEM_SEG}
    s_mov_b32 s{S_MG}, {DUMMY}
    s_mul_i32 s{S_VX}, s20, {VX_SEG}
    s_mul_i32 s21, s{S_W}, 112
    s_lshl_b32 s{S_T0}, s{S_P}, 1
    s_add_u32 s21, s21, s{S_T0}
    s_lshl_b32 s21, s21, 10
    s_add_u32 s{S_VX}, s{S_VX}, s21
    s_add_u32 s{S_VX}, s{S_VX}, {VX}
    s_mul_i32 s{S_VM}, s20, {VM_SEG}
    s_mul_i32 s21, s{S_W}, 28
    s_add_u32 s21, s21, s{S_T0}
    s_lshl_b32 s21, s21, 10
    s_add_u32 s{S_VM}, s{S_VM}, s21
    s_add_u32 s{S_VMN}, s{S_VM}, {VM}
    s_mov_b32 s{S_VM}, {DUMMY}
    s_mul_i32 s{S_FV}, s20, {flag_seg(F_VX)}
    s_add_u32 s{S_MN}, s{S_FV}, {flag_base(F_VM)}
    s_add_u32 s{S_FV}, s{S_FV}, {flag_base(F_VX)}
    s_lshl_b32 s21, s{S_P}, 7
    s_add_u32 s{S_MN}, s{S_MN}, s21
    s_mov_b32 s{S_FM}, {DUMMY}
    s_mov_b32 s{S_STEP}, 0
    s_mov_b32 s{S_MEM}, s{S_MB}
    s_mov_b32 s{S_PM}, s{S_PB}
    s_add_u32 s{S_RA}, s{S_MB}, {3*MEM_SEG}
    v_mov_b32 v{fl}, 0''')
    all_done(a, EXIT)
    if mode_fn: mode_fn(pd, pd+1)
    S_X = 36
    S_FC = 42
    a('s_mov_b32 s56, s4\ns_mov_b32 s57, s5\ns_mov_b32 s58, 0\ns_mov_b32 s59, 0x20000')
    D2 = (16, 20)
    LS = a.label('Lvslow')
    a(f's_cmp_eq_u32 s{S_FAST}, 1\ns_cbranch_scc0 {LS}')
    def loop(sc1):
        st = Stamps(a, stamps)
        LOOP = a.label('Lv'); LAST = a.label('Lvlast'); Lok = a.label('Lvf')
        a(f"""{LOOP}:
        v_cmp_eq_u32 vcc, 0, v{fl}
        s_mov_b32 s{S_FC}, s{S_FV}
        s_cbranch_vccz {LOOP}_f
        buffer_load_dword v{fl}, v13, {SRD}, s{S_FV} offen sc1
        {LOOP}_f:""")
        for r in range(16): a(f'v_mov_b64 {vr(acc+2*r,2)}, 0')
        for hh in range(4): a(f's_add_u32 s{S_X+hh}, s{S_VX}, {hh*28672}')
        st.mark()
        poll_mem(a, S_MEM, (pd, pd+4), tmp, EXIT, MEMS, D2)
        st.mark(2)
        X = '' if OPT['nost'] else 'sc1'
        a(f'v_cmp_eq_u32 vcc, 0, v{fl}')
        a(f"""buffer_store_dword v{tmp+2}, v4, {SRD}, s{S_MG} offen {X}
        buffer_store_dwordx4 {vr(vmf,4)}, v1, {SRD}, s{S_VM} offen {X}
        buffer_store_dwordx4 {vr(vmf+4,4)}, v1, {SRD}, s{S_VM} offen offset:1024 {X}
        s_cmp_eq_u64 vcc, 0
        s_cselect_b32 s58, 0x10000000, 0
        s_mov_b32 s{S_VM}, s{S_VMN}
        s_add_u32 s{S_VMN}, s{S_VMN}, {VM_SEG}
        s_add_u32 s{S_VX}, s{S_VX}, {VX_SEG}
        s_add_u32 s{S_FV}, s{S_FV}, {flag_seg(F_VX)}
        s_waitcnt lgkmcnt(0)
        s_barrier""")
        st.mark(2)
        def wread(i):
            o = i*2048; R = wr+8*(i & 1)
            return [f'ds_read_b128 {vr(R,4)}, v7 offset:{o}', f'ds_read_b128 {vr(R+4,4)}, v7 offset:{o+1024}']
        VL = lambda srd: [f'buffer_load_dwordx4 {vr(vx+8*hh+4*t,4)}, v1, {srd}, s{S_X+hh} offen offset:{t*1024} sc1' for hh in range(4) for t in range(2)]
        V = VL('s[56:59]')
        V = [f'buffer_load_dword v{fl}, v13, {SRD}, s{S_FV} offen sc1'] + V
        V += [f'buffer_store_dword v5, v12, {SRD}, s{S_RA} offen {sc1}']
        fi = OPT['fpos']
        if OPT['novx']: V = [x if 'dwordx4' not in x else f'buffer_load_dword v{tmp+3}, v14, {SRD}, s{S_RA} offen' for x in V]
        V.insert(fi, f's_waitcnt vmcnt({fi})\ns_barrier\nbuffer_store_dword v15, v14, {SRD}, s{S_FM} offen sc1' if fi < 99 else '')
        a('s_waitcnt vmcnt(3)')
        for b in range(7): a(f'ds_read_b128 {vr(memA+4*b,4)}, v1 offset:{MEMS+1024*b}')
        for ins in wread(0) + wread(1): a(ins)
        a('s_waitcnt lgkmcnt(4)')
        regs = [(ui, b) for ui in range(6) for b in range(7)]
        k = 0
        for i in range(14):
            for q in range(3):
                ui, b = regs[k]; k += 1
                a(f'v_smfmac_f32_16x16x64_bf16 {vr(acc+4*ui,4)}, {vr(memA+4*b,4)}, {wreg(ui*7+b, nA, vb)}, v6')
                if i > 0 and i+1 < 14 and q < 2: a(wread(i+1)[q])
                if q == 2: a(f's_waitcnt lgkmcnt({2 if i < 13 else 0})')
            a(f'v_smfmac_f32_16x16x64_bf16 {vr(acc+4*(6+i//7),4)}, {vr(memA+4*(i%7),4)}, {vr(wr+8*(i&1),8)}, v6')
            if i < len(V): a(V[i])
        st.mark(2)
        a(f"""s_mov_b32 s{S_RA}, s{S_MEM}
        s_mov_b32 s{S_FM}, s{S_MN}
        s_add_u32 s{S_MN}, s{S_MN}, {flag_seg(F_VM)}
        s_nop 0""")
        ring_off(a, S_MEM, 1, MEM_SEG, S_MB)
        for t in range(2):
            for lo in range(2):
                A0 = acc+4*(lo*2+t); A1 = acc+4*((lo+2)*2+t)
                for r in range(4): a(f'v_permlane32_swap_b32 v{A0+r}, v{A1+r}')
                for r in range(4): a(f'v_add_f32 v{A0+r}, v{A0+r}, v{A1+r}')
                a(f'v_cvt_pk_bf16_f32 v{vmf+4*t+2*lo}, v{A0}, v{A0+1}')
                a(f'v_cvt_pk_bf16_f32 v{vmf+4*t+2*lo+1}, v{A0+2}, v{A0+3}')
        a(f"""s_cmp_ge_u32 s{S_STEP}, {NSTEP-1}
        s_cbranch_scc1 {LAST}
        s_cmp_lg_u32 s58, 0
        s_cbranch_scc1 {Lok}""")
        wait_flags(a, 13, S_FC, tmp+3, EXIT)
        for x in VL(SRD): a(x)
        a(f'{Lok}:')
        st.mark(2)
        if stamps >= 3: a('s_waitcnt vmcnt(3)')
        st.mark(3)
        if stamps >= 3: a('s_waitcnt vmcnt(1)')
        st.mark(3)
        if stamps >= 3: a('s_waitcnt vmcnt(0)')
        st.mark(3)
        L = a.label('Lpp'); UA = a.label('LuA'); UB = a.label('LuB'); J = a.label('LuJ')
        OA = lambda t, ab: oa+8*t+4*ab
        pf2 = memA
        def issue(r):
            a(f"""buffer_load_dwordx4 {vr(r,4)}, v8, {SRD}, s{S_PM} offen sc1
            buffer_load_dwordx4 {vr(r+4,4)}, v8, {SRD}, s{S_PM} offen offset:1024 sc1
            buffer_load_dwordx4 {vr(r+8,4)}, v9, {SRD}, s{S_PM} offen sc1""")
        mf = lambda D, A, B, C: f'v_mfma_f32_16x16x32_bf16 {vr(D,4)}, {vr(A,4)}, {vr(B,4)}, {C}'
        def use(p, o=3):
            a(f's_waitcnt vmcnt({o+2})')
            a(mf(OA(0,0), vx, p, 0)); a(f'v_max3_u32 v{tmp}, v{p}, v{p+1}, v{p+2}')
            a(mf(OA(0,1), vx+8, p, 0)); a(mf(OA(1,0), vx+4, p, 0)); a(mf(OA(1,1), vx+12, p, 0))
            a(f's_waitcnt vmcnt({o+1})')
            a(mf(OA(0,1), vx+24, p+4, vr(OA(0,1),4))); a(f'v_max3_u32 v{tmp+1}, v{p+3}, v{p+4}, v{p+5}')
            a(mf(OA(1,1), vx+28, p+4, vr(OA(1,1),4))); a(f'v_max3_u32 v{tmp}, v{tmp}, v{p+6}, v{p+7}')
            a(mf(OA(0,0), vx+16, p+4, vr(OA(0,0),4))); a(mf(OA(1,0), vx+20, p+4, vr(OA(1,0),4)))
            a(f"""s_waitcnt vmcnt({o})
            v_max3_u32 v{tmp+1}, v{tmp+1}, v{p+8}, v{p+9}
            v_max3_u32 v{tmp}, v{tmp}, v{p+10}, v{p+11}
            v_max_u32 v{tmp}, v{tmp}, v{tmp+1}
            v_cmp_eq_u32 vcc, -1, v{tmp}""")
            a(mf(OA(0,0), vmf, p+8, vr(OA(0,0),4))); a(mf(OA(1,0), vmf+4, p+8, vr(OA(1,0),4)))
        if OPT['pcan']:
            C = a.label('Lcan'); CO = a.label('Lcok')
            def cl(r): a(f'buffer_load_dwordx4 {vr(r,4)}, v9, {SRD}, s{S_PM} offen sc1')
            def cc(r): a(f"""s_waitcnt vmcnt(1)
                v_max3_u32 v{tmp}, v{r}, v{r+1}, v{r+2}
                v_max_u32 v{tmp}, v{tmp}, v{r+3}
                v_cmp_eq_u32 vcc, -1, v{tmp}""")
            cl(pf2); a('s_nop 15\ns_nop 15')
            a(f'{C}:'); cl(pf2+4); cc(pf2); a(f's_cbranch_vccz {CO}'); cl(pf2)
            a(f's_sub_u32 s{S_TO}, s{S_TO}, 1\ns_cbranch_scc1 {EXIT}')
            cc(pf2+4); a(f's_cbranch_vccnz {C}\n{CO}:')
        if OPT['pcan'] or not OPT['p2']:
            a(f'{L}:')
            issue(pf)
            a(f's_sub_u32 s{S_TO}, s{S_TO}, 1\ns_cbranch_scc1 {EXIT}')
            use(pf, 0)
            a(f's_cbranch_vccnz {L}')
        else:
            issue(pf)
            a('s_nop 15\n'*OPT['stag'])
            a(f'{L}:')
            issue(pf2)
            use(pf)
            a(f's_cbranch_vccz {J}')
            issue(pf)
            a(f"""s_sub_u32 s{S_TO}, s{S_TO}, 1
            s_cbranch_scc1 {EXIT}""")
            use(pf2)
            a(f's_cbranch_vccnz {L}')
        a(f'{J}:')
        st.mark(2)
        R = acc
        a('s_nop 5')
        for r in range(4):
            a(f'v_add_f32_dpp v{R+4+r}, v{OA(0,1)+r}, v{OA(0,0)+r} row_ror:8 row_mask:0xf bank_mask:0x3')
        for r in range(4):
            a(f'v_add_f32_dpp v{R+4+r}, v{OA(1,0)+r}, v{OA(1,1)+r} row_ror:8 row_mask:0xf bank_mask:0xc')
        a(f'ds_write_b128 v10, {vr(R+4,4)}')
        a(f's_add_u32 s{S_STEP}, s{S_STEP}, 1')
        a('s_waitcnt lgkmcnt(0)\ns_barrier')
        st.mark(2)
        a(f"""ds_read_b128 {vr(R,4)}, v11
        s_waitcnt lgkmcnt(0)
        v_permlane32_swap_b32 v{R}, v{R+2}
        v_permlane32_swap_b32 v{R+1}, v{R+3}
        v_add_f32 v{R}, v{R}, v{R+2}
        v_add_f32 v{R+1}, v{R+1}, v{R+3}
        s_nop 1
        v_permlane16_swap_b32 v{R}, v{R+1}
        v_add_f32 v{R}, v{R}, v{R+1}
        v_mov_b32 v{R+1}, v{R}
        s_nop 1
        v_permlane16_swap_b32 v{R}, v{R+1}
        v_cvt_pk_bf16_f32 v{tmp+2}, v{R}, v{R+1}
        v_min_u32 v{tmp+2}, 0xfffffffe, v{tmp+2}
        buffer_store_dword v{tmp+2}, v12, {SRD}, s{S_MEM} offen {sc1}
        s_mov_b32 s{S_MG}, s{S_MGN}
        s_add_u32 s{S_MGN}, s{S_MGN}, {MEM_SEG}""")
        st.mark(2)
        st.flush(tmp, 20)
        ring_off(a, S_PM, 0, PM_SEG, S_PB)
        a(f"""s_branch {LOOP}
        {LAST}:
        buffer_store_dwordx4 {vr(vmf,4)}, v1, {SRD}, s{S_VM} offen sc1
        buffer_store_dwordx4 {vr(vmf+4,4)}, v1, {SRD}, s{S_VM} offen offset:1024 sc1
        s_waitcnt vmcnt(0)
        s_barrier
        buffer_store_dword v15, v14, {SRD}, s{S_FM} offen sc1
        s_branch {DONE}""")
    loop('')
    a(f'{LS}:')
    loop('sc1')
    a(f'{DONE}:')
    if stamps: stamp_dump(a, None)
    if HANDOVER: a(f's_waitcnt vmcnt(0) lgkmcnt(0)\ns_barrier\ns_cmp_eq_u32 s{S_L}, 0\ns_cbranch_scc1 {PV_ENTRY}')
    a(f's_branch {EXIT}')
```

```python
import sys
from asmlib import *
from layout import *
import chain, workers
from chain import SRD, S_W, S_SLOT, S_L, S_P, S_FAST, S_STEP, S_TO

KN = 'interleave_layers__memory_aug_recurrent_mem_tr__glu_gated_glu__prompt'
R_IDLE, R_K, R_V, R_P, R_VX, R_B1, R_B2, R_PV = range(8)

def role_table():
    T = [R_IDLE]*256
    def enc(role, l=0, p=0, u=0): return role | (l << 4) | (p << 8) | (u << 16)
    for l in range(2):
        for r in range(16): T[l*32+r] = enc(R_K, l, r)
        for r in range(14): T[l*32+16+r] = enc(R_V, l, r)
    free = {x: list(range(x*32, x*32+32)) for x in range(2, 8)}
    for h in range(16):
        x = 2 + h % 6
        for u in range(workers.N_P): T[free[x].pop(0)] = enc(R_P, 0, h, u)
        for u in range(3): T[free[x].pop(0)] = enc(R_VX, 0, h, u)
    teams = [(R_B2, u) for u in range(workers.N_B2)] + [(R_PV, u) for u in range(workers.N_PV)]
    for (r, u), x in zip(teams, [2, 3, 4, 5, 6, 6, 7]):
        for c in range(7): T[free[x].pop(0)] = enc(r, 0, c, u)
    slots = free[6] + free[7] + free[2] + free[3] + free[4] + free[5]
    k = 0
    for c in range(14):
        for u in range(workers.N_B1): T[slots[k]] = enc(R_B1, 0, c, u); k += 1
    return T

def kd(name, vgpr=512, sgpr=102, acc=256):
    return f'''.amdhsa_kernel {name}
  .amdhsa_next_free_vgpr {vgpr}
  .amdhsa_next_free_sgpr {sgpr}
  .amdhsa_accum_offset {acc}
  .amdhsa_group_segment_fixed_size 0
  .amdhsa_kernarg_size 112
  .amdhsa_user_sgpr_count 2
  .amdhsa_user_sgpr_kernarg_segment_ptr 1
  .amdhsa_system_sgpr_workgroup_id_x 1
.end_amdhsa_kernel
'''

DS = 's[80:83]'
def main_kernel(a, name, roles, stamps=False, force_slow=False, with_prep=True):
    EXIT = f'{name}_exit'
    a(f'.globl {name}\n.p2align 8\n.type {name},@function\n{name}:')
    a(f"""s_cmp_ge_u32 s2, 256
    s_cbranch_scc1 {EXIT}
    s_memrealtime s[78:79]
    s_load_dwordx2 s[4:5], s[0:1], 104
    s_load_dwordx2 s[80:81], s[0:1], 96
    s_load_dwordx4 s[40:43], s[0:1], 0
    s_load_dwordx4 s[44:47], s[0:1], 16
    s_load_dwordx4 s[48:51], s[0:1], 32
    s_getreg_b32 s7, hwreg(HW_REG_XCC_ID)
    s_and_b32 s7, s7, 7
    v_lshrrev_b32 v1, 6, v0
    s_mov_b32 s82, 256
    v_readfirstlane_b32 s{S_W}, v1
    s_mov_b32 s83, 0x20000
    s_mov_b32 s10, 0x10000000
    s_mov_b32 s11, 0x20000
    s_getpc_b64 s[22:23]
    s_waitcnt lgkmcnt(0)
    s_mov_b32 s8, s4
    s_mov_b32 s9, s5
    s_or_b32 s78, s78, 1
    {'s_mov_b32 s98, s78' if stamps else ''}""")
    Lw = a.label('Lra'); Lnat = a.label('Lnat'); Lov = a.label('Lov'); Lov2 = a.label('Lov2'); Lov3 = a.label('Lov3')
    TL = a.label('Ltouch'); TJ = a.label('Ltj')
    a(f"""s_cmp_eq_u32 s{S_W}, 0
    s_cbranch_scc1 {TL}
    v_subrev_u32 v1, 64, v0
    v_lshlrev_b32 v1, 7, v1
    v_min_u32 v2, {name}_tab-{name}-256, v1
    global_load_dword v250, v2, s[22:23]
    v_add_u32 v1, 24576, v1
    v_min_u32 v2, {name}_tab-{name}-256, v1
    global_load_dword v250, v2, s[22:23]
    v_add_u32 v1, 24576, v1
    v_min_u32 v2, {name}_tab-{name}-256, v1
    global_load_dword v250, v2, s[22:23]
    s_branch {TJ}
    {TL}:
    s_mov_b64 exec, 1
    s_lshl_b32 s21, s7, 2
    v_mov_b32 v1, 0
    v_mov_b32 v250, 1
    v_mov_b32 v252, s78
    v_mov_b32 v253, s79
    v_mov_b32 v254, 0
    v_mov_b32 v255, 0
    buffer_atomic_add v250, v1, {DS}, s21 offen sc0 sc1
    buffer_atomic_cmpswap_x2 v[252:255], v1, {DS}, 0 offen offset:128 sc0 sc1
    s_mov_b64 exec, -1
    {TJ}:""")
    def hook():
        a(f"""v_readfirstlane_b32 s6, v250
        v_readfirstlane_b32 s20, v252
        v_readfirstlane_b32 s21, v253
        s_cmp_eq_u64 s[20:21], 0
        s_cselect_b64 s[78:79], s[78:79], s[20:21]""")
    if with_prep: prep.prep_body(a, a.label('Lprep_end'), hook, stamps)
    else:
        a('s_waitcnt vmcnt(0)'); hook()
    a(f"""s_mov_b32 s{S_TO}, 0x80000
    s_mov_b32 s{S_FAST}, 1
    s_waitcnt vmcnt(0)
    s_barrier
    s_cmp_lg_u32 s{S_W}, 0
    s_cbranch_scc1 {Lw}
    s_mov_b64 exec, 1
    v_mov_b32 v1, 0
    v_mov_b32 v2, s78
    v_mov_b32 v3, s79
    s_lshl_b32 s21, s2, 7
    s_add_u32 s21, s21, {DONEF}
    buffer_store_dwordx2 v[2:3], v1, {SRD}, s21 offen sc1
    s_lshl_b32 s{S_SLOT}, s7, 5
    s_add_u32 s{S_SLOT}, s{S_SLOT}, s6
    s_cmp_lt_u32 s6, 32
    s_cbranch_scc1 {Lnat}
    v_mov_b32 v2, 1
    buffer_atomic_add v2, v1, {DS}, 0 offen offset:32 sc0 sc1
    s_waitcnt vmcnt(0)
    v_readfirstlane_b32 s22, v2
    s_mov_b64 exec, 0xff
    v_mbcnt_lo_u32_b32 v1, -1, 0
    v_lshlrev_b32 v1, 2, v1""")
    a(f'''
    {Lov}:
    buffer_load_dword v2, v1, {DS}, 0 offen sc1
    s_sub_u32 s{S_TO}, s{S_TO}, 1
    s_cbranch_scc1 {EXIT}
    s_waitcnt vmcnt(0)
    s_mov_b32 s23, 0''')
    for x in range(8):
        a(f'v_readlane_b32 s24, v2, {x}\ns_add_u32 s23, s23, s24')
    a(f'''s_cmp_lt_u32 s23, 256
    s_cbranch_scc1 {Lov}
    s_mov_b32 s23, 0
    {Lov2}:
    v_readlane_b32 s24, v2, s23
    s_min_u32 s24, s24, 32
    s_sub_u32 s25, 32, s24
    s_cmp_lt_u32 s22, s25
    s_cbranch_scc1 {Lov3}
    s_sub_u32 s22, s22, s25
    s_add_u32 s23, s23, 1
    s_cmp_lt_u32 s23, 8
    s_cbranch_scc1 {Lov2}
    s_mov_b32 s{S_SLOT}, 30
    s_branch {Lnat}
    {Lov3}:
    s_lshl_b32 s{S_SLOT}, s23, 5
    s_add_u32 s{S_SLOT}, s{S_SLOT}, s24
    s_add_u32 s{S_SLOT}, s{S_SLOT}, s22
    {Lnat}:
    s_mov_b64 exec, -1
    v_mov_b32 v1, 0
    v_mov_b32 v2, s{S_SLOT}
    v_mov_b32 v3, s78
    v_mov_b32 v4, s79
    ds_write_b96 v1, v[2:4]
    s_waitcnt lgkmcnt(0)
    {Lw}:
    s_barrier
    v_mov_b32 v1, 0
    ds_read_b96 v[2:4], v1
    s_getpc_b64 s[20:21]
    {name}_pc:
    s_add_u32 s20, s20, {name}_tab-{name}_pc
    s_addc_u32 s21, s21, 0
    s_waitcnt lgkmcnt(0)
    v_readfirstlane_b32 s{S_SLOT}, v2
    v_readfirstlane_b32 s78, v3
    v_readfirstlane_b32 s79, v4
    s_and_b32 s{S_SLOT}, s{S_SLOT}, 255
    s_lshl_b32 s22, s{S_SLOT}, 2
    s_load_dword s22, s[20:21], s22
    s_barrier
    s_waitcnt lgkmcnt(0)
    s_bfe_u32 s{S_L}, s22, 0x10004
    s_bfe_u32 s{S_P}, s22, 0x80008
    s_bfe_u32 s19, s22, 0x80010
    s_and_b32 s22, s22, 15
    {'s_memrealtime s[100:101]' if stamps else ''}''')
    labels = {r: a.label(f'Lrole{r}') for r in roles}
    Lch = a.label('Lch')
    for r in roles:
        a(f's_cmp_eq_u32 s22, {r}\ns_cbranch_scc1 {labels[r]}')
    a(f'{EXIT}:\ns_endpgm')
    def chain_mode(va, vd, need=30):
        L = a.label('Lcm'); Ld = a.label('Lcmd')
        a(f'''v_and_b32 v{va}, 7, v0
        v_lshlrev_b32 v{va}, 2, v{va}
        {L}:
        buffer_load_dword v{vd}, v{va}, {DS}, 0 offen sc1
        s_sub_u32 s{S_TO}, s{S_TO}, 1
        s_cbranch_scc1 {EXIT}
        s_waitcnt vmcnt(0)
        s_lshr_b32 s23, s{S_SLOT}, 5
        s_nop 3
        v_readlane_b32 s22, v{vd}, s23
        s_cmp_ge_u32 s22, {need}
        s_cbranch_scc1 {Ld}
        s_mov_b32 s23, 0''')
        for x in range(8):
            a(f'v_readlane_b32 s22, v{vd}, {x}\ns_add_u32 s23, s23, s22')
        a(f'''s_cmp_lt_u32 s23, 256
        s_cbranch_scc1 {L}
        s_mov_b32 s{S_FAST}, 0
        {Ld}:''')
        if force_slow: a(f's_mov_b32 s{S_FAST}, 0')
    for r in roles:
        a(f'{labels[r]}:')
        if r in (R_K, R_V, R_B2): roles[r](a, EXIT, stamps, chain_mode)
        else: roles[r](a, EXIT, stamps)
    a(f'.p2align 2\n.type {name}_tab,@object\n{name}_tab:')
    T = role_table()
    for i in range(0, 256, 8):
        a('.long ' + ', '.join(f'0x{x:x}' for x in T[i:i+8]))

import workers, prep
ALL = {R_K: chain.k_cu, R_V: chain.v_cu, R_P: workers.p_role, R_VX: workers.vx_role, R_B1: workers.b1_role, R_B2: workers.b2_role, R_PV: workers.pv_role}

HEADER = open('cdna_kernels/' + KN + '.s.ref').read().split('; Override launch geometry')[0]

def build(roles=None, stamps=0, force_slow=False, with_prep=True):
    a = Asm()
    a(HEADER)
    name = KN + '_kernel'
    a('; @launch grid=(256,1,1) block=(256,1,1) lds=163840')
    a('.amdgcn_target "amdgcn-amd-amdhsa--gfx950"\n.text')
    chain.HANDOVER = roles is None and not workers.MERGE
    chain.PREP = with_prep
    main_kernel(a, name, {r: ALL[r] for r in (ALL if roles is None else roles)}, stamps, force_slow, with_prep)
    a('.section .rodata,"a"\n.p2align 6')
    a(kd(name))
    return a.text()

def with_timeout_diag(txt):
    lines = txt.split('\n'); out = []; stubs = []; n = 0
    for i, ln in enumerate(lines):
        if ln.strip() == f's_cbranch_scc1 {KN}_kernel_exit' and lines[i-1].strip().startswith('s_sub_u32 s18'):
            n += 1
            out.append(f'    s_cbranch_scc1 Lto_{n}   ; site {n}')
            stubs.append(f'Lto_{n}:\n    s_mov_b32 s99, {n}\n    s_branch Lto_common')
        elif ln.startswith(f'.type {KN}_kernel_tab') :
            out.pop()
            out += stubs
            out.append(f"""Lto_common:
    s_mov_b64 exec, 1
    s_lshl_b32 s20, s13, 2
    s_add_u32 s20, s20, s12
    s_lshl_b32 s20, s20, 4
    s_add_u32 s20, s20, {STAMP+0x900000}
    v_mov_b32 v1, 0
    v_mov_b32 v4, s99
    v_mov_b32 v5, s17
    v_mov_b32 v6, s44
    v_mov_b32 v7, s47
    buffer_store_dwordx4 v[4:7], v1, s[8:11], s20 offen
    s_endpgm
.p2align 2""")
            out.append(ln)
        else: out.append(ln)
    return '\n'.join(out).replace('s_mov_b32 s18, 0x80000', 's_mov_b32 s18, 0x4000')

if __name__ == '__main__':
    E = 'exp/'
    open(E+'chain1.s', 'w').write(build([R_K, R_V], 1, with_prep=False))
    open(E+'chain2.s', 'w').write(build([R_K, R_V], 2, with_prep=False))
    open(E+'prep.s', 'w').write(build([]))
    for nm, r in (('p', R_P), ('vx', R_VX), ('b1', R_B1), ('b2', R_B2), ('pv', R_PV)):
        open(E+f'r_{nm}.s', 'w').write(build([r], 1, with_prep=False))
    open(E+'full.s', 'w').write(build())
    open(E+'full_to.s', 'w').write(with_timeout_diag(build()))
    open(E+'slow_to.s', 'w').write(with_timeout_diag(build(force_slow=True)))
    open(E+'full_cy.s', 'w').write(build(stamps=1))
    chain.STAMP_OP = 's_memrealtime'
    open(E+'chain3.s', 'w').write(build([R_K, R_V], 2, with_prep=False))
    open(E+'full_st.s', 'w').write(build(stamps=1))
    open(E+'prep_st.s', 'w').write(build([], stamps=1))
```

```python
FR = 1024
WA   = 0x0000000
WV   = 0x0620000
XN   = 0x0C40000; XN_SEG = 28672
YN   = 0x0FC0000
X1   = 0x1340000
X2   = 0x16C0000
HF   = 0x1880000; HF_SEG = 114688
VX   = 0x2680000; VX_SEG = 458752
VM   = 0x5E80000; VM_SEG = 114688
PF   = 0x6C80000; PF_SEG = 40960
SENT0 = 0x7180000
MEMF = 0x7180000; MEM_SEG = 8192
PM   = 0x7190000; PM_SEG = 16384
MEMG = 0x71B0000
ST   = 0x72B0000; ST_SEG = 8192
SENT1 = ST + 3*64*8192
ZERO0 = 0x7430000
CNT  = 0x7430000
FL   = 0x7431000
F_VX, F_XN, F_P, F_VM, F_YN, F_H = 0, 1, 2, 3, 4, 5
F_N = [16, 8, 32, 16, 8, 16]
def flag_base(kind): return FL + sum(F_N[:kind])*128*128
def flag_seg(kind): return F_N[kind]*128
ZERO1 = flag_base(6)
STAMP = 0x8000000
DUMMY = 0x77C0000
assert ZERO1 <= DUMMY
DONEF = 0x77E0000
assert ZERO1 <= DONEF
RANK = DONEF + 0x8000
```

```python
from asmlib import *
from layout import *
from workers import gather_pairs, mf
SRD = 's[8:11]'
SCALE = 0x3db8aa3b
WST = 'sc1'

def prep_body(a, END, hook, stamps=0):
    n_st = [0]
    def mark():
        if stamps:
            a(f's_memrealtime s[{60+2*n_st[0]}:{61+2*n_st[0]}]'); n_st[0] += 1
    def dump():
        if not stamps: return
        a(f'''s_waitcnt vmcnt(0)
        s_memrealtime s[76:77]
        s_waitcnt lgkmcnt(0)
        s_lshl_b32 s20, s2, 2
        s_add_u32 s20, s20, s12
        s_lshl_b32 s20, s20, 6
        s_add_u32 s20, s20, {STAMP+0x800000}
        v_mov_b32 v2, 0''')
        for k in range(9):
            a(f'v_mov_b32 v3, s{60+2*k}\nbuffer_store_dword v3, v2, s[8:11], s20 offen offset:{4*k}')
    EXIT = END
    mark()
    a(f'''v_and_b32 v7, 63, v0
    v_lshlrev_b32 v1, 4, v7
    v_lshlrev_b32 v2, 4, v0
    v_mov_b32 v16, -1
    v_mov_b32 v17, -1
    v_mov_b32 v18, -1
    v_mov_b32 v19, -1
    v_mov_b32 v20, 0
    v_mov_b32 v21, 0
    v_mov_b32 v22, 0
    v_mov_b32 v23, 0''')
    a(f'''s_cmp_lt_u32 s12, 2
    s_cselect_b32 s24, s44, s48
    s_cselect_b32 s25, s45, s49
    s_cselect_b32 s28, s46, s50
    s_cselect_b32 s29, s47, s51
    s_bitcmp1_b32 s12, 0
    s_cselect_b32 s24, s28, s24
    s_cselect_b32 s25, s29, s25
    s_mov_b32 s26, {448*8192}
    s_mov_b32 s27, 0x20000
    s_mul_i32 s20, s2, 14336
    v_lshlrev_b32 v8, 7, v7
    v_min_u32 v9, 47, v7
    v_lshlrev_b32 v9, 7, v9
    s_add_u32 s21, s20, 8192
    buffer_load_dword v251, v8, s[24:27], s20 offen
    buffer_load_dword v251, v9, s[24:27], s21 offen''')
    LN = a.label('Lln')
    def fills():
        nb = (SENT1-SENT0)//8192
        skip = [0, 4, (MEMG-SENT0)//8192, (MEMG-SENT0)//8192+64]
        for rnd in range(2):
            L = a.label('Lf')
            a(f's_add_u32 s20, s2, {256*rnd}')
            if rnd == 0:
                for b in skip: a(f's_cmp_eq_u32 s20, {b}\ns_cbranch_scc1 {L}')
            else:
                a(f's_cmp_ge_u32 s20, {nb}\ns_cbranch_scc1 {L}')
            a(f'''s_lshl_b32 s20, s20, 13
            s_add_u32 s20, s20, {SENT0}
            s_add_u32 s21, s20, 4096
            buffer_store_dwordx4 v[16:19], v2, {SRD}, s20 offen {WST}
            buffer_store_dwordx4 v[16:19], v2, {SRD}, s21 offen {WST}
            {L}:''')
        a(f's_mul_i32 s20, s2, 20480\ns_add_u32 s20, s20, {PF}')
        for k in range(5): a(f'buffer_store_dwordx4 v[16:19], v2, {SRD}, s20 offen {WST}\ns_add_u32 s20, s20, 4096')
        nz = (ZERO1-ZERO0)//4096
        assert (ZERO1-ZERO0) % 4096 == 0 and nz <= 512
        for rnd in range(2):
            L = a.label('Lz')
            a(f'''s_add_u32 s20, s2, {256*rnd}
            s_cmp_ge_u32 s20, {nz}
            s_cbranch_scc1 {L}
            s_lshl_b32 s20, s20, 12
            s_add_u32 s20, s20, {ZERO0}
            buffer_store_dwordx4 v[20:23], v2, {SRD}, s20 offen {WST}
            {L}:''')
    a(f's_cmp_ge_u32 s2, 224\ns_cbranch_scc1 {LN}')
    LV = a.label('Lfv'); LJ = a.label('Lfj')
    a(f'''s_lshr_b32 s20, s2, 3
    s_mul_i32 s21, s20, 37
    s_lshr_b32 s21, s21, 8
    s_mul_i32 s22, s21, 7
    s_sub_u32 s14, s20, s22
    s_and_b32 s22, s2, 7
    s_lshl_b32 s22, s22, 1
    s_lshl_b32 s13, s21, 1
    s_and_b32 s13, s13, 4
    s_add_u32 s22, s22, s13
    s_and_b32 s13, s21, 1
    s_add_u32 s15, s22, s13
    s_and_b32 s15, s15, 15
    s_lshl_b32 s13, s21, 3
    s_and_b32 s13, s13, 16
    s_add_u32 s13, s13, s15
    s_lshl_b32 s16, s14, 2
    s_add_u32 s16, s16, s12
    v_and_b32 v3, 15, v7
    v_lshrrev_b32 v4, 4, v7
    v_lshrrev_b32 v5, 2, v3
    v_and_b32 v6, 3, v3
    v_lshl_add_u32 v5, v5, 3, v6
    v_lshlrev_b32 v5, 13, v5
    v_lshl_add_u32 v5, v4, 4, v5
    s_lshl_b32 s17, s15, 9
    s_lshl_b32 s37, s12, 13
    s_mov_b32 s26, {448*8192}
    s_mov_b32 s27, 0x20000
    s_mov_b32 s30, {448*8192}
    s_mov_b32 s31, 0x20000
    s_cmp_ge_u32 s13, 16
    s_cbranch_scc1 {LV}
    s_mov_b32 s24, s44
    s_mov_b32 s25, s45
    s_mov_b32 s28, s46
    s_mov_b32 s29, s47
    s_mov_b32 s32, {SCALE}
    s_mov_b32 s33, {WA}
    s_lshr_b32 s20, s16, 1
    s_lshl_b32 s20, s20, 5
    s_and_b32 s21, s16, 1
    s_lshl_b32 s21, s21, 2
    s_add_u32 s20, s20, s21
    s_lshl_b32 s20, s20, 13
    s_add_u32 s20, s20, s17''')
    for kd in range(8):
        a(f's_add_u32 m0, s37, {kd*1024 - kd*64}\ns_nop 0\nbuffer_load_dwordx4 v5, s[28:31], s20 offen offset:{kd*64} lds')
    a(f"""s_branch {LJ}
    {LV}:
    s_mov_b32 s24, s48
    s_mov_b32 s25, s49
    s_mov_b32 s28, s50
    s_mov_b32 s29, s51
    s_mov_b32 s32, 1.0
    s_mov_b32 s33, {WV}
    v_lshrrev_b32 v8, 1, v7
    v_mul_u32_u24 v8, 896, v8
    v_and_b32 v9, 1, v7
    v_lshl_add_u32 v8, v9, 4, v8
    s_mul_i32 s21, s15, {256*896}
    s_lshl_b32 s20, s16, 5
    s_add_u32 s21, s21, s20""")
    for kd in range(8):
        a(f's_add_u32 m0, s37, {kd*1024}\ns_add_u32 s20, s21, {kd*32*896}\nbuffer_load_dwordx4 v8, s[28:31], s20 offen lds')
    a(f'{LJ}:')
    mark()
    AF = lambda n, ab, kd: 64*(n & 1) + 32*ab + 4*kd
    a(f"""v_lshrrev_b32 v24, 3, v7
    v_and_b32 v25, 7, v7
    v_bfe_u32 v26, v7, 4, 1
    v_xor_b32 v25, v25, v26
    v_lshlrev_b32 v24, 13, v24""")
    for rg in range(4):
        a(f"""v_xor_b32 v26, {2*rg}, v25
        v_lshl_add_u32 v{10+rg}, v26, 4, v24
        v_add_u32 v{10+rg}, {rg*8*8192}, v{10+rg}""")
    a(f"""s_lshl_b32 s38, s12, 15
    s_add_u32 s38, s38, 32768
    v_lshrrev_b32 v24, 2, v3
    v_lshlrev_b32 v14, 10, v24
    v_lshl_add_u32 v14, v6, 7, v14
    v_lshlrev_b32 v24, 1, v24
    v_lshrrev_b32 v25, 1, v6
    v_or_b32 v24, v24, v25
    v_xor_b32 v24, v24, v4
    v_lshl_add_u32 v14, v24, 4, v14
    v_add_u32 v14, s38, v14
    v_xor_b32 v15, 64, v14""")
    def adma(n):
        a(f"""s_add_u32 s34, s12, {4*n}
        s_lshl_b32 s34, s34, 18
        s_add_u32 s34, s34, s17""")
        for cg in range(4):
            for rg in range(4):
                a(f's_add_u32 m0, s38, {(n&1)*16384 + (cg*4+rg)*1024 - cg*128}\ns_nop 0\nbuffer_load_dwordx4 v{10+rg}, s[24:27], s34 offen offset:{cg*128} lds')
    def aread(n):
        for ab in range(2):
            for kd in range(8):
                a(f'ds_read_b128 {ar(AF(n,ab,kd),4)}, v{14+(kd&1)} offset:{(n&1)*16384 + (kd>>1)*4096 + ab*512}')
    adma(0); adma(1)
    a(f"""v_lshrrev_b32 v24, 2, v7
    v_lshlrev_b32 v24, 13, v24
    v_and_b32 v25, 3, v7
    v_lshl_add_u32 v24, v25, 7, v24""")
    for n in (2, 3):
        a(f"""s_add_u32 s34, s12, {4*n}
        s_lshl_b32 s34, s34, 18
        s_add_u32 s34, s34, s17
        s_add_u32 s35, s34, {16*8192}
        buffer_load_dword v26, v24, s[24:27], s34 offen
        buffer_load_dword v27, v24, s[24:27], s35 offen""")
    a('s_waitcnt vmcnt(36)')
    hook()
    a('s_barrier')
    mark()
    LB = a.label('Lfb'); LC = a.label('Lfc')
    a(f's_cmp_ge_u32 s13, 16\ns_cbranch_scc1 {LB}')
    for i in range(32): a(f'ds_read_b128 {vr(128+4*i,4)}, v1 offset:{i*1024}')
    a(f"""s_branch {LC}
    {LB}:
    v_lshlrev_b32 v9, 8, v4
    v_lshl_add_u32 v9, v3, 3, v9""")
    for i in range(32):
        for jh in range(2): a(f'ds_read_b64_tr_b16 {vr(128+4*i+2*jh,2)}, v9 offset:{i*1024+jh*128}')
        if i % 4 == 3: a('s_waitcnt lgkmcnt(4)')
    a(f"""{LC}:
    s_mul_i32 s36, s15, 28
    s_lshl_b32 s20, s14, 2
    s_add_u32 s36, s36, s20
    s_mul_i32 s36, s36, 14336
    s_add_u32 s36, s36, s33
    s_lshl_b32 s20, s12, 10
    s_add_u32 s36, s36, s20""")
    AC = 64
    def adma_list(n):
        out = [f's_add_u32 s34, s12, {4*n}', 's_lshl_b32 s34, s34, 18', 's_add_u32 s34, s34, s17']
        for cg in range(4):
            for rg in range(4):
                out += [f's_add_u32 m0, s38, {(n&1)*16384 + (cg*4+rg)*1024 - cg*128}', f'buffer_load_dwordx4 v{10+rg}, s[24:27], s34 offen offset:{cg*128} lds', '']
        return out
    def epi(n):
        A0 = AC + 32*(n & 1); out = []
        for tt in range(4):
            O = 24+4*tt
            for ab in range(2):
                A = A0+16*ab+4*tt
                out += [f'v_mul_f32 v{A+r}, s32, v{A+r}' for r in range(4)]
                out += [f'v_cvt_pk_bf16_f32 v{O+2*ab}, v{A}, v{A+1}', f'v_cvt_pk_bf16_f32 v{O+2*ab+1}, v{A+2}, v{A+3}']
            out += [f's_add_u32 s20, s36, {tt*14336 + n*4096}\nbuffer_store_dwordx4 {vr(O,4)}, v1, {SRD}, s20 offen {WST}']
        return out
    a('s_waitcnt vmcnt(20)')
    aread(0)
    for n in range(4):
        if n == 3: a(f's_cmp_ge_u32 s12, 2\ns_cbranch_scc1 {EXIT}_e2')
        a('s_waitcnt lgkmcnt(0)')
        mark()
        main = [mf(vr(AC+32*(n&1)+16*ab+4*tt,4), ar(AF(n,ab,kd),4), vr(128+4*(tt*8+kd),4), 0 if kd == 0 else None)
                for kd in range(8) for ab in range(2) for tt in range(4)]
        F = {}
        if n < 2:
            for k, x in enumerate(adma_list(n+2)): F.setdefault(k, []).append(x)
        if n >= 1:
            for k, x in enumerate(epi(n-1)): F.setdefault(8+k, []).append(x)
        for x in interleave(main, F): a(x)
        if n < 3:
            a(f's_waitcnt vmcnt({(20, 20, 4)[n]})')
            aread(n+1)
    a('s_nop 7')
    for x in epi(3): a(x)
    a(f's_branch {EXIT}_f\n{EXIT}_e2:\ns_nop 7')
    for x in epi(2): a(x)
    a(f'{EXIT}_f:')
    fills()
    a(f'{EXIT}_d:')
    dump()
    a(f's_branch {END}')
    n_st[0] = 1
    X = 24
    a(f'''{LN}:
    s_sub_u32 s13, s2, 224
    s_lshl_b32 s14, s13, 2
    s_add_u32 s14, s14, s12
    s_mov_b32 s24, s40
    s_mov_b32 s25, s41
    s_mov_b32 s26, {2048*896}
    s_mov_b32 s27, 0x20000
    v_and_b32 v3, 15, v7
    v_lshrrev_b32 v4, 4, v7
    v_mul_u32_u24 v5, 896, v3
    v_lshl_add_u32 v5, v4, 4, v5
    s_mul_i32 s16, s14, 14336''')
    for ks in range(14): a(f'buffer_load_dwordx4 {vr(X+4*ks,4)}, v5, s[24:27], s16 offen offset:{ks*64}')
    fills()
    LM = a.label('Lm0')
    a(f'''s_cmp_ge_u32 s13, 2
    s_cbranch_scc1 {LM}
    s_mov_b32 s28, s42
    s_mov_b32 s29, s43
    s_mov_b32 s30, 7168
    s_mov_b32 s31, 0x20000
    s_lshl_b32 s21, s13, 15
    s_add_u32 s21, s21, {MEMF}
    s_lshl_b32 s22, s13, 19
    s_add_u32 s22, s22, {MEMG}''')
    for rnd in range(2):
        a(f'''v_add_u32 v8, {256*rnd}, v0
        v_min_u32 v8, 447, v8
        v_and_b32 v9, 7, v8
        v_mul_u32_u24 v10, 896, v9
        v_lshrrev_b32 v11, 3, v8
        v_lshl_add_u32 v10, v11, 4, v10
        buffer_load_dwordx4 v[12:15], v10, s[28:31], 0 offen
        v_lshlrev_b32 v10, 4, v8
        v_lshrrev_b32 v11, 4, v8
        v_lshlrev_b32 v11, 8, v11
        v_lshl_add_u32 v11, v9, 4, v11
        v_bfe_u32 v9, v8, 3, 1
        v_lshl_add_u32 v11, v9, 3, v11
        s_waitcnt vmcnt(0)''')
        for r in range(4): a(f'v_min_u32 v{12+r}, 0xfffffffe, v{12+r}')
        a(f'''buffer_store_dwordx4 v[12:15], v10, {SRD}, s22 offen sc1
        buffer_store_dword v12, v11, {SRD}, s21 offen sc1
        buffer_store_dword v13, v11, {SRD}, s21 offen offset:128 sc1
        buffer_store_dword v14, v11, {SRD}, s21 offen offset:4 sc1
        buffer_store_dword v15, v11, {SRD}, s21 offen offset:132 sc1
        s_nop 1''')
    a(f'{LM}:\ns_waitcnt vmcnt(0)')
    hook()
    mark()
    U = 96
    for i in range(56):
        a(f'v_lshlrev_b32 v{U+2*i}, 16, v{X+i}\nv_and_b32 v{U+2*i+1}, 0xffff0000, v{X+i}')
    a('v_mov_b32 v8, 0\nv_mov_b32 v9, 0\nv_mov_b32 v10, 0\nv_mov_b32 v11, 0')
    for i in range(56):
        a(f'v_pk_add_f32 v[8:9], v[8:9], {vr(U+2*i,2)}\nv_pk_fma_f32 v[10:11], {vr(U+2*i,2)}, {vr(U+2*i,2)}, v[10:11]')
    a('v_add_f32 v8, v8, v9\nv_add_f32 v9, v10, v11')
    for sw in ('16', '32'):
        a(f'''v_mov_b32 v10, v8
        v_mov_b32 v11, v9
        s_nop 1
        v_permlane{sw}_swap_b32 v8, v10
        v_permlane{sw}_swap_b32 v9, v11
        v_add_f32 v8, v8, v10
        v_add_f32 v9, v9, v11''')
    a(f'''s_mov_b32 s22, 0x3b124925
    s_mov_b32 s23, 0x3727c5ac
    v_mul_f32 v8, s22, v8
    v_mul_f32 v9, s22, v9
    v_fma_f32 v9, -v8, v8, v9
    v_max_f32 v9, 0, v9
    v_add_f32 v9, s23, v9
    v_rsq_f32 v10, v9
    s_add_u32 s20, s16, {XN}
    v_mul_f32 v8, v8, v10
    v_mov_b32 v11, v10
    v_sub_f32 v8, 0, v8
    v_mov_b32 v9, v8''')
    for ks in range(14):
        for d in range(4):
            i = 4*ks+d
            a(f'v_pk_fma_f32 {vr(U+2*i,2)}, {vr(U+2*i,2)}, v[10:11], v[8:9]\nv_cvt_pk_bf16_f32 v{X+i}, v{U+2*i}, v{U+2*i+1}\nv_min_u32 v{X+i}, 0xfffffffe, v{X+i}')
        a(f'buffer_store_dwordx4 {vr(X+4*ks,4)}, v1, {SRD}, s20 offen offset:{(ks&3)*1024} {WST}')
        if (ks & 3) == 3: a('s_add_u32 s20, s20, 4096')
    dump()
    a(f'{END}:')
```

```python
from asmlib import *
from layout import *
from chain import SRD, S_W, S_SLOT, S_L, S_P, S_TO, S_U, wait_flags, need_head, all_done, Stamps, stamp_dump, DPP
import chain

S_K, S_S, S_LS = 42, 43, 44
OOB = 0x7f000000
D_V, D_PV, D_B2, D_B1, D_P = 17, 15, 15, 15, 15
N_PV, N_B2, N_B1, N_P = 3, 4, 2, 4
DEC = 147392
ONES = ST + 7168
ZEROS = CNT + 1152
S_NL, S_NS, S_NLS, S_HAVE, S_PEND, S_BUF = 45, 46, 47, 52, 53, 54
SRD2 = 's[56:59]'
S_FAST = chain.S_FAST

def w4(i, nA=64, vb=120):
    return ar(4*i, 4) if i < nA else vr(vb + 4*(i-nA), 4)

def load_frags(a, n, sreg, dst, voff=1, start=0):
    for i in range(n):
        a(f'buffer_load_dwordx4 {dst(i)}, v{voff}, {SRD}, s{sreg} offen offset:{(i & 3)*1024} sc1')
        if (i & 3) == 3: a(f's_add_u32 s{sreg}, s{sreg}, 4096')
        if start+i >= 47 and (start+i) % 8 == 7: a('s_waitcnt vmcnt(40)')

S_SCH = 70
S0_P, S0_PV, S0_B1, S0_B2, S1_V = 38, 37, 36, 56, 21
MERGE = {'PV': 12}
def sched_table(role):
    if role == 'VX': return [(S1_V//3, 0, 3, 0, 1, 2, 0), (S1_V//3, 0, 3, 1, 1, 2, 1), (S1_V//3, 0, 3, 2, 0, 1, S1_V)]
    if role == 'B2': return [(32, 0, 2, 0, 1, 4, S0_B2), (32, 0, 2, 1, 1, 4, S0_B2+1), (S0_B2//2, 1, 2, 0, 1, 4, S0_B2+2), (S0_B2//2, 1, 2, 1, 1, 4, S0_B2+3)]
    if role == 'P': return [(32, 0, 2, 0, 1, 4, 64), (32, 0, 2, 1, 1, 4, 64), (32, 1, 2, 0, 1, 4, 64), (32, 1, 2, 1, 1, 4, 64)]
    if role == 'B1': return [(64, 0, 1, 0, 1, 1, 64), (64, 1, 1, 0, 1, 1, 64)]
    S0, N = {'P': (S0_P, 4), 'PV': (S0_PV, 5), 'B1': (S0_B1, 3)}[role]
    return [(32, 0, 2, 0, 1, N, S0+1), (32, 0, 2, 1, 1, N, S0+2), (S0, 1, 1, 0, 1, N, S0)] + [(0, 1, 1, 0, 1, N, S0+u) for u in range(3, N)]
def task_list(role, u):
    if role in MERGE:
        D = MERGE[role]; out = []
        for k in range(u, 128, 3):
            if k < D: out.append(k)
            elif k >= 128-D: out.append(k)
            else:
                kk = k-D; l = kk & 1; out.append(64*l + (kk >> 1) + (1-l)*D)
        return out
    c1, l1, t1, b1, l2, t2, b2 = sched_table(role)[u]
    out = []; k = 0
    while True:
        l, s = (l1, b1+t1*k) if k < c1 else (l2, b2+t2*(k-c1))
        if s >= 64: return out
        out.append(64*l+s); k += 1
CUR_ROLE = [None]
def sched_setup(a, role):
    CUR_ROLE[0] = role
    if role in MERGE: return
    T = sched_table(role)
    J = a.label('Lsj')
    for u, row in enumerate(T):
        N = a.label('Lsn')
        if u < len(T)-1: a(f's_cmp_eq_u32 s{S_U}, {u}\ns_cbranch_scc0 {N}')
        for i, v in enumerate(row): a(f's_mov_b32 s{S_SCH+i}, {v}')
        if u < len(T)-1: a(f's_branch {J}\n{N}:')
    a(f'{J}:')

def task_calc(S_L, S_S, S_LS):
    return [f's_sub_u32 s20, s{S_K}, s{S_SCH}\ns_cselect_b32 s20, s{S_K}, s20\ns_cselect_b32 s{S_L}, s{S_SCH+1}, s{S_SCH+4}\n'
            f's_cselect_b32 s21, s{S_SCH+2}, s{S_SCH+5}\ns_cselect_b32 s{S_S}, s{S_SCH+3}, s{S_SCH+6}',
            's_mul_i32 s20, s20, s21', f's_add_u32 s{S_S}, s{S_S}, s20', f's_lshl_b32 s{S_LS}, s{S_L}, 6', f's_add_u32 s{S_LS}, s{S_LS}, s{S_S}']

def merged_task(a, D, DONE, S_L=S_L, S_S=S_S, S_LS=S_LS):
    if CUR_ROLE[0] in MERGE:
        D = MERGE[CUR_ROLE[0]]
        L2 = a.label('Lm2'); LD = a.label('Lmd')
        a(f'''s_mul_i32 s21, s{S_K}, 3
        s_add_u32 s21, s21, s{S_U}
        s_mov_b32 s{S_L}, 0
        s_mov_b32 s{S_S}, s21
        s_cmp_lt_u32 s21, {D}
        s_cbranch_scc1 {LD}
        s_cmp_ge_u32 s21, {128-D}
        s_cbranch_scc1 {L2}
        s_sub_u32 s20, s21, {D}
        s_and_b32 s{S_L}, s20, 1
        s_lshr_b32 s{S_S}, s20, 1
        s_xor_b32 s20, s{S_L}, 1
        s_mul_i32 s20, s20, {D}
        s_add_u32 s{S_S}, s{S_S}, s20
        s_branch {LD}
        {L2}:
        s_mov_b32 s{S_L}, 1
        s_sub_u32 s{S_S}, s21, 64
        {LD}:
        s_lshl_b32 s{S_LS}, s{S_L}, 6
        s_add_u32 s{S_LS}, s{S_LS}, s{S_S}
        s_cmp_ge_u32 s{S_S}, 64
        s_cbranch_scc1 {DONE}''')
        return
    a(f'''s_sub_u32 s20, s{S_K}, s{S_SCH}
    s_cselect_b32 s20, s{S_K}, s20
    s_cselect_b32 s{S_L}, s{S_SCH+1}, s{S_SCH+4}
    s_cselect_b32 s21, s{S_SCH+2}, s{S_SCH+5}
    s_cselect_b32 s{S_S}, s{S_SCH+3}, s{S_SCH+6}
    s_mul_i32 s20, s20, s21
    s_add_u32 s{S_S}, s{S_S}, s20
    s_lshl_b32 s{S_LS}, s{S_L}, 6
    s_add_u32 s{S_LS}, s{S_LS}, s{S_S}
    s_cmp_ge_u32 s{S_S}, 64
    s_cbranch_scc1 {DONE}''')

def flag_off(a, dst, kind, ls=S_LS):
    a(f's_mul_i32 s{dst}, s{ls}, {flag_seg(kind)}\ns_add_u32 s{dst}, s{dst}, {flag_base(kind)}')

def pend_flag(a, kind, sidx, ls=S_LS, add=0):
    a(f"""s_mul_i32 s{S_PEND}, s{ls}, {flag_seg(kind)}
    s_lshl_b32 s20, s{sidx}, 7
    s_add_u32 s{S_PEND}, s{S_PEND}, s20
    s_add_u32 s{S_PEND}, s{S_PEND}, {flag_base(kind) + add*flag_seg(kind)}""")

def flush(a, cnt=0):
    a(f"""s_waitcnt vmcnt({cnt})
    s_barrier
    buffer_store_dword v15, v14, {SRD}, s{S_PEND} offen sc1
    s_mov_b32 s{S_PEND}, {DUMMY}""")

def pipe_setup(a, vdw, vdr):
    a(f"""s_lshl_b32 s20, s{S_W}, 2
    s_add_u32 s20, s20, {DEC}
    v_mov_b32 v{vdw}, s20
    v_mov_b32 v{vdr}, {DEC}
    s_mov_b32 s56, s4
    s_mov_b32 s57, s5
    s_mov_b32 s58, 0
    s_mov_b32 s59, 0x20000
    s_mov_b32 s{S_HAVE}, 0
    s_mov_b32 s{S_PEND}, {DUMMY}
    s_mov_b32 s{S_BUF}, 0""")

def mid_sync(a, vfl, vdw, vdr, vt):
    a(f"""s_waitcnt vmcnt(0)
    v_cmp_eq_u32 vcc, 0, v{vfl}
    s_nop 1
    v_mov_b32 v{vt}, vcc_lo
    v_or_b32 v{vt}, vcc_hi, v{vt}
    ds_write_b32 v{vdw}, v{vt}
    s_waitcnt lgkmcnt(0)
    s_barrier
    ds_read_b32 v{vt}, v{vdr}
    buffer_store_dword v15, v14, {SRD}, s{S_PEND} offen sc1
    s_mov_b32 s{S_PEND}, {DUMMY}
    s_waitcnt lgkmcnt(0)
    v_readfirstlane_b32 s20, v{vt}
    s_cmp_eq_u32 s20, 0
    s_cselect_b32 s{S_HAVE}, 1, 0
    s_cselect_b32 s58, 0x10000000, 0""")

def dma_list(n, s_src, s_lds, srd=SRD, flags='sc1'):
    out = []
    for i in range(n):
        pre = []
        if (i & 3) == 0:
            if i: pre.append(f's_add_u32 s{s_src}, s{s_src}, 4096')
            pre.append(f's_mov_b32 m0, s{s_lds}')
            pre.append(f's_add_u32 s{s_lds}, s{s_lds}, 4096')
        out.append((pre, f'buffer_load_dwordx4 v1, {srd}, s{s_src} offen offset:{(i&3)*1024} {flags} lds'))
    return out

def set_flag(a, kind, sidx, vz=14, v1_=15, st=20):
    a(f'''s_mul_i32 s{st}, s{S_LS}, {flag_seg(kind)}
    s_lshl_b32 s{st+1}, s{sidx}, 7
    s_add_u32 s{st}, s{st}, s{st+1}
    s_add_u32 s{st}, s{st}, {flag_base(kind)}
    s_waitcnt vmcnt(0)
    s_barrier
    buffer_store_dword v{v1_}, v{vz}, {SRD}, s{st} offen sc1''')

def common_setup(a):
    a(f'''v_and_b32 v7, 63, v0
    v_lshlrev_b32 v1, 4, v7
    v_cmp_eq_u32 vcc, 0, v0
    v_mov_b32 v14, {OOB}
    v_mov_b32 v15, 1
    v_cndmask_b32 v14, v14, 0, vcc''')

def dma_frags(a, n, s_src, lds_base_s, flags='sc1'):
    for i in range(n):
        if (i & 3) == 0:
            a(f's_mov_b32 m0, s{lds_base_s}\ns_add_u32 s{lds_base_s}, s{lds_base_s}, 4096')
        a(f'buffer_load_dwordx4 v1, {SRD}, s{s_src} offen offset:{(i&3)*1024} {flags} lds')
        if (i & 3) == 3: a(f's_add_u32 s{s_src}, s{s_src}, 4096')

def gather_pairs(a, batches, T0=64, dst='a'):
    P = [[e for e in b if not isinstance(e, str)] for b in batches]
    def issue(b):
        k = 0
        for e in batches[b]:
            if isinstance(e, str): a(e); continue
            a(e[0].format(T0+32*(b % 2)+2*k)); a(e[1].format(T0+32*(b % 2)+2*k+1)); k += 1
    def fin(b):
        for k, (lo, hi, d) in enumerate(P[b]):
            t = T0+32*(b % 2)+2*k
            if dst == 'a': a(f'v_lshl_or_b32 v{t}, v{t+1}, 16, v{t}\nv_accvgpr_write_b32 a{d}, v{t}')
            else: a(f'v_lshl_or_b32 v{d}, v{t+1}, 16, v{t}')
    n = len(batches)
    for b in range(n+1):
        if b < n: issue(b)
        if b >= 1:
            a(f's_waitcnt vmcnt({2*len(P[b]) if b < n else 0})')
            fin(b-1)

def mf(D, A, B, C=None):
    return f'v_mfma_f32_16x16x32_bf16 {D}, {A}, {B}, {D if C is None else C}'


def hint(a, kind, sidx, add=0):
    a(f"""s_mul_i32 s21, s{S_LS}, {flag_seg(kind)}
    s_lshl_b32 s20, s{sidx}, 7
    s_add_u32 s21, s21, s20
    s_add_u32 s21, s21, {flag_base(kind) + add*flag_seg(kind)}
    s_barrier
    buffer_store_dword v15, v14, {SRD}, s21 offen sc1""")

def guard(a, r, n):
    for i in range(n): a(f'v_min_u32 v{r+i}, 0xfffffffe, v{r+i}')

def vote(a, vfl, vdw, vdr, vt, cnt):
    a(f"""s_waitcnt vmcnt({cnt})
    v_cmp_eq_u32 vcc, 0, v{vfl}
    s_nop 1
    v_mov_b32 v{vt}, vcc_lo
    v_or_b32 v{vt}, vcc_hi, v{vt}
    ds_write_b32 v{vdw}, v{vt}
    s_waitcnt lgkmcnt(0)
    s_barrier
    ds_read_b32 v{vt}, v{vdr}
    s_waitcnt lgkmcnt(0)
    v_readfirstlane_b32 s20, v{vt}
    s_cmp_eq_u32 s20, 0
    s_cselect_b32 s{S_HAVE}, 1, 0
    s_cselect_b32 s58, 0x10000000, 0""")

def chk4(m, r, first=False):
    if first: return [f'v_max3_u32 v{m}, v{r}, v{r+1}, v{r+2}', f'v_max_u32 v{m}, v{m}, v{r+3}']
    return [f'v_max3_u32 v{m}, v{m}, v{r}, v{r+1}', f'v_max3_u32 v{m}, v{m}, v{r+2}, v{r+3}']

def redo_if_bad(a, m, REDO, EXIT):
    a(f"""v_cmp_eq_u32 vcc, -1, v{m}
    s_cbranch_vccnz {REDO}""")

def vote_pre(a, vfl, vdw, vt):
    a(f"""v_cmp_eq_u32 vcc, 0, v{vfl}
    s_nop 1
    v_mov_b32 v{vt}, vcc_lo
    v_or_b32 v{vt}, vcc_hi, v{vt}
    ds_write_b32 v{vdw}, v{vt}
    s_waitcnt lgkmcnt(0)""")

def vote_post(a, vdr, vt, between=()):
    a(f'ds_read_b32 v{vt}, v{vdr}')
    for x in between: a(x)
    a(f"""s_waitcnt lgkmcnt({len([x for x in between if x.startswith('ds_')])})
    v_readfirstlane_b32 s20, v{vt}
    s_cmp_eq_u32 s20, 0
    s_cselect_b32 s{S_HAVE}, 1, 0
    s_cselect_b32 s58, 0x10000000, 0""")

def chk2(m, r0, r1, first=False):
    return f'v_max_u32 v{m}, v{r0}, v{r1}' if first else f'v_max3_u32 v{m}, v{m}, v{r0}, v{r1}'

def sched(a, main, lanes):
    F = {}
    for start, step, ins in lanes:
        for k, x in enumerate(ins): F.setdefault(start+k*step, []).append(x)
    for x in interleave(main, F): a(x)
def vx_role(a, EXIT, stamps=0):
    a('; ================= VX role =================')
    acc, xr, o, m = 16, 72, 96, 106
    common_setup(a)
    sched_setup(a, 'VX')
    need_head(a, 1, EXIT)
    a(f'''s_mul_i32 s20, s{S_P}, 28
    s_mul_i32 s21, s{S_W}, 7
    s_add_u32 s30, s20, s21
    s_mul_i32 s20, s30, 14336
    s_add_u32 s20, s20, {WV}''')
    load_frags(a, 98, 20, w4)
    a(f'''s_lshl_b32 s30, s30, 10
    s_mul_i32 s31, s{S_W}, 7168
    v_and_b32 v8, 7, v7
    v_min_u32 v8, 6, v8
    v_lshlrev_b32 v8, 7, v8
    s_mov_b32 s{S_K}, 0''')
    all_done(a, EXIT)
    pipe_setup(a, 10, 11)
    merged_task(a, D_V, EXIT)
    st = Stamps(a, stamps)
    LOOP = a.label('Lvx'); NW = a.label('Lnw'); HV = a.label('Lhv'); GO = a.label('Lgo'); REDO = a.label('Lredo'); RUN = a.label('Lrun')
    def src(ls, buf_expr):
        a(f'''s_mul_i32 s22, s{ls}, {XN_SEG}
        s_add_u32 s22, s22, s31
        s_add_u32 s22, s22, {XN}
        {buf_expr}
        s_add_u32 s23, s23, s31''')
    def lookahead():
        NJ = a.label('Lnj')
        a(f's_add_u32 s{S_K}, s{S_K}, 1\ns_mov_b32 s25, {ZEROS}')
        merged_task(a, D_V, NJ, S_NL, S_NS, S_NLS)
        flag_off(a, 25, F_XN, S_NLS)
        a(f'''s_cmp_eq_u32 s{S_NL}, 0
        s_cselect_b32 s25, {ONES}, s25
        {NJ}:
        buffer_load_dword v9, v8, {SRD}, s25 offen sc1''')
    lookahead()
    a(f'{LOOP}:')
    st.mark()
    a(f's_cmp_eq_u32 s{S_HAVE}, 1\ns_cbranch_scc1 {HV}')
    flush(a)
    a(f's_cmp_eq_u32 s{S_L}, 0\ns_cbranch_scc1 {NW}')
    flag_off(a, 22, F_XN)
    wait_flags(a, 8, 22, 12, EXIT)
    a(f'{NW}:')
    src(S_LS, f's_mov_b32 s23, s{S_BUF}')
    dma_frags(a, 7, 22, 23)
    a(f'buffer_load_dword v9, v8, {SRD}, s25 offen sc1')
    a(f's_waitcnt vmcnt(0)\ns_branch {GO}\n{HV}:\ns_waitcnt vmcnt(7)\n{GO}:')
    st.mark()
    a(f'''v_add_u32 v2, s{S_BUF}, v1
    s_mul_i32 s24, s{S_LS}, {VX_SEG}
    s_add_u32 s24, s24, s30
    s_add_u32 s24, s24, {VX}
    {RUN}:''')
    src(S_NLS, f's_xor_b32 s23, s{S_BUF}, 28672')
    vote_pre(a, 9, 10, 12)
    a('s_barrier')
    st.mark()
    def rd(ks): return [f'ds_read_b128 {vr(xr+8*(ks%3)+4*rt,4)}, v2 offset:{(rt*14+ks)*1024}' for rt in range(2)]
    vote_post(a, 11, 12, rd(0) + rd(1))
    main = []; lanes = []
    dl = dma_list(7, 22, 23, SRD2)
    for ks in range(14):
        b = 14*ks
        for t in range(7):
            for rt in range(2):
                main.append(mf(vr(acc+28*rt+4*t,4), vr(xr+8*(ks%3)+4*rt,4), w4(t*14+ks), 0 if ks == 0 else None))
        lanes.append((b-1, 1, [f's_waitcnt lgkmcnt({2 if ks < 13 else 0})']))
        if ks+2 < 14: lanes.append((b, 3, rd(ks+2)))
        lanes.append((b+1, 1, [chk2(m, xr+8*(ks%3), xr+8*(ks%3)+4, ks == 0)]))
        if ks < 7: lanes.append((b+6, 1, dl[ks][0] + [dl[ks][1]]))
    lanes.append((14*5+4, 1, ['s_waitcnt vmcnt(5)\ns_barrier', f'buffer_store_dword v15, v14, {SRD}, s{S_PEND} offen sc1', f's_mov_b32 s{S_PEND}, {DUMMY}']))
    sched(a, main, lanes)
    st.mark()
    redo_if_bad(a, m, REDO, EXIT)
    pend_flag(a, F_VX, S_P)
    st.flush(104, 20, S_LS); st.n = 0
    a(f'''s_mov_b32 s{S_L}, s{S_NL}
    s_mov_b32 s{S_S}, s{S_NS}
    s_mov_b32 s{S_LS}, s{S_NLS}
    s_xor_b32 s{S_BUF}, s{S_BUF}, 28672
    s_mov_b32 s35, s{S_NS}''')
    lookahead()
    for t in range(7):
        O = o+4*(t & 1)
        for rt in range(2):
            A = acc+28*rt+4*t
            a(f'v_cvt_pk_bf16_f32 v{O+2*rt}, v{A}, v{A+1}\nv_cvt_pk_bf16_f32 v{O+2*rt+1}, v{A+2}, v{A+3}')
        a(f'buffer_store_dwordx4 {vr(O,4)}, v1, {SRD}, s24 offen offset:{(t&3)*1024} sc1')
        if t == 3: a('s_add_u32 s24, s24, 4096')
    st.mark()
    a(f's_cmp_lt_u32 s35, 64\ns_cbranch_scc1 {LOOP}')
    flush(a)
    if stamps: stamp_dump(a, EXIT)
    else: a(f's_branch {EXIT}')
    a(f'{REDO}:\ns_sub_u32 s{S_TO}, s{S_TO}, 64\ns_cbranch_scc1 {EXIT}\ns_barrier')
    src(S_LS, f's_mov_b32 s23, s{S_BUF}')
    dma_frags(a, 7, 22, 23)
    a(f's_waitcnt vmcnt(0)\ns_branch {RUN}')
    st.n = 0

def p_role(a, EXIT, stamps=0):
    a('; ================= P role =================')
    PART = 65536
    SW = 4096
    acc, qr, xk, s4, m, ninf = 16, 44, 84, 112, 116, 117
    TB = lambda rt, u: 56 + 14*rt + 2*u - (0 if u == 0 else 0)
    TBP = lambda rt, p: 56 + 14*rt + 2 + 4*p
    S_XP, S_XS, S_MP, S_MS = 30, 31, 32, 33
    CM = 82
    WD = a.label('Lpwd')
    a(f's_mov_b32 s23, 0\ns_branch {WD}\n{chain.P_ENTRY}:\ns_mov_b32 s{S_U}, 3\ns_mov_b32 s23, 1\n{WD}:')
    common_setup(a)
    sched_setup(a, 'P')
    a(f"""s_cmp_eq_u32 s23, 1
    s_cbranch_scc1 {WD}_skip""")
    need_head(a, 0, EXIT)
    a(f"""s_mul_i32 s20, s{S_P}, 28
    s_mul_i32 s21, s{S_W}, 7
    s_add_u32 s20, s20, s21
    s_and_b32 s22, s{S_W}, 1
    s_add_u32 s21, s20, s22
    s_mul_i32 s21, s21, 14336
    s_add_u32 s21, s21, {WA}
    s_xor_b32 s22, s22, 1
    s_mul_i32 s22, s22, 6
    s_add_u32 s20, s20, s22
    s_mul_i32 s20, s20, 14336
    s_add_u32 s20, s20, {WA}""")
    load_frags(a, 14, 20, w4)
    load_frags(a, 84, 21, lambda i: w4(14+i), start=14)
    a(f"""{WD}_skip:
    s_mul_i32 s20, s{S_W}, 7
    s_add_u32 s20, s20, 1
    s_lshr_b32 s20, s20, 1
    s_lshr_b32 s21, s{S_W}, 1
    s_mul_i32 s21, s21, 7
    s_add_u32 s21, s21, 3
    s_lshl_b32 s{S_XP}, s20, 10
    s_lshl_b32 s{S_XS}, s21, 10
    s_lshl_b32 s{S_MP}, s20, 9
    s_lshl_b32 s{S_MS}, s21, 9
    s_and_b32 s22, s{S_W}, 1
    s_lshl_b32 s34, s22, 3
    v_lshrrev_b32 v10, 4, v7
    v_and_b32 v11, 15, v7
    v_and_b32 v3, 7, v7
    v_min_u32 v8, 6, v3
    v_lshlrev_b32 v8, 7, v8
    v_lshlrev_b32 v3, 4, v3
    v_lshl_add_u32 v3, v10, 7, v3
    v_add_u32 v4, s34, v3
    v_mul_u32_u24 v5, 272, v10
    v_lshl_add_u32 v5, v11, 4, v5
    s_lshl_b32 s20, s{S_W}, 12
    s_add_u32 s20, s20, {PART}
    v_add_u32 v5, s20, v5
    s_lshl_b32 s20, s{S_W}, 2
    v_add_u32 v12, s20, v10
    v_min_u32 v6, 11, v11
    v_mul_u32_u24 v6, 272, v6
    v_lshl_add_u32 v6, v12, 4, v6
    v_add_u32 v6, {PART}, v6
    s_lshl_b32 s20, s{S_P}, 11
    v_and_b32 v13, 3, v11
    v_lshlrev_b32 v13, 8, v13
    v_lshl_add_u32 v13, v12, 4, v13
    v_lshrrev_b32 v9, 2, v11
    v_lshl_add_u32 v9, v9, 3, v13
    v_add_u32 v9, s20, v9
    s_lshr_b32 s20, s{S_P}, 2
    s_lshl_b32 s20, s20, 11
    s_add_u32 s20, s20, 32768
    s_and_b32 s21, s{S_P}, 2
    s_lshl_b32 s21, s21, 8
    s_add_u32 s20, s20, s21
    s_and_b32 s21, s{S_P}, 1
    s_lshl_b32 s21, s21, 3
    s_add_u32 s20, s20, s21
    v_add_u32 v13, s20, v13
    v_cmp_gt_u32 vcc, 8, v11
    v_cmp_gt_u32 s[22:23], 10, v11
    v_lshlrev_b32 v10, 2, v11
    v_cndmask_b32 v9, v13, v9, vcc
    v_mov_b32 v13, {OOB}
    v_cndmask_b32 v9, v13, v9, s[22:23]
    v_mov_b32 v13, 64
    v_cndmask_b32 v13, v13, 0, s[22:23]
    v_cndmask_b32 v10, v13, v10, vcc
    v_mov_b32 v{ninf}, 0xff800000""")
    for rt in range(2):
        for r in range(4):
            c = CM + 2*(4*rt+r)
            a(f"""v_add_u32 v13, {r}, v10
            v_cndmask_b32 v13, v10, v13, vcc
            v_add_u32 v2, {16*rt}, v12
            v_cmp_le_u32 s[{c}:{c+1}], v13, v2""")
    pipe_setup(a, 10, 11)
    a(f's_mul_i32 s29, s{S_W}, 7168\ns_mov_b32 s{S_K}, 0')
    all_done(a, EXIT)
    merged_task(a, D_P, EXIT)
    XK = lambda u, kt: xk + (2*kt if u == 0 else 4 + 8*(u-1) + 4*kt)
    def src(ls, buf_expr):
        a(f"""s_mul_i32 s22, s{ls}, {XN_SEG}
        s_add_u32 s22, s22, s29
        s_add_u32 s22, s22, {XN}
        {buf_expr}
        s_add_u32 s23, s23, s29""")
    def lookahead():
        NJ = a.label('Lnj')
        a(f's_add_u32 s{S_K}, s{S_K}, 1\ns_mov_b32 s36, {ZEROS}')
        merged_task(a, D_P, NJ, S_NL, S_NS, S_NLS)
        flag_off(a, 36, F_XN, S_NLS)
        a(f"""s_cmp_eq_u32 s{S_NL}, 0
        s_cselect_b32 s36, {ONES}, s36
        {NJ}:
        buffer_load_dword v12, v8, {SRD}, s36 offen sc1""")
    st = Stamps(a, stamps)
    LOOP = a.label('Lp'); NW = a.label('Lnw'); HV = a.label('Lhv'); REDO = a.label('Lredo')
    lookahead()
    a(f'{LOOP}:')
    st.mark()
    a(f's_cmp_eq_u32 s{S_HAVE}, 1\ns_cbranch_scc1 {HV}')
    a(f's_cmp_eq_u32 s{S_L}, 0\ns_cbranch_scc1 {NW}')
    flag_off(a, 22, F_XN)
    wait_flags(a, 8, 22, 118, EXIT)
    a(f'{NW}:')
    src(S_LS, f's_mov_b32 s23, s{S_BUF}')
    dma_frags(a, 7, 22, 23)
    a(f'buffer_load_dword v12, v8, {SRD}, s36 offen sc1\ns_waitcnt vmcnt(0)\n{HV}:')
    a(f"""v_add_u32 v13, s{S_BUF}, v1
    s_lshl_b32 s27, s{S_LS}, 13
    s_add_u32 s27, s27, {MEMG}
    s_add_u32 s28, s27, s{S_MS}
    s_add_u32 s27, s27, s{S_MP}
    s_mul_i32 s24, s{S_LS}, {PF_SEG}
    s_add_u32 s24, s24, {PF}
    v_add_u32 v2, s{S_XP}, v13
    v_add_u32 v7, s{S_XS}, v13
    v_add_u32 v7, s34, v7""")
    src(S_NLS, f's_xor_b32 s23, s{S_BUF}, 32768')
    a('s_waitcnt vmcnt(3)')
    vote_pre(a, 12, 10, 118)
    a('s_barrier')
    st.mark()
    def rd(i): return f'ds_read_b128 {vr(qr+4*(i%3),4)}, v13 offset:{i*1024}'
    vote_post(a, 11, 118, [rd(0), rd(1)])
    kl = []
    for kt in range(2):
        kl.append(f'ds_read_b64 {vr(XK(0,kt),2)}, v7 offset:{kt*14336}')
        kl += [f'ds_read_b128 {vr(XK(u,kt),4)}, v2 offset:{kt*14336+(u-1)*1024}' for u in range(1, 4)]
    MK = lambda u: (118, qr+8, qr, qr+4)[u]
    mkl = [f'buffer_load_dwordx2 {vr(MK(0),2)}, v4, {SRD}, s28 offen sc1'] + [f'buffer_load_dwordx4 {vr(MK(u),4)}, v3, {SRD}, s27 offen offset:{(u-1)*512} sc1' for u in range(1, 4)]
    def cvts(rt): return [x for u in range(7) for x in (f'v_cvt_pk_bf16_f32 v{TB(rt,u)}, v{acc+4*u}, v{acc+4*u+1}', f'v_cvt_pk_bf16_f32 v{TB(rt,u)+1}, v{acc+4*u+2}, v{acc+4*u+3}')]
    def score(D, D2, K, rt):
        return [mf(vr(D,4), vr(K(1),4), vr(TBP(rt,0),4), 0), f'v_mfma_f32_16x16x16_bf16 {vr(D2,4)}, {vr(K(0),2)}, {vr(TB(rt,0),2)}, 0',
                mf(vr(D,4), vr(K(2),4), vr(TBP(rt,1),4)), mf(vr(D,4), vr(K(3),4), vr(TBP(rt,2),4))]
    def stream(rt, extra):
        main = []; lanes = list(extra)
        for ks in range(14):
            i = 14*rt+ks; b = 7*ks
            main += [mf(vr(acc+4*u,4), w4(u*14+ks), vr(qr+4*(i%3),4), 0 if ks == 0 else None) for u in range(7)]
            lanes.append((b-1, 1, [f's_waitcnt lgkmcnt({0 if i == 27 else 1})']))
            if i+2 < 28: lanes.append((b+5, 1, [rd(i+2)]))
            lanes.append((b+1, 1, [f'v_mov_b32 v{m}, v{qr}' if i == 0 else f'v_max_u32 v{m}, v{m}, v{qr+4*(i%3)}']))
        sched(a, main, lanes)
    dl = dma_list(7, 22, 23, SRD2)
    ex = [(7*k+2, 1, [kl[k]]) for k in range(8)]
    for k in range(4): ex.append((7*(3*k+1)+3, 7, ['\n'.join(dl[k][0]) or 's_nop 0', dl[k][1]]))
    stream(0, ex)
    st.mark(2)
    a('s_nop 0')
    for x in cvts(0): a(x)
    s0 = [f'v_mfma_f32_16x16x16_bf16 {vr(s4,4)}, {vr(XK(0,0),2)}, {vr(TB(0,0),2)}, 0'] + [mf(vr(s4,4), vr(XK(u,0),4), vr(TBP(0,u-1),4)) for u in range(1, 4)]
    ex = [(2, 1, [s0[0]]), (16, 1, s0[1:]), (30, 1, [f'ds_write_b128 v5, {vr(s4,4)}'])]
    for k in range(4, 7): ex.append((7*(3*(k-4)+1)+3, 7, ['\n'.join(dl[k][0]) or 's_nop 0', dl[k][1]]))
    MK = lambda u: (118, qr+4, qr+8, qr)[u]
    mkl = [f'buffer_load_dwordx2 {vr(MK(0),2)}, v4, {SRD}, s28 offen sc1'] + [f'buffer_load_dwordx4 {vr(MK(u),4)}, v3, {SRD}, s27 offen offset:{(u-1)*512} sc1' for u in range(1, 4)]
    ex += [(7*12+2, 1, [mkl[0]]), (7*12+4, 1, [mkl[1]]), (7*13+2, 1, [mkl[2]]), (7*13+6, 1, [mkl[3]])]
    stream(1, ex)
    redo_if_bad(a, m, REDO, EXIT)
    for x in cvts(1): a(x)
    st.mark()
    d0, d1, e0, e1, t = acc, acc+4, acc+8, acc+12, s4
    sa = score(d0, e0, lambda u: XK(u, 0), 1); sb = score(d1, e1, lambda u: XK(u, 1), 1)
    for x, y in zip(sa, sb): a(x); a(y)
    a(f"""s_mov_b32 s37, s{S_LS}
    s_mov_b32 s{S_L}, s{S_NL}
    s_mov_b32 s{S_LS}, s{S_NLS}
    s_xor_b32 s{S_BUF}, s{S_BUF}, 32768
    s_mov_b32 s35, s{S_NS}""")
    lookahead()
    for r in range(4): a(f'v_add_f32 v{d0+r}, v{d0+r}, v{e0+r}')
    a(f'ds_write_b128 v5, {vr(d0,4)} offset:16384')
    for r in range(4): a(f'v_add_f32 v{d1+r}, v{d1+r}, v{e1+r}')
    a(f'ds_write_b128 v5, {vr(d1,4)} offset:{16384+1088}')
    L = a.label('Lpmk'); LC = a.label('Lpc')
    def check():
        a(f"""v_max3_u32 v{t}, v118, v119, v{qr}
        v_max3_u32 v{t+1}, v{qr+1}, v{qr+2}, v{qr+3}
        v_max3_u32 v{t}, v{t}, v{qr+4}, v{qr+5}
        v_max3_u32 v{t+1}, v{t+1}, v{qr+6}, v{qr+7}
        v_max3_u32 v{t}, v{t}, v{qr+8}, v{qr+9}
        v_max3_u32 v{t+1}, v{t+1}, v{qr+10}, v{qr+11}
        v_max_u32 v{t}, v{t}, v{t+1}
        v_cmp_eq_u32 vcc, -1, v{t}""")
    st.mark(2)
    a('s_waitcnt vmcnt(1)')
    check()
    a(f's_cbranch_vccz {LC}\n{L}:')
    for x in mkl: a(x)
    a(f"""s_sub_u32 s{S_TO}, s{S_TO}, 1
    s_cbranch_scc1 {EXIT}
    s_waitcnt vmcnt(0)""")
    check()
    a(f's_cbranch_vccnz {L}\n{LC}:')
    st.mark()
    d0, d1, e0, e1 = acc+16, acc+20, acc+8, acc+12
    sa = score(d0, e0, MK, 0); sb = score(d1, e1, MK, 1)
    for x, y in zip(sa, sb): a(x); a(y)
    a(f"""s_mul_i32 s21, s37, {flag_seg(F_P)}
    s_lshl_b32 s20, s{S_P}, 7
    s_add_u32 s21, s21, s20
    s_add_u32 s21, s21, {flag_base(F_P)}
    s_nop 2""")
    for r in range(4): a(f'v_add_f32 v{d0+r}, v{d0+r}, v{e0+r}')
    a(f'ds_write_b128 v5, {vr(d0,4)} offset:2176')
    for r in range(4): a(f'v_add_f32 v{d1+r}, v{d1+r}, v{e1+r}')
    a(f'ds_write_b128 v5, {vr(d1,4)} offset:{16384+2176}')
    st.mark(2)
    a('s_waitcnt lgkmcnt(0)\ns_barrier')
    st.mark(2)
    RR = [56, 84]
    for rt in range(2):
        for w in range(4): a(f'ds_read_b128 {vr(RR[rt]+4*w,4)}, v6 offset:{rt*16384+w*SW}')
    for rt in range(2):
        R = RR[rt]
        a(f"""s_waitcnt lgkmcnt({4-4*rt})
        v_pk_add_f32 {vr(R,2)}, {vr(R,2)}, {vr(R+4,2)}
        v_pk_add_f32 {vr(R+2,2)}, {vr(R+2,2)}, {vr(R+6,2)}
        v_pk_add_f32 {vr(R+8,2)}, {vr(R+8,2)}, {vr(R+12,2)}
        v_pk_add_f32 {vr(R+10,2)}, {vr(R+10,2)}, {vr(R+14,2)}
        v_pk_add_f32 {vr(R,2)}, {vr(R,2)}, {vr(R+8,2)}
        v_pk_add_f32 {vr(R+2,2)}, {vr(R+2,2)}, {vr(R+10,2)}""")
        for r in range(4): a(f'v_cndmask_b32 v{R+r}, v{ninf}, v{R+r}, s[{CM+2*(4*rt+r)}:{CM+2*(4*rt+r)+1}]')
    st.mark(2)
    def both(f):
        for R in RR: a(f(R))
    both(lambda R: f'v_max3_f32 v{R+4}, v{R}, v{R+1}, v{R+2}')
    both(lambda R: f'v_max_f32 v{R+4}, v{R+4}, v{R+3}')
    for k in (8, 4, 2, 1):
        a('s_nop 0'); both(lambda R: f'v_max_f32_dpp v{R+4}, v{R+4}, v{R+4} row_ror:{k} {DPP}')
    for r in range(4): both(lambda R: f'v_sub_f32 v{R+r}, v{R+r}, v{R+4}')
    for r in range(4): both(lambda R: f'v_exp_f32 v{R+r}, v{R+r}')
    both(lambda R: f'v_add_f32 v{R+4}, v{R}, v{R+1}')
    both(lambda R: f'v_add_f32 v{R+5}, v{R+2}, v{R+3}')
    both(lambda R: f'v_add_f32 v{R+4}, v{R+4}, v{R+5}')
    for k in (8, 4, 2, 1):
        a('s_nop 0'); both(lambda R: f'v_add_f32_dpp v{R+4}, v{R+4}, v{R+4} row_ror:{k} {DPP}')
    both(lambda R: f'v_rcp_f32 v{R+4}, v{R+4}')
    a('s_nop 0')
    for rt, R in enumerate(RR):
        a(f"""v_pk_mul_f32 {vr(R,2)}, {vr(R+4,2)}, {vr(R,2)} op_sel_hi:[0,1]
        v_pk_mul_f32 {vr(R+2,2)}, {vr(R+4,2)}, {vr(R+2,2)} op_sel_hi:[0,1]
        v_cvt_pk_bf16_f32 v{s4+2*rt}, v{R}, v{R+1}
        v_cvt_pk_bf16_f32 v{s4+2*rt+1}, v{R+2}, v{R+3}
        v_min_u32 v{s4+2*rt}, 0xfffffffe, v{s4+2*rt}
        buffer_store_dwordx2 {vr(s4+2*rt,2)}, v9, {SRD}, s24 offen offset:{1024*rt} sc1""")
    a(f's_barrier\nbuffer_store_dword v15, v14, {SRD}, s21 offen sc1')
    st.mark()
    st.flush(118, 20, 37)
    a(f's_cmp_lt_u32 s35, 64\ns_cbranch_scc1 {LOOP}')
    if stamps: stamp_dump(a, EXIT)
    else: a(f's_branch {EXIT}')
    a(f'{REDO}:\ns_sub_u32 s{S_TO}, s{S_TO}, 64\ns_cbranch_scc1 {EXIT}\ns_waitcnt lgkmcnt(0)\ns_barrier\ns_branch {NW}')

def rscatter(a, q):
    a(f'''s_nop 1
    v_permlane32_swap_b32 v{q}, v{q+2}
    v_permlane32_swap_b32 v{q+1}, v{q+3}
    v_add_f32 v{q}, v{q}, v{q+2}
    v_add_f32 v{q+1}, v{q+1}, v{q+3}
    s_nop 1
    v_permlane16_swap_b32 v{q}, v{q+1}
    v_add_f32 v{q}, v{q}, v{q+1}''')

def stats_partial(a, A, q):
    for rt in range(2):
        x = A+4*rt
        a(f'''v_add_f32 v{q+2*rt}, v{x}, v{x+1}
        v_mul_f32 v{q+2*rt+1}, v{x}, v{x}
        v_add_f32 v{q+2*rt}, v{q+2*rt}, v{x+2}
        v_fmac_f32 v{q+2*rt+1}, v{x+1}, v{x+1}
        v_add_f32 v{q+2*rt}, v{q+2*rt}, v{x+3}
        v_fmac_f32 v{q+2*rt+1}, v{x+2}, v{x+2}
        v_fmac_f32 v{q+2*rt+1}, v{x+3}, v{x+3}''')
    rscatter(a, q)

def stats_loads(G, vg, s_st, srd=SRD):
    return [f'buffer_load_dwordx4 {vr(G+4*i,4)}, v{vg}, {srd}, s{s_st} offen offset:{256*i} sc1' for i in range(7)]

def stats_check(a, G, t):
    a(f'''v_max3_u32 v{t}, v{G}, v{G+4}, v{G+8}
    v_max3_u32 v{t+1}, v{G+12}, v{G+16}, v{G+20}
    v_max3_u32 v{t}, v{t}, v{t+1}, v{G+24}
    v_cmp_eq_u32 vcc, -1, v{t}''')

def stats_finish(a, G, keep=None, pairs=((0, 1), (2, 3), (4, 5), (0, 2), (4, 6), (0, 4))):
    for (i, j) in pairs:
        a(f'v_pk_add_f32 {vr(G+4*i,2)}, {vr(G+4*i,2)}, {vr(G+4*j,2)}\nv_pk_add_f32 {vr(G+4*i+2,2)}, {vr(G+4*i+2,2)}, {vr(G+4*j+2,2)}')
    rscatter(a, G)
    a(f'''v_mov_b32 v{G+1}, v{G}
    s_nop 1
    v_permlane16_swap_b32 v{G}, v{G+1}
    v_mov_b32 v{G+2}, v{G}
    v_mov_b32 v{G+3}, v{G+1}
    s_mov_b32 s20, 0x3b124925
    s_mov_b32 s21, 0x3727c5ac
    v_permlane32_swap_b32 v{G}, v{G+2}
    v_permlane32_swap_b32 v{G+1}, v{G+3}''')
    for rt in range(2):
        m = G+2*rt; v = m+1
        a(f'''v_mul_f32 v{m}, s20, v{m}
        v_mul_f32 v{v}, s20, v{v}
        v_fma_f32 v{v}, -v{m}, v{m}, v{v}
        v_max_f32 v{v}, 0, v{v}
        v_add_f32 v{v}, s21, v{v}''')
        if keep is not None: a(f'v_sqrt_f32 v{keep+rt}, v{v}')
        a(f'v_rsq_f32 v{v}, v{v}')
    a('s_nop 0')

def sent4(a, r):
    for i in range(4): a(f'v_mov_b32 v{r+i}, -1')

def b1_role(a, EXIT, stamps=0):
    a('; ================= B1 role =================')
    W = lambda tt, ks: ar(4*(tt*14+ks), 4)
    ACC = lambda rt, tt: 48+16*rt+4*tt
    yr, o, cs, GS, MS, m, PK, SN = 16, 40, 80, 96, 152, 158, 160, 176
    common_setup(a)
    sched_setup(a, 'B1')
    a(f'''s_load_dwordx4 s[24:27], s[0:1], 64
    s_lshl_b32 s20, s{S_P}, 2
    s_add_u32 s30, s20, s{S_W}
    v_lshrrev_b32 v2, 2, v7
    v_mul_u32_u24 v2, 3584, v2
    v_and_b32 v3, 3, v7
    v_lshl_add_u32 v2, v3, 4, v2
    v_lshrrev_b32 v4, 4, v7
    v_lshlrev_b32 v5, 9, v4
    v_bfe_u32 v6, v7, 2, 2
    v_lshl_add_u32 v5, v6, 6, v5
    v_lshl_add_u32 v5, v3, 4, v5
    s_mul_i32 s31, s{S_W}, 28672
    v_add_u32 v5, s31, v5
    v_and_b32 v6, 15, v7
    v_lshlrev_b32 v13, 4, v6
    v_lshl_add_u32 v13, v4, 9, v13
    v_add_u32 v6, 256, v13
    v_cmp_gt_u32 vcc, 3, v4
    v_mov_b32 v4, {OOB}
    v_mov_b32 v3, v6
    v_cndmask_b32 v6, v4, v3, vcc
    s_waitcnt lgkmcnt(0)
    s_mov_b32 s36, s24
    s_mov_b32 s37, s25
    s_mov_b32 s38, {448*3584}
    s_mov_b32 s39, 0x20000
    s_mov_b32 s48, s26
    s_mov_b32 s49, s27
    s_mov_b32 s50, {448*3584}
    s_mov_b32 s51, 0x20000
    s_lshl_b32 s22, s30, 6''')
    for rr in range(2):
        a(f's_mov_b32 s23, s31')
        for k in range(7):
            for mat in range(2):
                for hf in range(2):
                    a(f'''s_mov_b32 m0, s23
                    s_add_u32 s21, s22, {(32*(7*rr+k)+16*hf)*3584}
                    buffer_load_dwordx4 v2, s[{36+12*mat}:{39+12*mat}], s21 offen lds
                    s_add_u32 s23, s23, 1024''')
        for k in range(7):
            a(f's_waitcnt vmcnt({4*(6-k)})')
            for mat in range(2):
                for t2 in range(2):
                    for jh in range(2):
                        b = 4*((2*mat+t2)*14+7*rr+k)+2*jh
                        a(f'ds_read_b64_tr_b16 {ar(b,2)}, v5 offset:{k*4096+mat*2048+jh*256+t2*8}')
            a('s_waitcnt lgkmcnt(0)')
    a('s_barrier')
    for r in range(4): a(f'v_mov_b32 v{yr+r}, 0x3f803f80')
    sent4(a, SN)
    for ks in range(14):
        for tt in range(4): a(mf(vr(cs+4*tt,4), W(tt,ks), vr(yr,4), 0 if ks == 0 else None))
    LF = a.label('Lpf'); LFD = a.label('Lpfd'); DONE = a.label('Ldone')
    a(f'''s_lshl_b32 s30, s30, 10
    s_mul_i32 s31, s{S_W}, 7168
    s_mov_b32 s33, 0xbfb8aa3b
    s_mov_b32 s34, 0x3b124925
    s_mov_b32 s35, 0x3727c5ac
    s_mov_b32 s{S_K}, 0
    {LF}:''')
    merged_task(a, D_B1, LFD)
    a(f'''s_add_u32 s{S_K}, s{S_K}, 1
    s_mul_i32 s24, s{S_LS}, {HF_SEG}
    s_add_u32 s24, s24, s30
    s_add_u32 s24, s24, {HF}
    s_add_u32 s25, s24, {56*1024}
    buffer_store_dwordx4 {vr(SN,4)}, v1, {SRD}, s24 offen sc1
    buffer_store_dwordx4 {vr(SN,4)}, v1, {SRD}, s25 offen sc1
    s_cmp_lt_u32 s{S_K}, 4
    s_cbranch_scc1 {LF}
    {LFD}:
    s_mov_b32 s{S_K}, 0''')
    st = Stamps(a, stamps)
    G = GS; G2 = GS+8
    LOOP = a.label('Lb1'); LD = a.label('Lld'); SP = a.label('Lsp'); SOK = a.label('Lsok'); REDO = a.label('Lredo'); HV = a.label('Lhv'); GO = a.label('Lgo')
    pipe_setup(a, 10, 11)
    def nxt_calc():
        return task_calc(S_NL, S_NS, S_NLS) + [f's_lshl_b32 s27, s{S_NL}, 6', f's_add_u32 s27, s27, s{S_NLS}', 's_lshl_b32 s27, s27, 13', f's_add_u32 s27, s27, {ST}',
                f's_mul_i32 s28, s{S_NLS}, {XN_SEG}', 's_add_u32 s28, s28, s31', f's_add_u32 s28, s28, {YN}', f's_xor_b32 s29, s{S_BUF}, 32768', 's_add_u32 s29, s29, s31',
                f's_cmp_lt_u32 s{S_NS}, 64\ns_cselect_b32 s58, 0x10000000, 0']
    def sl(G, s, srd): return [f'buffer_load_dwordx4 {vr(G,4)}, v13, {srd}, s{s} offen sc1', f'buffer_load_dwordx4 {vr(G+4,4)}, v6, {srd}, s{s} offen sc1']
    all_done(a, EXIT)
    a(f's_mov_b32 s{S_BUF}, 32768')
    for x in nxt_calc(): a(x)
    a(f'{LOOP}:')
    st.mark()
    a(f"""s_mov_b32 s{S_LS}, s{S_NLS}
    s_mov_b32 s26, s27
    s_xor_b32 s{S_BUF}, s{S_BUF}, 32768
    s_mul_i32 s24, s{S_LS}, {HF_SEG}
    s_add_u32 s24, s24, s30
    s_add_u32 s24, s24, {HF}
    s_add_u32 s25, s24, {56*1024}
    v_add_u32 v5, s{S_BUF}, v1
    s_add_u32 s{S_K}, s{S_K}, 1
    s_cmp_eq_u32 s{S_HAVE}, 1
    s_cbranch_scc1 {HV}
    {LD}:
    s_mul_i32 s22, s{S_LS}, {XN_SEG}
    s_add_u32 s22, s22, s31
    s_add_u32 s22, s22, {YN}
    s_add_u32 s23, s31, s{S_BUF}
    {SP}:""")
    for x in sl(G2, 26, SRD): a(x)
    a(f"""s_sub_u32 s{S_TO}, s{S_TO}, 1
    s_cbranch_scc1 {EXIT}
    s_waitcnt vmcnt(0)
    v_max_u32 v2, v{G2}, v{G2+4}
    v_cmp_eq_u32 vcc, -1, v2
    s_cbranch_vccz {SOK}
    s_sleep 1
    s_branch {SP}
    {SOK}:""")
    dma_frags(a, 7, 22, 23)
    a(f's_mov_b32 s{S_HAVE}, 0\n{HV}:')
    a(f'v_pk_add_f32 {vr(G,2)}, {vr(G2,2)}, {vr(G2+4,2)}\nv_pk_add_f32 {vr(G+2,2)}, {vr(G2+2,2)}, {vr(G2+6,2)}')
    sf = Asm(); stats_finish(sf, G, MS+4, ())
    for x in sf.lines:
        if 's_mov' not in x: a(x.replace('s20', 's34').replace('s21', 's35'))
    for rt in range(2):
        P = PK+6*rt
        a(f"""v_sub_f32 v{P}, 0, v{G+2*rt}
        v_mul_f32 v{P+2}, s33, v{G+2*rt+1}
        v_mov_b32 v{P+4}, v{MS+4+rt}""")
        for k in range(8): a(f'v_pk_mul_f32 {vr(ACC(rt,0)+2*k,2)}, {vr(P,2)}, {vr(cs+2*k,2)} op_sel_hi:[0,1]')
    a(f"""s_cmp_eq_u32 s{S_HAVE}, 1
    s_cbranch_scc1 {GO}
    s_waitcnt vmcnt(0)
    {GO}:
    s_waitcnt vmcnt(3)
    s_barrier""")
    st.mark()
    def rd(i): return f'ds_read_b128 {vr(yr+4*(i%6),4)}, v5 offset:{i*1024}'
    for i in range(4): a(rd(i))
    def epi(rt, pk):
        P = PK+6*rt; A = ACC(rt, 0); out = []
        if pk: out += [f'v_pk_mul_f32 {vr(A+2*k,2)}, {vr(P+2,2)}, {vr(A+2*k,2)} op_sel_hi:[0,1]' for k in range(4)]
        else: out += [f'v_mul_f32 v{A+k}, v{P+2}, v{A+k}' for k in range(8)]
        out += [f'v_exp_f32 v{A+k}, v{A+k}' for k in range(8)]
        if pk: out += [f'v_pk_fma_f32 {vr(A+2*k,2)}, {vr(A+2*k,2)}, {vr(P+4,2)}, {vr(P+4,2)} op_sel_hi:[1,0,0]' for k in range(4)]
        else: out += [f'v_fma_f32 v{A+k}, v{A+k}, v{P+4}, v{P+4}' for k in range(8)]
        out += [f'v_rcp_f32 v{A+k}, v{A+k}' for k in range(8)]
        if pk: out += [f'v_pk_mul_f32 {vr(A+2*k,2)}, {vr(A+2*k,2)}, {vr(A+8+2*k,2)}' for k in range(4)]
        else: out += [f'v_mul_f32 v{A+k}, v{A+k}, v{A+8+k}' for k in range(8)]
        out += [f'v_cvt_pk_bf16_f32 v{o+4*rt+d}, v{A+2*d}, v{A+2*d+1}' for d in range(4)]
        out.append(f'v_min_u32 v{o+4*rt}, 0xfffffffe, v{o+4*rt}')
        return out
    main = []; lanes = []
    for i in range(28):
        rt, ks = divmod(i, 14); b = 4*i
        main += [mf(vr(ACC(rt,tt),4), W(tt,ks), vr(yr+4*(i%6),4)) for tt in range(4)]
        if i % 2 == 0: lanes.append((b-1, 1, [f's_waitcnt lgkmcnt({max(0, min(2, 26-i))})']))
        if i+4 < 28: lanes.append((b, 1, [rd(i+4)]))
        if i & 1: lanes.append((b-1, 1, [chk2(m, yr+4*((i-1)%6), yr+4*(i%6), i == 1)]))
    free = [p for p in range(1, 62) if p % 4 in (1, 2)]
    nc = nxt_calc(); nc = nc[:9] + nc[-1:] + sl(G2, 27, SRD2) + nc[9:-1]
    nc += [f's_and_b32 s36, s{S_LS}, 63', f's_add_u32 s37, s24, {4*HF_SEG}', f's_cmp_lt_u32 s36, 60\ns_cselect_b32 s37, s37, {DUMMY}',
           f'buffer_store_dwordx4 {vr(SN,4)}, v1, {SRD}, s37 offen sc1', f's_add_u32 s37, s37, {56*1024}', f'buffer_store_dwordx4 {vr(SN,4)}, v1, {SRD}, s37 offen sc1']
    assert len(nc) <= len(free)-5
    for p, x in zip(free, nc): lanes.append((p, 1, [x]))
    lanes.append((free[-5], 1, [f's_waitcnt vmcnt(2)\nv_max_u32 v2, v{G2}, v{G2+4}']))
    lanes.append((free[-4], 1, ['v_cmp_eq_u32 vcc, -1, v2']))
    lanes.append((free[-2], 1, [f's_cmp_eq_u64 vcc, 0\ns_cselect_b32 s58, s58, 0\ns_cmp_lg_u32 s58, 0\ns_cselect_b32 s{S_HAVE}, 1, 0']))
    dl = dma_list(7, 28, 29, SRD2)
    for k in range(7): lanes.append((63+7*k, 1, ['\n'.join(dl[k][0] + [dl[k][1]])]))
    e0 = epi(0, False)
    pos = [p for p in range(62, 112) if (p % 4 != 0 or p >= 96) and (p-63) % 7 != 0]
    for p, x in zip(pos, e0): lanes.append((p, 1, [x]))
    sched(a, main, lanes)
    for x in e0[len(pos):]: a(x)
    st.mark()
    redo_if_bad(a, m, REDO, EXIT)
    a(f'buffer_store_dwordx4 {vr(o,4)}, v1, {SRD}, s24 offen sc1\ns_nop 3')
    for x in epi(1, True): a(x)
    a(f'buffer_store_dwordx4 {vr(o+4,4)}, v1, {SRD}, s25 offen sc1')
    hint(a, F_H, S_P)
    st.mark()
    st.flush(2, 20, S_LS)
    a(f's_cmp_lt_u32 s{S_NS}, 64\ns_cbranch_scc1 {LOOP}\n{DONE}:')
    if stamps: stamp_dump(a, EXIT)
    else: a(f's_branch {EXIT}')
    a(f'{REDO}:\ns_sub_u32 s{S_TO}, s{S_TO}, 64\ns_cbranch_scc1 {EXIT}\ns_waitcnt vmcnt(0)\ns_barrier\ns_branch {LD}')

S_T = 30
def team_setup(a):
    a(f'''s_lshl_b32 s{S_T}, s{S_P}, 2
    s_add_u32 s{S_T}, s{S_T}, s{S_W}
    v_and_b32 v2, 15, v7
    v_lshrrev_b32 v3, 4, v7
    v_mul_u32_u24 v11, 896, v2
    s_lshl_b32 s20, s{S_T}, 5
    v_add_u32 v11, s20, v11
    v_lshl_add_u32 v10, v3, 3, v11
    v_lshlrev_b32 v12, 4, v2
    v_mul_u32_u24 v13, {7*256}, v3
    v_add_u32 v13, v13, v12
    v_lshl_add_u32 v12, v3, 2, v12
    s_lshl_b32 s20, s{S_T}, 8
    v_add_u32 v12, s20, v12
    v_lshrrev_b32 v4, 1, v3
    v_lshl_add_u32 v11, v4, 4, v11
    v_lshlrev_b32 v6, 8, v4
    v_lshl_add_u32 v6, v2, 4, v6
    s_lshl_b32 s20, s{S_T}, 9
    v_add_u32 v6, s20, v6
    v_and_b32 v4, 1, v3
    v_mul_u32_u24 v9, 14336, v4
    v_add_u32 v5, v6, v9
    v_add_u32 v11, v11, v9
    v_lshl_add_u32 v6, v4, 3, v6''')

def cu_stats_setup(a, lds):
    a(f"""v_lshlrev_b32 v169, 2, v7
    v_add_u32 v169, {lds}, v169
    s_lshl_b32 s20, s{S_W}, 8
    v_add_u32 v168, s20, v169
    v_lshlrev_b32 v13, 4, v2
    v_lshl_add_u32 v12, v3, 2, v13
    s_lshl_b32 s20, s{S_P}, 8
    v_add_u32 v12, s20, v12
    v_lshl_add_u32 v13, v3, 9, v13
    v_add_u32 v170, 256, v13
    v_mov_b32 v171, {OOB}
    v_cmp_gt_u32 vcc, 64, v0
    v_cmp_gt_u32 s[20:21], 3, v3
    s_nop 1
    v_cndmask_b32 v12, v171, v12, vcc
    v_cndmask_b32 v170, v171, v170, s[20:21]""")

def cu_stats(a, q):
    a(f"""ds_write_b32 v168, v{q}
    s_waitcnt lgkmcnt(0)
    s_barrier
    ds_read2st64_b32 {vr(q,2)}, v169 offset0:0 offset1:1
    ds_read2st64_b32 {vr(q+2,2)}, v169 offset0:2 offset1:3
    s_waitcnt lgkmcnt(0)
    v_add_f32 v{q}, v{q}, v{q+1}
    v_add_f32 v{q+2}, v{q+2}, v{q+3}
    v_add_f32 v{q}, v{q}, v{q+2}
    v_min_u32 v{q}, 0xfffffffe, v{q}""")

def add_residual(a, A, RS, XP):
    for rt in range(2):
        for d in range(2):
            x = A+4*rt+2*d; r = RS+2*rt+d
            a(f'''v_lshlrev_b32 v2, 16, v{r}
            v_and_b32 v3, 0xffff0000, v{r}
            v_add_f32 v{x}, v{x}, v2
            v_add_f32 v{x+1}, v{x+1}, v3
            v_cvt_pk_bf16_f32 v{XP+2*rt+d}, v{x}, v{x+1}
            v_lshlrev_b32 v{x}, 16, v{XP+2*rt+d}
            v_and_b32 v{x+1}, 0xffff0000, v{XP+2*rt+d}''')

def pair_swap(a, XP):
    a(f's_nop 1\nv_permlane16_swap_b32 v{XP}, v{XP+2}\nv_permlane16_swap_b32 v{XP+1}, v{XP+3}')

def res_valid(a, RS, s0, EXIT):
    L = a.label('Lrv'); OK = a.label('Lrok')
    a(f'''{L}:
    v_max3_u32 v2, v{RS}, v{RS+1}, v{RS+2}
    v_max_u32 v2, v2, v{RS+3}
    v_cmp_eq_u32 vcc, -1, v2
    s_cbranch_vccz {OK}
    buffer_load_dwordx2 {vr(RS,2)}, v6, {SRD}, s{s0} offen sc1
    buffer_load_dwordx2 {vr(RS+2,2)}, v6, {SRD}, s{s0+1} offen sc1
    s_sub_u32 s{S_TO}, s{S_TO}, 1
    s_cbranch_scc1 {EXIT}
    s_waitcnt vmcnt(0)
    s_branch {L}
    {OK}:''')

def b2_role(a, EXIT, stamps=0, mode_fn=None):
    a('; ================= B2 role =================')
    DONE = a.label('Ldone')
    W = lambda ks: ar(4*ks, 4)
    hr, A, RSv, XP, AC, G, YP, m = 40, 16, 24, 28, 64, 80, 32, 36
    common_setup(a)
    sched_setup(a, 'B2')
    team_setup(a)
    cu_stats_setup(a, 122880)
    a(f'''s_load_dwordx2 s[36:37], s[0:1], 80
    s_load_dwordx2 s[48:49], s[0:1], 88
    v_lshrrev_b32 v4, 1, v7
    v_mul_u32_u24 v4, 896, v4
    v_and_b32 v8, 1, v7
    v_lshl_add_u32 v4, v8, 4, v4
    v_min_u32 v8, 13, v2
    v_lshlrev_b32 v8, 7, v8
    s_mul_i32 s31, s{S_W}, 28672
    v_lshlrev_b32 v9, 8, v3
    v_and_b32 v2, 15, v7
    v_lshl_add_u32 v9, v2, 3, v9
    v_add_u32 v9, s31, v9
    s_mov_b32 s38, {1792*896}
    s_mov_b32 s39, 0x20000
    s_mov_b32 s50, {2048*896}
    s_mov_b32 s51, 0x20000
    s_lshl_b32 s22, s{S_T}, 5
    s_waitcnt lgkmcnt(0)''')
    for rr in range(2):
        a('s_mov_b32 s23, s31')
        for k in range(28):
            a(f'''s_mov_b32 m0, s23
            s_add_u32 s23, s23, 1024
            buffer_load_dwordx4 v4, s[36:39], s22 offen lds
            s_add_u32 s22, s22, {32*896}''')
        for k in range(28):
            if k % 4 == 0: a(f's_waitcnt vmcnt({24-k}) lgkmcnt(0)')
            for jh in range(2): a(f'ds_read_b64_tr_b16 {ar(4*(28*rr+k)+2*jh,2)}, v9 offset:{k*1024+jh*128}')
        a('s_waitcnt lgkmcnt(0)')
    all_done(a, EXIT)
    mode_fn(16, 17, 32)
    sent4(a, XP)
    LF = a.label('Lpf'); LFD = a.label('Lpfd')
    a(f's_mov_b32 s{S_K}, 0\n{LF}:')
    merged_task(a, D_B2, LFD)
    a(f'''s_add_u32 s{S_K}, s{S_K}, 1
    s_cmp_eq_u32 s{S_L}, 0
    s_cbranch_scc0 {LF}
    s_mul_i32 s23, s{S_S}, 28672
    s_add_u32 s25, s23, {XN + 64*XN_SEG}
    s_add_u32 s26, s23, {X2}
    buffer_store_dwordx4 {vr(XP,4)}, v5, {SRD}, s25 offen sc1
    buffer_store_dwordx4 {vr(XP,4)}, v5, {SRD}, s26 offen sc1
    s_waitcnt vmcnt(32)
    s_branch {LF}
    {LFD}:
    v_add_u32 v9, 57344, v1
    s_and_b32 s31, s{S_W}, 1
    s_mul_i32 s31, s31, 4096
    s_lshr_b32 s25, s{S_W}, 1
    s_mul_i32 s25, s25, {56*1024}
    s_add_u32 s31, s31, s25
    s_mov_b32 s{S_K}, 0''')
    st = Stamps(a, stamps)
    LOOP = a.label('Lb2'); LD = a.label('Lld'); REDO = a.label('Lredo')
    def nxt():
        NE = a.label('Lne')
        merged_task(a, D_B2, NE, S_NL, S_NS, S_NLS)
        flag_off(a, 29, F_H, S_NLS)
        a(f'buffer_load_dword v4, v8, {SRD}, s29 offen sc1\n{NE}:')
    nxt()
    a(f'''s_waitcnt vmcnt(0)
    {LOOP}:
    s_mov_b32 s{S_L}, s{S_NL}
    s_mov_b32 s{S_S}, s{S_NS}
    s_mov_b32 s{S_LS}, s{S_NLS}
    v_cmp_eq_u32 vcc, 0, v4
    s_cbranch_vccz {LD}''')
    wait_flags(a, 8, 29, 4, EXIT)
    a(f'{LD}:\ns_barrier')
    st.mark()
    a(f'''s_mul_i32 s22, s{S_LS}, {HF_SEG}
    s_add_u32 s22, s22, {HF}
    s_add_u32 s22, s22, s31
    s_mov_b32 s23, s31''')
    def chunk(c):
        out = [f's_mov_b32 m0, s23', f's_add_u32 s23, s23, 8192']
        out += [f'buffer_load_dwordx4 v1, {SRD}, s22 offen offset:{i*1024} sc1 lds' for i in range(4)]
        out += [f's_add_u32 s22, s22, 8192']
        return out
    for c in range(3):
        for x in chunk(c): a(x)
    a(f'''s_mul_i32 s26, s{S_LS}, 28672
    s_add_u32 s26, s26, {YN}
    s_add_u32 s27, s26, 14336
    s_lshl_b32 s24, s{S_S}, 13
    s_add_u32 s24, s24, {ST + 64*ST_SEG}''')
    extra = [f'buffer_load_dwordx2 {vr(RSv,2)}, v6, {SRD}, s26 offen sc1', f'buffer_load_dwordx2 {vr(RSv+2,2)}, v6, {SRD}, s27 offen sc1',
             f'buffer_load_dwordx4 {vr(G,4)}, v13, {SRD}, s24 offen sc1', f'buffer_load_dwordx4 {vr(G+4,4)}, v170, {SRD}, s24 offen sc1']
    def rd(ks): return [f'ds_read_b128 {vr(hr+8*(ks%3),4)}, v1 offset:{ks*1024}', f'ds_read_b128 {vr(hr+8*(ks%3)+4,4)}, v9 offset:{ks*1024}']
    for c in range(7):
        younger = 4*(min(c+2, 6)-c) + (4 if c >= 5 else 0)
        a(f's_waitcnt vmcnt({younger})\ns_barrier')
        if c == 0: st.mark()
        k0 = 8*c
        ex = chunk(c+3) if c+3 < 7 else (extra if c == 4 else [])
        for ins in rd(k0) + rd(k0+1): a(ins)
        for ks in range(k0, k0+8):
            a(f's_waitcnt lgkmcnt({2 if ks < k0+7 else 0})')
            for rt in range(2):
                a(mf(vr(AC+8*rt+4*(ks&1),4), W(ks), vr(hr+8*(ks%3)+4*rt,4), 0 if ks < 2 else None))
                if ks+2 < k0+8: a(rd(ks+2)[rt])
                if rt == 1: a(chk2(m, hr+8*(ks%3), hr+8*(ks%3)+4, ks == 0))
            if ex: a(ex.pop(0))
    st.mark()
    redo_if_bad(a, m, REDO, EXIT)
    a(f's_add_u32 s{S_K}, s{S_K}, 1\ns_waitcnt vmcnt(0)')
    res_valid(a, RSv, 26, EXIT)
    for rt in range(2):
        for r in range(4): a(f'v_add_f32 v{A+4*rt+r}, v{AC+8*rt+r}, v{AC+8*rt+4+r}')
    add_residual(a, A, RSv, XP)
    L1 = a.label('Lb2l1'); LE = a.label('Lb2e'); LS = a.label('Lsl'); L = a.label('Lst')
    a(f'''s_mul_i32 s23, s{S_S}, 28672
    s_cmp_eq_u32 s{S_L}, 0
    s_cbranch_scc0 {L1}''')
    q = G+28
    stats_partial(a, A, q)
    cu_stats(a, q)
    a(f'''s_cmp_eq_u32 s{S_FAST}, 1
    s_cbranch_scc0 {LS}
    buffer_store_dword v{q}, v12, {SRD}, s24 offen
    s_branch {L}
    {LS}:
    buffer_store_dword v{q}, v12, {SRD}, s24 offen sc1
    {L}:
    buffer_load_dwordx4 {vr(G,4)}, v13, {SRD}, s24 offen sc1
    buffer_load_dwordx4 {vr(G+4,4)}, v170, {SRD}, s24 offen sc1
    s_sub_u32 s{S_TO}, s{S_TO}, 1
    s_cbranch_scc1 {EXIT}
    s_waitcnt vmcnt(0)
    v_max_u32 v2, v{G}, v{G+4}
    v_cmp_eq_u32 vcc, -1, v2
    s_cbranch_vccnz {L}''')
    nxt()
    stats_finish(a, G, None, ((0, 1),))
    for rt in range(2):
        x = A+4*rt
        for r in range(4): a(f'v_sub_f32 v{x+r}, v{x+r}, v{G+2*rt}')
        for r in range(4): a(f'v_mul_f32 v{x+r}, v{x+r}, v{G+2*rt+1}')
        a(f'v_cvt_pk_bf16_f32 v{YP+2*rt}, v{x}, v{x+1}\nv_cvt_pk_bf16_f32 v{YP+2*rt+1}, v{x+2}, v{x+3}')
    guard(a, XP, 4); guard(a, YP, 4)
    pair_swap(a, YP)
    a(f's_add_u32 s25, s23, {XN + 64*XN_SEG}\nbuffer_store_dwordx4 {vr(YP,4)}, v5, {SRD}, s25 offen sc1')
    hint(a, F_XN, S_P, add=64)
    pair_swap(a, XP)
    a(f's_add_u32 s26, s23, {X2}\nbuffer_store_dwordx4 {vr(XP,4)}, v5, {SRD}, s26 offen sc1')
    a(f's_waitcnt vmcnt(3)\ns_branch {LE}\n{L1}:')
    nxt()
    pair_swap(a, XP)
    a(f'buffer_store_dwordx4 {vr(XP,4)}, v11, s[48:51], s23 offen\ns_waitcnt vmcnt(1)\n{LE}:')
    st.mark()
    st.flush(2, 20, S_LS)
    a(f's_cmp_lt_u32 s{S_NS}, 64\ns_cbranch_scc1 {LOOP}\n{DONE}:')
    if stamps: stamp_dump(a, EXIT)
    else: a(f's_branch {EXIT}')
    a(f'{REDO}:\ns_sub_u32 s{S_TO}, s{S_TO}, 64\ns_cbranch_scc1 {EXIT}\ns_branch {LD}')

def pv_role(a, EXIT, stamps=0):
    a('; ================= PV role =================')
    DONE = a.label('Ldone')
    vx, vm, pr, A, RS, XP, AC, q, m = 32, 96, 112, 16, 24, 28, 144, 160, 166
    WD = a.label('Lpvd')
    a(f'''s_branch {WD}
    {chain.PV_ENTRY}:
    s_cmp_ge_u32 s{S_P}, 7
    s_cselect_b32 s{S_U}, 4, 3
    s_cselect_b32 s20, 7, 0
    s_sub_u32 s{S_P}, s{S_P}, s20
    {WD}:''')
    common_setup(a)
    sched_setup(a, 'PV')
    team_setup(a)
    cu_stats_setup(a, 49152)
    a(f'''s_load_dwordx2 s[36:37], s[0:1], 0
    v_lshlrev_b32 v8, 7, v2
    v_mov_b32 v13, v8
    v_and_b32 v4, 1, v7
    s_lshl_b32 s20, s{S_P}, 1
    v_add_u32 v4, s20, v4
    v_lshlrev_b32 v4, 7, v4
    s_mov_b32 s38, {2048*896}
    s_mov_b32 s39, 0x20000
    s_mov_b32 s{S_K}, 0
    s_waitcnt lgkmcnt(0)''')
    sent4(a, XP)
    LF = a.label('Lpf'); LFD = a.label('Lpfd')
    a(f'{LF}:')
    merged_task(a, D_PV, LFD)
    a(f'''s_add_u32 s{S_K}, s{S_K}, 1
    s_mul_i32 s25, s{S_LS}, 28672
    s_add_u32 s25, s25, {YN}
    buffer_store_dwordx4 {vr(XP,4)}, v5, {SRD}, s25 offen sc1
    s_waitcnt vmcnt(32)
    s_branch {LF}
    {LFD}:
    s_mov_b32 s{S_K}, 0''')
    st = Stamps(a, stamps)
    LOOP = a.label('Lpv'); L1 = a.label('Lpv1'); LJ = a.label('Lpvj'); REDO = a.label('Lredo'); RUN = a.label('Lrun'); NR_ = a.label('Lnr')
    def nxt():
        NE = a.label('Lne')
        merged_task(a, D_PV, NE, S_NL, S_NS, S_NLS)
        flag_off(a, 26, F_VX, S_NLS); flag_off(a, 27, F_P, S_NLS); flag_off(a, 28, F_VM, S_NLS)
        a(f'''buffer_load_dword v9, v8, {SRD}, s26 offen sc1
        buffer_load_dword v164, v13, {SRD}, s27 offen sc1
        buffer_load_dword v165, v4, {SRD}, s28 offen sc1
        {NE}:''')
    all_done(a, EXIT)
    nxt()
    a(f'''s_waitcnt vmcnt(0)
    {LOOP}:
    s_mov_b32 s{S_L}, s{S_NL}
    s_mov_b32 s{S_S}, s{S_NS}
    s_mov_b32 s{S_LS}, s{S_NLS}''')
    def need(v, voff, soff):
        LOK = a.label('Lok')
        a(f'v_cmp_eq_u32 vcc, 0, v{v}\ns_cbranch_vccz {LOK}')
        wait_flags(a, voff, soff, v, EXIT)
        a(f'{LOK}:')
    a('s_waitcnt vmcnt(2)')
    need(9, 8, 26)
    st.mark()
    def vxl():
        LA = a.label('La'); LB = a.label('Lb')
        a(f'''s_mul_i32 s22, s{S_LS}, {VX_SEG}
        s_lshl_b32 s23, s{S_T}, 10
        s_add_u32 s22, s22, s23
        s_add_u32 s22, s22, {VX}''')
        for h in range(16):
            a(f'buffer_load_dwordx4 {vr(vx+4*h,4)}, v1, {SRD}, s22 offen sc1')
            if h < 15: a('s_add_u32 s22, s22, 28672')
        a(f'''s_mul_i32 s32, s{S_S}, 28672
        s_cmp_eq_u32 s{S_L}, 0
        s_cbranch_scc0 {LA}
        s_add_u32 s33, s32, 14336
        buffer_load_dwordx2 {vr(RS,2)}, v10, s[36:39], s32 offen
        buffer_load_dwordx2 {vr(RS+2,2)}, v10, s[36:39], s33 offen
        s_branch {LB}
        {LA}:
        s_add_u32 s32, s32, {X2}
        s_add_u32 s33, s32, 14336
        buffer_load_dwordx2 {vr(RS,2)}, v6, {SRD}, s32 offen sc1
        buffer_load_dwordx2 {vr(RS+2,2)}, v6, {SRD}, s33 offen sc1
        {LB}:''')
    def pdma():
        a(f'''s_mul_i32 s22, s{S_LS}, {PF_SEG}
        s_mul_i32 s23, s{S_W}, 10240
        s_add_u32 s22, s22, s23
        s_add_u32 s22, s22, {PF}''')
        dma_frags(a, 10, 22, 23)
    def vml():
        a(f'''s_mul_i32 s22, s{S_LS}, {VM_SEG}
        s_lshl_b32 s23, s{S_T}, 10
        s_add_u32 s22, s22, s23
        s_add_u32 s22, s22, {VM}''')
        for hq in range(4):
            a(f'buffer_load_dwordx4 {vr(vm+4*hq,4)}, v1, {SRD}, s22 offen sc1')
            if hq < 3: a('s_add_u32 s22, s22, 28672')
    JIT = a.label('Ljit')
    a(f'''s_mul_i32 s25, s{S_LS}, 28672
    s_add_u32 s25, s25, {YN}
    s_lshl_b32 s24, s{S_L}, 7
    s_add_u32 s24, s24, s{S_S}
    s_lshl_b32 s24, s24, 13
    s_add_u32 s24, s24, {ST}
    v_min_u32 v2, v164, v165
    v_cmp_eq_u32 vcc, 0, v2
    s_cbranch_vccnz {JIT}''')
    pdma(); vxl(); vml()
    st.mark()
    a(f's_mov_b32 s29, 1\ns_waitcnt vmcnt(22)\ns_branch {RUN}\n{JIT}:')
    st.n -= 1
    vxl()
    need(164, 13, 27)
    st.mark()
    pdma()
    a(f'''buffer_load_dword v165, v4, {SRD}, s28 offen sc1
    s_mov_b32 s29, 0
    s_waitcnt vmcnt(0)
    v_cmp_eq_u32 vcc, 0, v165
    s_cbranch_vccnz {RUN}''')
    vml()
    a(f'''s_mov_b32 s29, 1
    {RUN}:
    s_barrier''')
    st.mark()
    NR = 8
    def rd(i): return f'ds_read_b128 {vr(pr+4*(i%NR),4)}, v1 offset:{i*1024}'
    for i in range(6): a(rd(i))
    for i in range(40):
        if i == 32:
            VOK = a.label('Lvok')
            a(f's_cmp_eq_u32 s29, 1\ns_cbranch_scc1 {VOK}')
            need(165, 4, 28)
            vml()
            a(f's_mov_b32 s29, 1\n{VOK}:\ns_waitcnt vmcnt(0)')
        if i % 2 == 0: a(f's_waitcnt lgkmcnt({max(0, min(4, 38-i))})' + (f' vmcnt({21-i//2})' if i < 32 else ''))
        rt = i & 1; par = (i >> 1) & 1
        Aop = vx+4*(i >> 1) if i < 32 else vm+4*((i-32) >> 1)
        a(mf(vr(AC+8*rt+4*par,4), vr(Aop,4), vr(pr+4*(i%NR),4), 0 if i < 4 else None))
        a(chk2(m, pr+4*(i%NR), pr+4*(i%NR)+2, i == 0))
        if i+6 < 40: a(rd(i+6))
    st.mark()
    redo_if_bad(a, m, REDO, EXIT)
    a(f's_cmp_eq_u32 s{S_L}, 0\ns_cbranch_scc1 {NR_}')
    res_valid(a, RS, 32, EXIT)
    a(f'{NR_}:\ns_add_u32 s{S_K}, s{S_K}, 1')
    nxt()
    for rt in range(2):
        for r in range(4): a(f'v_add_f32 v{A+4*rt+r}, v{AC+8*rt+r}, v{AC+8*rt+4+r}')
    st.mark(2)
    add_residual(a, A, RS, XP)
    guard(a, XP, 4)
    pair_swap(a, XP)
    a(f'buffer_store_dwordx4 {vr(XP,4)}, v5, {SRD}, s25 offen sc1')
    st.mark(2)
    stats_partial(a, A, q)
    cu_stats(a, q)
    a(f'''buffer_store_dword v{q}, v12, {SRD}, s24 offen sc1''')
    st.mark()
    st.flush(2, 20, S_LS)
    a(f's_cmp_lt_u32 s{S_NS}, 64\ns_cbranch_scc1 {LOOP}\n{DONE}:')
    if stamps: stamp_dump(a, EXIT)
    else: a(f's_branch {EXIT}')
    a(f'{REDO}:\ns_sub_u32 s{S_TO}, s{S_TO}, 64\ns_cbranch_scc1 {EXIT}\ns_barrier')
    pdma()
    a(f's_waitcnt vmcnt(0)\ns_branch {RUN}')
```

```python
import gen, chain, workers, sys
def mk(name, **kw):
    for k, v in kw.items():
        if k == 'DPV': workers.MERGE['PV'] = v
        elif k in chain.OPT: chain.OPT[k] = v
        else: setattr(workers, k, v)
    open(f'exp/{name}.s', 'w').write(gen.build())
if __name__ == '__main__':
    for spec in sys.argv[1:]:
        name, *kv = spec.split(',')
        mk(name, **{a.split('=')[0]: int(a.split('=')[1]) for a in kv})
```

```python
from asmlib import *
from layout import *

SRD = 's[8:11]'
S_W, S_SLOT, S_L, S_P, S_FAST, S_STEP, S_TO, S_U = 12, 13, 14, 15, 16, 17, 18, 19
NSTEP = 64
P_ENTRY, PV_ENTRY = 'Lp_from_k', 'Lpv_from_v'
HANDOVER = True
OPT = dict(mem2=True, p2=True, xk3late=False, stag=2, pcan=False, fpos=6, novx=False, nost=False, noxk=False, mgearly=0, pre=4, gw=0, ninf=0)
STAMP_OP = 's_memtime'
DPP = 'row_mask:0xf bank_mask:0xf'

def wreg(G, nA, vbase):
    return ar(8*G, 8) if G < nA else vr(vbase + 8*(G-nA), 8)
def wreg4(G, half, nA, vbase):
    return ar(8*G+4*half, 4) if G < nA else vr(vbase + 8*(G-nA) + 4*half, 4)

class Stamps:
    def __init__(self, a, on, base=60):
        self.a, self.on, self.base, self.n = a, on, base, 0
    def mark(self, lvl=1):
        if self.on >= lvl:
            self.a(f'{STAMP_OP} s[{self.base+2*self.n}:{self.base+2*self.n+1}]'); self.n += 1
    def flush(self, vt0, soff, sstep=S_STEP):
        if not self.on: return
        a = self.a
        a(f"""s_waitcnt lgkmcnt(0)
        s_lshl_b32 s{soff}, s{S_W}, 7
        s_add_u32 s{soff}, s{soff}, s{sstep}
        s_lshl_b32 s{soff}, s{soff}, 5
        s_add_u32 s{soff}, s{soff}, {STL}
        v_mov_b32 v{vt0}, s{soff}""")
        for k in range(0, self.n, 2):
            a(f'v_mov_b32 v{vt0+1}, s{self.base+2*k}')
            a(f'ds_write_b16 v{vt0}, v{vt0+1} offset:{2*k}')
            if k+1 < self.n:
                a(f'v_mov_b32 v{vt0+1}, s{self.base+2*k+2}')
                a(f'ds_write_b16 v{vt0}, v{vt0+1} offset:{2*k+2}')
        self.n = 0

STL = 147456
def stamp_dump(a, EXIT):
    a(f"""s_memrealtime s[22:23]
    s_waitcnt lgkmcnt(0)
    v_and_b32 v1, 63, v0
    v_lshlrev_b32 v1, 4, v1
    s_lshl_b32 s20, s{S_W}, 12
    s_add_u32 s21, s20, {STL}
    v_mov_b32 v2, s21
    v_mov_b32 v3, s98
    ds_write_b16 v2, v3 offset:24
    v_mov_b32 v3, s100
    ds_write_b16 v2, v3 offset:26
    v_mov_b32 v3, s22
    ds_write_b16 v2, v3 offset:28
    v_add_u32 v2, s21, v1
    s_lshl_b32 s21, s{S_SLOT}, 14
    s_add_u32 s20, s20, s21
    s_add_u32 s20, s20, {STAMP}""")
    for k in range(4):
        a(f"""ds_read_b128 v[4:7], v2 offset:{k*1024}
        s_waitcnt lgkmcnt(0)
        buffer_store_dwordx4 v[4:7], v1, {SRD}, s20 offen offset:{k*1024}
        s_nop 1""")
    if EXIT: a(f's_branch {EXIT}')
    else: a(f's_add_u32 s{S_SLOT}, s{S_SLOT}, 256\ns_waitcnt vmcnt(0)')

def poll_mem(a, soff, d, t, EXIT, MEMS, d2):
    L = a.label('Lpm'); OK = a.label('Lpmok')
    def issue(r):
        a(f"""buffer_load_dwordx4 {vr(r[0],4)}, v2, {SRD}, s{soff} offen sc1
        buffer_load_dwordx4 {vr(r[1],4)}, v3, {SRD}, s{soff} offen sc1""")
    def check(r, n=2):
        p, q = r
        a(f"""s_waitcnt vmcnt({n})
        v_max3_u32 v{t}, v{p}, v{p+1}, v{p+2}
        v_max3_u32 v{t+1}, v{p+3}, v{q}, v{q+1}
        v_max3_u32 v{t}, v{t}, v{q+2}, v{q+3}
        v_max_u32 v{t}, v{t}, v{t+1}
        v_cmp_eq_u32 vcc, -1, v{t}
        ds_write_b128 v2, {vr(p,4)} offset:{MEMS}
        ds_write_b128 v3, {vr(q,4)} offset:{MEMS}""")
    if not OPT['mem2']:
        a(f'{L}:')
        issue(d)
        a(f's_sub_u32 s{S_TO}, s{S_TO}, 1\ns_cbranch_scc1 {EXIT}')
        check(d, 0)
        a(f's_cbranch_vccnz {L}')
        return
    issue(d)
    a('s_nop 15\n'*OPT['stag'])
    a(f'{L}:')
    issue(d2)
    check(d)
    a(f's_cbranch_vccz {OK}')
    issue(d)
    a(f"""s_sub_u32 s{S_TO}, s{S_TO}, 1
    s_cbranch_scc1 {EXIT}""")
    check(d2)
    a(f's_cbranch_vccnz {L}')
    a(f'{OK}:')

def mem_addr_setup(a):
    a(f'''v_and_b32 v7, 63, v0
    v_lshlrev_b32 v1, 4, v7
    s_mul_i32 s20, s{S_W}, 112
    v_add_u32 v2, s20, v7
    v_min_u32 v3, 47, v7
    s_add_u32 s20, s20, 64
    v_add_u32 v3, s20, v3
    v_lshlrev_b32 v2, 4, v2
    v_lshlrev_b32 v3, 4, v3
    v_and_b32 v8, 8, v7
    v_cmp_eq_u32 vcc, 0, v8
    v_mov_b32 v6, 0xeeee
    v_mov_b32 v8, 0x4444
    v_cndmask_b32 v6, v6, v8, vcc''')

def wait_flags(a, voff, soff, vd, EXIT):
    L = a.label('Lwf'); Lok = a.label('Lwfok')
    a(f'''{L}:
    buffer_load_dword v{vd}, v{voff}, {SRD}, s{soff} offen sc1
    s_sub_u32 s{S_TO}, s{S_TO}, 1
    s_cbranch_scc1 {EXIT}
    s_waitcnt vmcnt(0)
    v_cmp_eq_u32 vcc, 0, v{vd}
    s_cbranch_vccz {Lok}
    s_sleep 2
    s_branch {L}
    {Lok}:''')

PREP = True
def wait_done(a, voff, vd, EXIT):
    if not PREP: return
    L = a.label('Lwd'); OK = a.label('Lwdok')
    a(f"""s_mov_b32 s20, {DONEF}
    {L}:
    buffer_load_dwordx2 {vr(vd,2)}, v{voff}, {SRD}, s20 offen sc1
    s_sub_u32 s{S_TO}, s{S_TO}, 1
    s_cbranch_scc1 {EXIT}
    s_waitcnt vmcnt(0)
    v_xor_b32 v{vd}, s78, v{vd}
    v_xor_b32 v{vd+1}, s79, v{vd+1}
    v_or_b32 v{vd}, v{vd}, v{vd+1}
    v_cmp_ne_u32 vcc, 0, v{vd}
    s_cbranch_vccz {OK}
    s_sleep 2
    s_branch {L}
    {OK}:""")

def need_head(a, typ, EXIT, t=16):
    if OPT['gw']: return all_done(a, EXIT, t)
    if not PREP: return
    a(f"""s_and_b32 s20, s{S_P}, 1
    s_add_u32 s20, s20, {2*typ}
    s_mul_i32 s20, s20, 56
    s_lshr_b32 s21, s{S_P}, 1
    s_sub_u32 s21, s21, {2*typ}
    s_and_b32 s21, s21, 7
    s_add_u32 s20, s20, s21
    v_and_b32 v{t}, 7, v0
    v_min_u32 v{t}, 6, v{t}
    v_lshlrev_b32 v{t}, 3, v{t}
    v_add_u32 v{t}, s20, v{t}
    v_lshlrev_b32 v{t}, 7, v{t}""")
    wait_done(a, t, t+2, EXIT)

def need_cols(a, EXIT, t=16):
    if OPT['gw']: return all_done(a, EXIT, t)
    if not PREP: return
    a(f"""v_and_b32 v{t}, 15, v0
    v_and_b32 v{t+1}, 1, v{t}
    v_mul_u32_u24 v{t+1}, 56, v{t+1}
    v_lshrrev_b32 v{t}, 1, v{t}
    v_subrev_u32 v{t}, 2, v{t}
    v_and_b32 v{t}, 7, v{t}
    v_add_u32 v{t}, v{t}, v{t+1}
    s_lshr_b32 s20, s{S_P}, 1
    s_lshl_b32 s20, s20, 3
    s_add_u32 s20, s20, 112
    v_add_u32 v{t}, s20, v{t}
    v_lshlrev_b32 v{t}, 7, v{t}""")
    wait_done(a, t, t+2, EXIT)

def all_done(a, EXIT, t=16):
    if not PREP: return
    a(f'v_lshlrev_b32 v{t}, 7, v0')
    wait_done(a, t, t+2, EXIT)
    a('s_barrier')

def hold_back(a, EXIT, t=16):
    if not PREP: return
    L = a.label('Lhb')
    a(f's_cmp_eq_u32 s{S_L}, 0\ns_cbranch_scc1 {L}')
    all_done(a, EXIT, t)
    a(f'v_and_b32 v{t}, 15, v0\nv_lshlrev_b32 v{t}, 7, v{t}\ns_mov_b32 s21, {flag_base(F_VX)}')
    wait_flags(a, t, 21, t+2, EXIT)
    a(f'{L}:')

def ring_off(a, dst, step_plus, seg, base_s):
    sh = seg.bit_length()-1
    a(f'''s_add_u32 s{dst}, s{S_STEP}, {step_plus & 3}
    s_and_b32 s{dst}, s{dst}, 3
    s_lshl_b32 s{dst}, s{dst}, {sh}
    s_add_u32 s{dst}, s{dst}, s{base_s}''')

def k_cu(a, EXIT, stamps=0, mode_fn=None):
    MEMS, TIMG, PART = 0, 8192, 24576
    SW = 2048
    nA, vb = 32, 120
    memA, tb, sc, pd, tmp = 16, 60, 92, 92, 112
    X, Mx = 60, 112
    D2 = (60, 100)
    ACC = [44, 48, 52, 56, 44, 48, 64]
    mk, mk2, tb2 = 116, 52, 56
    XKR = {(0, 0): 68, (0, 1): 70, (1, 0): 72, (1, 1): 76, (2, 0): 80, (2, 1): 84, (3, 0): 104, (3, 1): 108}
    S_D = 36
    S_FS = 40
    S_MEM, S_PM, S_XN, S_FX, S_T0, S_T1, S_XP, S_XS, S_MB, S_PB, S_RA = 24, 25, 26, 27, 28, 29, 30, 31, 32, 33, 34
    DONE = a.label('Ldone')
    hold_back(a, EXIT)
    need_head(a, 0, EXIT)
    mem_addr_setup(a)
    a(f'''s_mul_i32 s20, s{S_P}, 28
    s_mul_i32 s21, s{S_W}, 7
    s_add_u32 s20, s20, s21
    s_and_b32 s22, s{S_W}, 1
    s_add_u32 s21, s20, s22
    s_mul_i32 s21, s21, 14336
    s_add_u32 s21, s21, {WA}
    s_xor_b32 s22, s22, 1
    s_mul_i32 s22, s22, 6
    s_add_u32 s20, s20, s22
    s_mul_i32 s20, s20, 14336
    s_add_u32 s20, s20, {WA}''')
    n = 0
    for u in range(7):
        sreg = 20 if u == 0 else 21
        for ks in range(14):
            G = u*7 + ks//2
            fi = ks if u == 0 else (u-1)*14 + ks
            a(f'buffer_load_dwordx4 {wreg4(G, ks & 1, nA, vb)}, v1, {SRD}, s{sreg} offen offset:{(fi & 3)*1024} sc1')
            if (fi & 3) == 3: a(f's_add_u32 s{sreg}, s{sreg}, 4096')
            n += 1
            if n >= 48 and n % 8 == 0: a('s_waitcnt vmcnt(40)')
    a(f'''v_mov_b32 v114, v7
    v_and_b32 v112, 15, v114
    v_lshrrev_b32 v113, 4, v114
    s_mul_i32 s20, s{S_W}, 3584
    s_add_u32 s20, s20, {TIMG}
    v_lshlrev_b32 v8, 3, v114
    v_add_u32 v8, s20, v8
    v_lshlrev_b32 v7, 5, v112
    v_lshl_add_u32 v7, v113, 3, v7
    v_add_u32 v7, s20, v7
    s_mul_i32 s20, s{S_W}, 7
    s_add_u32 s20, s20, 1
    s_lshr_b32 s20, s20, 1
    s_lshr_b32 s21, s{S_W}, 1
    s_mul_i32 s21, s21, 7
    s_add_u32 s21, s21, 3
    s_lshl_b32 s{S_XP}, s20, 10
    s_lshl_b32 s{S_XS}, s21, 10
    s_and_b32 s22, s{S_W}, 1
    v_and_b32 v115, 7, v114
    v_lshlrev_b32 v116, 4, v115
    v_lshrrev_b32 v117, 1, v113
    v_lshl_add_u32 v116, v117, 8, v116
    v_and_b32 v117, 1, v113
    v_lshl_add_u32 v116, v117, 3, v116
    s_lshl_b32 s20, s20, 9
    s_add_u32 s20, s20, {MEMS}
    v_add_u32 v9, s20, v116
    v_add_u32 v4, 1024, v9
    s_lshl_b32 s21, s21, 9
    s_lshl_b32 s23, s22, 2
    s_add_u32 s21, s21, s23
    s_add_u32 s21, s21, {MEMS}
    v_add_u32 v10, s21, v116
    s_lshl_b32 s22, s22, 3
    v_add_u32 v12, s22, v1''')
    a(f'''s_lshl_b32 s20, s{S_W}, 11
    s_add_u32 s20, s20, {PART}
    v_bfe_u32 v117, v114, 3, 1
    v_lshl_add_u32 v118, v117, 2, v113
    v_mul_u32_u24 v13, 144, v118
    v_lshl_add_u32 v13, v115, 4, v13
    v_add_u32 v13, s20, v13
    v_lshl_add_u32 v118, v113, 1, v117
    v_mul_u32_u24 v5, 80, v118
    v_lshl_add_u32 v5, v115, 3, v5
    s_add_u32 s20, s20, 1152
    v_add_u32 v5, s20, v5''')
    a(f'''v_and_b32 v115, 31, v114
    v_lshrrev_b32 v116, 5, v114
    s_lshl_b32 s20, s{S_W}, 1
    v_add_u32 v116, s20, v116
    v_lshrrev_b32 v117, 1, v115
    v_and_b32 v118, 1, v115
    v_mul_u32_u24 v14, 144, v117
    v_lshl_add_u32 v14, v116, 4, v14
    v_lshl_add_u32 v14, v118, 3, v14
    v_min_u32 v119, 19, v115
    v_subrev_u32 v119, 16, v119
    v_mul_u32_u24 v119, 80, v119
    v_lshl_add_u32 v119, v116, 3, v119
    v_add_u32 v119, 1152, v119
    v_cmp_gt_u32 vcc, 16, v115
    s_nop 1
    v_cndmask_b32 v14, v119, v14, vcc
    v_add_u32 v14, {PART}, v14''')
    a(f'''s_lshr_b32 s20, s{S_P}, 1
    s_lshl_b32 s20, s20, 10
    s_and_b32 s21, s{S_P}, 1
    s_lshl_b32 s22, s21, 7
    s_add_u32 s20, s20, s22
    v_and_b32 v119, 3, v117
    v_lshlrev_b32 v15, 8, v119
    v_lshl_add_u32 v15, v116, 4, v15
    v_lshl_add_u32 v15, v118, 2, v15
    v_lshrrev_b32 v119, 3, v115
    v_lshl_add_u32 v15, v119, 3, v15
    v_add_u32 v15, s20, v15
    s_lshr_b32 s20, s{S_P}, 2
    s_lshl_b32 s20, s20, 9
    s_add_u32 s20, s20, 8192
    s_lshl_b32 s21, s21, 3
    s_add_u32 s20, s20, s21
    s_and_b32 s21, s{S_P}, 2
    s_lshl_b32 s21, s21, 7
    s_add_u32 s20, s20, s21
    v_and_b32 v119, 1, v117
    v_lshlrev_b32 v119, 7, v119
    v_lshl_add_u32 v119, v116, 4, v119
    v_lshl_add_u32 v119, v118, 2, v119
    v_add_u32 v119, s20, v119
    v_cndmask_b32 v15, v119, v15, vcc
    v_cmp_gt_u32 vcc, 20, v115
    v_mov_b32 v117, 0x7f000000
    v_mov_b32 v118, 0xff800000
    v_mov_b32 v119, 0x7f800000
    v_cndmask_b32 v15, v117, v15, vcc
    v_cndmask_b32 v90, v118, v119, vcc
    v_and_b32 v91, 7, v114
    v_min_u32 v91, 6, v91
    v_lshlrev_b32 v91, 7, v91
    v_mov_b32 v88, -1''')
    a(f'''s_lshl_b32 s{S_MB}, s{S_L}, 15
    s_add_u32 s{S_MB}, s{S_MB}, {MEMF}
    s_lshl_b32 s{S_PB}, s{S_L}, 16
    s_add_u32 s{S_PB}, s{S_PB}, {PM}
    s_lshl_b32 s20, s{S_L}, 6
    s_mul_i32 s{S_XN}, s20, {XN_SEG}
    s_add_u32 s{S_XN}, s{S_XN}, {XN}
    s_mul_i32 s{S_FX}, s20, {flag_seg(F_XN)}
    s_add_u32 s{S_FX}, s{S_FX}, {flag_base(F_XN)}
    s_mul_i32 s{S_FS}, s{S_L}, {flag_seg(F_XN)}
    s_cmp_eq_u32 s{S_L}, 0
    s_cselect_b32 s{S_FX}, {ST+7168}, s{S_FX}
    s_mov_b32 s{S_STEP}, 0
    s_mov_b32 s{S_MEM}, s{S_MB}
    s_mov_b32 s{S_PM}, s{S_PB}
    s_add_u32 s{S_RA}, s{S_PB}, {3*PM_SEG}''')
    def xk_setup():
        if OPT['noxk']: a(f's_sub_u32 s{S_XN}, s{S_XN}, {XN_SEG}')
        a(f"""s_add_u32 s{S_D}, s{S_XN}, s{S_XP}
        s_add_u32 s{S_D+1}, s{S_XN}, s{S_XS}
        s_add_u32 s{S_D+2}, s{S_D}, 14336
        s_add_u32 s{S_D+3}, s{S_D+1}, 14336
        s_add_u32 s{S_XN}, s{S_XN}, {XN_SEG}
        s_add_u32 s{S_FX}, s{S_FX}, s{S_FS}""")
    def xk_load(unit, kt):
        if unit == 0:
            return f'buffer_load_dwordx2 {vr(XKR[(0,kt)],2)}, v12, {SRD}, s{S_D+1+2*kt} offen sc1'
        return f'buffer_load_dwordx4 {vr(XKR[(unit,kt)],4)}, v1, {SRD}, s{S_D+2*kt} offen offset:{(unit-1)*1024} sc1'
    FLAGLD = f'buffer_load_dword v89, v91, {SRD}, s{S_FX} offen sc1'
    all_done(a, EXIT)
    if mode_fn: mode_fn(92, 93)
    wait_flags(a, 91, S_FX, 89, EXIT)
    xk_setup()
    for u in range(4):
        for kt in range(2): a(xk_load(u, kt))
    a(FLAGLD)
    a('s_waitcnt vmcnt(0)')
    LS = a.label('Lkslow')
    a(f's_cmp_eq_u32 s{S_FAST}, 1\ns_cbranch_scc0 {LS}')
    def loop(sc1):
        st = Stamps(a, stamps)
        LOOP = a.label('Lk'); Lok = a.label('Lkf')
        KB = a.label('Lkb'); KC = a.label('Lkc')
        a(f'{LOOP}:\ns_waitcnt vmcnt(1)\n{KC}:')
        a(f"""v_max3_u32 v{tmp}, v68, v70, v72
        v_max3_u32 v{tmp+1}, v76, v80, v84
        v_max3_u32 v{tmp}, v{tmp}, v104, v108
        v_max_u32 v{tmp}, v{tmp}, v{tmp+1}
        v_cmp_eq_u32 vcc, -1, v{tmp}
        s_cbranch_vccnz {KB}
        v_cmp_eq_u32 vcc, 0, v89
        s_cbranch_vccz {Lok}""")
        wait_flags(a, 91, S_FX, 89, EXIT)
        a(f'{Lok}:')
        xk_setup()
        for u in (0, 1, 2, 3, 6): a(f'v_mov_b64 {vr(ACC[u],2)}, 0\nv_mov_b64 {vr(ACC[u]+2,2)}, 0')
        st.mark()
        poll_mem(a, S_MEM, (pd, pd+4), tmp, EXIT, MEMS, D2)
        st.mark(2)
        a('s_waitcnt lgkmcnt(0)\ns_barrier')
        st.mark(2)
        for b in range(7): a(f'ds_read_b128 {vr(memA+4*b,4)}, v1 offset:{MEMS+1024*b}')
        main = []
        for u in range(7):
            for b in range(7):
                main.append(f'v_smfmac_f32_16x16x64_bf16 {vr(ACC[u],4)}, {vr(memA+4*b,4)}, {wreg(u*7+b, nA, vb)}, v6')
        F = {}
        def add(slot, *ins): F.setdefault(slot, []).extend(ins)
        def spread(slot, ins, step=1):
            for k, x in enumerate(ins): add(slot+k*step, x)
        [add(b-1, f's_waitcnt lgkmcnt({6-b})') for b in range(7)]
        def mkread(unit, R):
            if unit == 0: return [f'ds_read2_b32 {vr(R,2)}, v10 offset0:0 offset1:32']
            p = unit-1
            ar_, o = (9, p*128) if p < 2 else (4, 0)
            return [f'ds_read2_b32 {vr(R,2)}, v{ar_} offset0:{o} offset1:{o+32}', f'ds_read2_b32 {vr(R+2,2)}, v{ar_} offset0:{o+1} offset1:{o+33}']
        def tail_tile(u, half, tb=tb):
            A = ACC[u]; t = tmp+2*half
            return [f'v_cvt_pk_bf16_f32 v{t}, v{A}, v{A+1}', f'v_cvt_pk_bf16_f32 v{t+1}, v{A+2}, v{A+3}',
                    f'ds_write_b64 v7, {vr(t,2)} offset:{u*512}', f'ds_read_b64_tr_b16 {vr(tb+2*half,2)}, v8 offset:{u*512}']
        def score(unit, mkr=mk, tb=tb):
            K = [XKR[(unit, 0)], XKR[(unit, 1)], mkr]
            if unit == 0:
                return [f'v_mfma_f32_16x16x16_bf16 {vr(sc+4*k,4)}, {vr(K[k],2)}, {vr(tb,2)}, 0' for k in range(3)]
            return [f'v_mfma_f32_16x16x32_bf16 {vr(sc+4*k,4)}, {vr(K[k],4)}, {vr(tb,4)}, {vr(sc+4*k,4)}' for k in range(3)]
        def put_score(slot, sc_ins, fill):
            add(slot, 's_waitcnt lgkmcnt(0)')
            for k in range(3):
                add(slot, sc_ins[k])
                if k < len(fill): add(slot, fill[k])
        def z(u): return [f'v_mov_b64 {vr(ACC[u],2)}, 0', f'v_mov_b64 {vr(ACC[u]+2,2)}, 0']
        spread(7, mkread(0, mk)); add(10, FLAGLD)
        add(8, f'buffer_store_dword v88, v15, {SRD}, s{S_RA} offen {sc1}')
        add(13, 's_waitcnt vmcnt(2)')
        spread(14, tail_tile(0, 0))
        spread(18, z(4))
        t1 = tail_tile(1, 0); spread(20, t1[:2])
        put_score(22, score(0), [t1[2], xk_load(0, 0), t1[3]])
        spread(23, mkread(1, mk)); spread(25, z(5)); add(27, xk_load(0, 1))
        spread(28, tail_tile(2, 1))
        spread(32, mkread(3, mk2))
        t3 = tail_tile(3, 0); add(35, t3[0]); add(36, t3[1])
        put_score(36, score(1), [t3[2], xk_load(1, 0), t3[3]])
        spread(37, mkread(2, mk)); add(40, xk_load(1, 1))
        t4 = tail_tile(4, 1); spread(42, t4)
        t5 = tail_tile(5, 0, tb2)
        add(48, t5[0])
        put_score(48, score(2), [t5[1], t5[2], t5[3]])
        for ins in interleave(main, F): a(ins)
        st.mark(2)
        t6 = tail_tile(6, 1, tb2)
        for ins in t6: a(ins)
        a(xk_load(2, 0)); ring_off(a, S_MEM, 1, MEM_SEG, S_MB); a(xk_load(2, 1))
        a('s_waitcnt lgkmcnt(0)')
        s3 = score(3, mk2, tb2)
        for ins in (s3[2], s3[0], s3[1]): a(ins)
        st.mark(2)
        if OPT['xk3late']: a(f's_mov_b32 s{S_RA}, s{S_PM}\ns_nop 4')
        else: a(xk_load(3, 0)); a(f's_mov_b32 s{S_RA}, s{S_PM}'); a(xk_load(3, 1)); a('s_nop 2')
        for q in range(2):
            a(f'v_add_f32_dpp v{Mx+q}, v{sc+8+q}, v{sc+8+q} row_ror:8 row_mask:0xf bank_mask:0x3')
            a(f'v_add_f32_dpp v{Mx+q}, v{sc+10+q}, v{sc+10+q} row_ror:8 row_mask:0xf bank_mask:0xc')
        a(f'ds_write_b64 v5, {vr(Mx,2)}')
        for r in range(4):
            a(f'v_add_f32_dpp v{X+r}, v{sc+r}, v{sc+r} row_ror:8 row_mask:0xf bank_mask:0x3')
            a(f'v_add_f32_dpp v{X+r}, v{sc+4+r}, v{sc+4+r} row_ror:8 row_mask:0xf bank_mask:0xc')
        a(f'ds_write_b128 v13, {vr(X,4)}')
        a('s_waitcnt lgkmcnt(0)\ns_barrier')
        st.mark(2)
        R = 44
        for w in range(4): a(f'ds_read_b64 {vr(R+2*w,2)}, v14 offset:{w*SW}')
        a(f"""s_waitcnt lgkmcnt(2)
        v_pk_add_f32 {vr(R,2)}, {vr(R,2)}, {vr(R+2,2)}
        s_waitcnt lgkmcnt(0)
        v_pk_add_f32 {vr(R+4,2)}, {vr(R+4,2)}, {vr(R+6,2)}
        v_pk_add_f32 {vr(R,2)}, {vr(R,2)}, {vr(R+4,2)}
        v_min_f32 v{R}, v{R}, v90
        v_min_f32 v{R+1}, v{R+1}, v90
        v_max_f32 v{R+4}, v{R}, v{R+1}""")
        st.mark(2)
        for k in (8, 4, 2, 1):
            a(f's_nop 1\nv_max_f32_dpp v{R+4}, v{R+4}, v{R+4} row_ror:{k} {DPP}')
        a(f"""v_mov_b32 v{R+5}, v{R+4}
        s_nop 1
        v_permlane16_swap_b32 v{R+4}, v{R+5}
        v_max_f32 v{R+4}, v{R+4}, v{R+5}
        v_sub_f32 v{R}, v{R}, v{R+4}
        v_sub_f32 v{R+1}, v{R+1}, v{R+4}
        v_exp_f32 v{R}, v{R}
        v_exp_f32 v{R+1}, v{R+1}
        s_nop 0
        v_add_f32 v{R+4}, v{R}, v{R+1}""")
        for k in (8, 4, 2, 1):
            a(f's_nop 1\nv_add_f32_dpp v{R+4}, v{R+4}, v{R+4} row_ror:{k} {DPP}')
        a(f"""v_mov_b32 v{R+5}, v{R+4}
        s_nop 1
        v_permlane16_swap_b32 v{R+4}, v{R+5}
        v_add_f32 v{R+4}, v{R+4}, v{R+5}
        v_rcp_f32 v{R+4}, v{R+4}
        s_add_u32 s{S_STEP}, s{S_STEP}, 1
        v_mul_f32 v{R}, v{R}, v{R+4}
        v_mul_f32 v{R+1}, v{R+1}, v{R+4}
        v_cvt_pk_bf16_f32 v{R}, v{R}, v{R+1}
        v_min_u32 v{R}, 0xfffffffe, v{R}
        buffer_store_dword v{R}, v15, {SRD}, s{S_PM} offen {sc1}""")
        st.mark(2)
        st.flush(tmp, 20)
        a(f"""s_cmp_ge_u32 s{S_STEP}, {NSTEP-1}
        s_cbranch_scc1 {DONE}""")
        ring_off(a, S_PM, 0, PM_SEG, S_PB)
        if OPT['xk3late']: a(xk_load(3, 0)); a(xk_load(3, 1)); a('s_waitcnt vmcnt(0)')
        a(f's_branch {LOOP}')
        a(f'{KB}:\ns_sub_u32 s{S_TO}, s{S_TO}, 1\ns_cbranch_scc1 {EXIT}')
        for u in range(4):
            for kt in range(2): a(xk_load(u, kt))
        a(f's_waitcnt vmcnt(0)\ns_branch {KC}')
    loop('')
    a(f'{LS}:')
    loop('sc1')
    a(f'{DONE}:')
    if stamps: stamp_dump(a, None)
    if HANDOVER: a(f's_waitcnt vmcnt(0) lgkmcnt(0)\ns_barrier\ns_cmp_eq_u32 s{S_L}, 0\ns_cbranch_scc1 {P_ENTRY}')
    a(f's_branch {EXIT}')

def v_cu(a, EXIT, stamps=0, mode_fn=None):
    MEMS, PART, WL = 0, 8192, 16384
    nA, vb = 32, 176
    memA, acc, wr, vx, pf, vmf, oa, pd, fl, tmp = 16, 44, 76, 92, 124, 136, 144, 160, 168, 170
    S_MEM, S_PM, S_VX, S_FV, S_T0, S_MG, S_VM, S_FM, S_MB, S_PB, S_RA, S_MN, S_MGN, S_VMN = 24, 25, 26, 27, 28, 29, 30, 31, 32, 33, 34, 35, 40, 41
    DONE = a.label('Ldone')
    hold_back(a, EXIT)
    need_cols(a, EXIT)
    mem_addr_setup(a)
    a(f'''s_mul_i32 s20, s{S_W}, 28672
    s_add_u32 s20, s20, {WL}
    s_mul_i32 s21, s{S_W}, 112
    s_lshl_b32 s{S_T0}, s{S_P}, 1
    s_add_u32 s21, s21, s{S_T0}
    s_mul_i32 s21, s21, 14336
    s_add_u32 s21, s21, {WV}''')
    n = 0
    a(f's_add_u32 s{S_T0}, s21, {3*28*14336}')
    for fi in range(28):
        if (fi & 3) == 0:
            a(f's_add_u32 m0, s20, {fi*1024}\ns_nop 0')
        a(f'buffer_load_dwordx4 v1, {SRD}, s{S_T0} offen offset:{(fi&3)*1024} sc1 lds')
        if (fi & 3) == 3: a(f's_add_u32 s{S_T0}, s{S_T0}, 4096')
        n += 1
    for hh in range(3):
        a(f's_add_u32 s{S_T0}, s21, {hh*28*14336}')
        for fi in range(28):
            G = hh*14 + fi//2
            a(f'buffer_load_dwordx4 {wreg4(G, fi & 1, nA, vb)}, v1, {SRD}, s{S_T0} offen offset:{(fi&3)*1024} sc1')
            if (fi & 3) == 3: a(f's_add_u32 s{S_T0}, s{S_T0}, 4096')
            n += 1
            if n >= 48 and n % 8 == 0: a('s_waitcnt vmcnt(40)')
    a(f'''v_mov_b32 v14, v7
    v_add_u32 v7, s20, v1
    v_and_b32 v15, 7, v14
    v_lshrrev_b32 v{tmp}, 4, v14
    v_bfe_u32 v{tmp+1}, v14, 3, 1
    v_lshrrev_b32 v{tmp+2}, 5, v14
    s_lshl_b32 s20, s{S_W}, 11
    v_add_u32 v8, s20, v1
    v_lshlrev_b32 v9, 7, v{tmp}
    v_lshl_add_u32 v9, v15, 4, v9
    v_lshl_add_u32 v10, v{tmp+1}, 9, v9
    s_lshl_b32 s20, s{S_W}, 10
    s_add_u32 s20, s20, {PART}
    v_add_u32 v10, s20, v10
    s_lshl_b32 s21, s{S_W}, 9
    s_add_u32 s21, s21, 8192
    v_add_u32 v9, s21, v9
    v_and_b32 v11, 15, v14
    v_lshlrev_b32 v11, 4, v11
    v_lshl_add_u32 v11, v{tmp}, 10, v11
    s_lshl_b32 s20, s{S_W}, 8
    s_add_u32 s20, s20, {PART}
    v_add_u32 v11, s20, v11
    v_lshlrev_b32 v12, 4, v15
    v_lshl_add_u32 v4, v{tmp+1}, 3, v12
    v_lshl_add_u32 v4, v{tmp+2}, 2, v4
    s_lshl_b32 s20, s{S_P}, 2
    s_add_u32 s20, s20, s{S_W}
    s_lshl_b32 s21, s20, 7
    v_add_u32 v4, s21, v4
    v_lshl_add_u32 v12, v{tmp+2}, 7, v12
    v_lshl_add_u32 v12, v{tmp+1}, 2, v12
    s_lshr_b32 s21, s20, 1
    s_lshl_b32 s21, s21, 8
    s_and_b32 s20, s20, 1
    s_lshl_b32 s20, s20, 3
    s_add_u32 s21, s21, s20
    v_add_u32 v12, s21, v12
    v_and_b32 v13, 3, v14
    s_lshl_b32 s20, s{S_W}, 2
    v_add_u32 v13, s20, v13
    v_lshlrev_b32 v13, 7, v13
    v_mov_b32 v5, -1
    v_cmp_eq_u32 vcc, 0, v0
    v_mov_b32 v14, 0x7f000000
    v_mov_b32 v15, 1
    v_cndmask_b32 v14, v14, 0, vcc''')
    a(f'''s_lshl_b32 s{S_MB}, s{S_L}, 15
    s_add_u32 s{S_MB}, s{S_MB}, {MEMF}
    s_lshl_b32 s{S_PB}, s{S_L}, 16
    s_add_u32 s{S_PB}, s{S_PB}, {PM}
    s_lshl_b32 s20, s{S_L}, 6
    s_lshl_b32 s{S_MGN}, s20, 13
    s_add_u32 s{S_MGN}, s{S_MGN}, {MEMG+MEM_SEG}
    s_mov_b32 s{S_MG}, {DUMMY}
    s_mul_i32 s{S_VX}, s20, {VX_SEG}
    s_mul_i32 s21, s{S_W}, 112
    s_lshl_b32 s{S_T0}, s{S_P}, 1
    s_add_u32 s21, s21, s{S_T0}
    s_lshl_b32 s21, s21, 10
    s_add_u32 s{S_VX}, s{S_VX}, s21
    s_add_u32 s{S_VX}, s{S_VX}, {VX}
    s_mul_i32 s{S_VM}, s20, {VM_SEG}
    s_mul_i32 s21, s{S_W}, 28
    s_add_u32 s21, s21, s{S_T0}
    s_lshl_b32 s21, s21, 10
    s_add_u32 s{S_VM}, s{S_VM}, s21
    s_add_u32 s{S_VMN}, s{S_VM}, {VM}
    s_mov_b32 s{S_VM}, {DUMMY}
    s_mul_i32 s{S_FV}, s20, {flag_seg(F_VX)}
    s_add_u32 s{S_MN}, s{S_FV}, {flag_base(F_VM)}
    s_add_u32 s{S_FV}, s{S_FV}, {flag_base(F_VX)}
    s_lshl_b32 s21, s{S_P}, 7
    s_add_u32 s{S_MN}, s{S_MN}, s21
    s_mov_b32 s{S_FM}, {DUMMY}
    s_mov_b32 s{S_STEP}, 0
    s_mov_b32 s{S_MEM}, s{S_MB}
    s_mov_b32 s{S_PM}, s{S_PB}
    s_add_u32 s{S_RA}, s{S_MB}, {3*MEM_SEG}
    v_mov_b32 v{fl}, 0''')
    all_done(a, EXIT)
    if mode_fn: mode_fn(pd, pd+1)
    S_X = 36
    S_FC = 42
    a(f's_mov_b32 s{S_T0}, 0x7f000000')
    a('s_mov_b32 s56, s4\ns_mov_b32 s57, s5\ns_mov_b32 s58, 0\ns_mov_b32 s59, 0x20000')
    D2 = (16, 20)
    LS = a.label('Lvslow')
    a(f's_cmp_eq_u32 s{S_FAST}, 1\ns_cbranch_scc0 {LS}')
    def loop(sc1):
        st = Stamps(a, stamps)
        LOOP = a.label('Lv'); LAST = a.label('Lvlast'); Lok = a.label('Lvf')
        a(f"""{LOOP}:
        v_cmp_eq_u32 vcc, 0, v{fl}
        s_mov_b32 s{S_FC}, s{S_FV}
        s_cbranch_vccz {LOOP}_f
        buffer_load_dword v{fl}, v13, {SRD}, s{S_FV} offen sc1
        {LOOP}_f:""")
        for r in range(16): a(f'v_mov_b64 {vr(acc+2*r,2)}, 0')
        for hh in range(4): a(f's_add_u32 s{S_X+hh}, s{S_VX}, {hh*28672}')
        st.mark()
        poll_mem(a, S_MEM, (pd, pd+4), tmp, EXIT, MEMS, D2)
        st.mark(2)
        X = '' if OPT['nost'] else 'sc1'
        a(f'v_cmp_eq_u32 vcc, 0, v{fl}')
        if OPT['pre']:
            a('s_nop 0\ns_cmp_eq_u64 vcc, 0\ns_cselect_b32 s58, 0x10000000, 0')
            for k in range(OPT['pre']): a(f'buffer_load_dwordx4 {vr(vx+4*k+4*(k//2*0),4)}, v1, s[56:59], s{S_X+k//2} offen offset:{(k&1)*1024} sc1')
        a(f"""buffer_store_dword v{tmp+2}, v{14 if OPT['mgearly'] else 4}, {SRD}, s{S_T0 if OPT['mgearly'] else S_MG} offen {X}
        buffer_store_dwordx4 {vr(vmf,4)}, v1, {SRD}, s{S_VM} offen {X}
        buffer_store_dwordx4 {vr(vmf+4,4)}, v1, {SRD}, s{S_VM} offen offset:1024 {X}
        s_cmp_eq_u64 vcc, 0
        s_cselect_b32 s58, 0x10000000, 0
        s_mov_b32 s{S_VM}, s{S_VMN}
        s_add_u32 s{S_VMN}, s{S_VMN}, {VM_SEG}
        s_add_u32 s{S_VX}, s{S_VX}, {VX_SEG}
        s_add_u32 s{S_FV}, s{S_FV}, {flag_seg(F_VX)}
        s_waitcnt lgkmcnt(0)
        s_barrier""")
        st.mark(2)
        def wread(i):
            o = i*2048; R = wr+8*(i & 1)
            return [f'ds_read_b128 {vr(R,4)}, v7 offset:{o}', f'ds_read_b128 {vr(R+4,4)}, v7 offset:{o+1024}']
        VL = lambda srd: [f'buffer_load_dwordx4 {vr(vx+8*hh+4*t,4)}, v1, {srd}, s{S_X+hh} offen offset:{t*1024} sc1' for hh in range(4) for t in range(2)]
        V = VL('s[56:59]')[OPT['pre']:]
        V = [f'buffer_load_dword v{fl}, v13, {SRD}, s{S_FV} offen sc1'] + V
        V += [f'buffer_store_dword v5, v12, {SRD}, s{S_RA} offen {sc1}']
        fi = OPT['fpos']
        if OPT['novx']: V = [x if 'dwordx4' not in x else f'buffer_load_dword v{tmp+3}, v14, {SRD}, s{S_RA} offen' for x in V]
        V.insert(fi, f's_waitcnt vmcnt({fi})\ns_barrier\nbuffer_store_dword v15, v14, {SRD}, s{S_FM} offen sc1' if fi < 99 else '')
        a(f's_waitcnt vmcnt({3+OPT["pre"]})')
        for b in range(7): a(f'ds_read_b128 {vr(memA+4*b,4)}, v1 offset:{MEMS+1024*b}')
        for ins in wread(0) + wread(1): a(ins)
        a('s_waitcnt lgkmcnt(4)')
        regs = [(ui, b) for ui in range(6) for b in range(7)]
        k = 0
        for i in range(14):
            for q in range(3):
                ui, b = regs[k]; k += 1
                a(f'v_smfmac_f32_16x16x64_bf16 {vr(acc+4*ui,4)}, {vr(memA+4*b,4)}, {wreg(ui*7+b, nA, vb)}, v6')
                if i > 0 and i+1 < 14 and q < 2: a(wread(i+1)[q])
                if q == 2: a(f's_waitcnt lgkmcnt({2 if i < 13 else 0})')
            a(f'v_smfmac_f32_16x16x64_bf16 {vr(acc+4*(6+i//7),4)}, {vr(memA+4*(i%7),4)}, {vr(wr+8*(i&1),8)}, v6')
            if i < len(V): a(V[i])
        st.mark(2)
        a(f"""s_mov_b32 s{S_RA}, s{S_MEM}
        s_mov_b32 s{S_FM}, s{S_MN}
        s_add_u32 s{S_MN}, s{S_MN}, {flag_seg(F_VM)}
        s_nop 0""")
        ring_off(a, S_MEM, 1, MEM_SEG, S_MB)
        for t in range(2):
            for lo in range(2):
                A0 = acc+4*(lo*2+t); A1 = acc+4*((lo+2)*2+t)
                for r in range(4): a(f'v_permlane32_swap_b32 v{A0+r}, v{A1+r}')
                for r in range(4): a(f'v_add_f32 v{A0+r}, v{A0+r}, v{A1+r}')
                a(f'v_cvt_pk_bf16_f32 v{vmf+4*t+2*lo}, v{A0}, v{A0+1}')
                a(f'v_cvt_pk_bf16_f32 v{vmf+4*t+2*lo+1}, v{A0+2}, v{A0+3}')
        a(f"""s_cmp_ge_u32 s{S_STEP}, {NSTEP-1}
        s_cbranch_scc1 {LAST}
        s_cmp_lg_u32 s58, 0
        s_cbranch_scc1 {Lok}""")
        wait_flags(a, 13, S_FC, tmp+3, EXIT)
        for x in VL(SRD): a(x)
        a(f'{Lok}:')
        st.mark(2)
        if stamps >= 3: a('s_waitcnt vmcnt(3)')
        st.mark(3)
        if stamps >= 3: a('s_waitcnt vmcnt(1)')
        st.mark(3)
        if stamps >= 3: a('s_waitcnt vmcnt(0)')
        st.mark(3)
        L = a.label('Lpp'); UA = a.label('LuA'); UB = a.label('LuB'); J = a.label('LuJ')
        OA = lambda t, ab: oa+8*t+4*ab
        pf2 = memA
        def issue(r):
            a(f"""buffer_load_dwordx4 {vr(r,4)}, v8, {SRD}, s{S_PM} offen sc1
            buffer_load_dwordx4 {vr(r+4,4)}, v8, {SRD}, s{S_PM} offen offset:1024 sc1
            buffer_load_dwordx4 {vr(r+8,4)}, v9, {SRD}, s{S_PM} offen sc1""")
        mf = lambda D, A, B, C: f'v_mfma_f32_16x16x32_bf16 {vr(D,4)}, {vr(A,4)}, {vr(B,4)}, {C}'
        def use(p, o=3):
            a(f's_waitcnt vmcnt({o+2})')
            a(mf(OA(0,0), vx, p, 0)); a(f'v_max3_u32 v{tmp}, v{p}, v{p+1}, v{p+2}')
            a(mf(OA(0,1), vx+8, p, 0)); a(mf(OA(1,0), vx+4, p, 0)); a(mf(OA(1,1), vx+12, p, 0))
            a(f's_waitcnt vmcnt({o+1})')
            a(mf(OA(0,1), vx+24, p+4, vr(OA(0,1),4))); a(f'v_max3_u32 v{tmp+1}, v{p+3}, v{p+4}, v{p+5}')
            a(mf(OA(1,1), vx+28, p+4, vr(OA(1,1),4))); a(f'v_max3_u32 v{tmp}, v{tmp}, v{p+6}, v{p+7}')
            a(mf(OA(0,0), vx+16, p+4, vr(OA(0,0),4))); a(mf(OA(1,0), vx+20, p+4, vr(OA(1,0),4)))
            a(f"""s_waitcnt vmcnt({o})
            v_max3_u32 v{tmp+1}, v{tmp+1}, v{p+8}, v{p+9}
            v_max3_u32 v{tmp}, v{tmp}, v{p+10}, v{p+11}
            v_max_u32 v{tmp}, v{tmp}, v{tmp+1}
            v_cmp_eq_u32 vcc, -1, v{tmp}""")
            a(mf(OA(0,0), vmf, p+8, vr(OA(0,0),4))); a(mf(OA(1,0), vmf+4, p+8, vr(OA(1,0),4)))
        if OPT['pcan']:
            C = a.label('Lcan'); CO = a.label('Lcok')
            def cl(r): a(f'buffer_load_dwordx4 {vr(r,4)}, v9, {SRD}, s{S_PM} offen sc1')
            def cc(r): a(f"""s_waitcnt vmcnt(1)
                v_max3_u32 v{tmp}, v{r}, v{r+1}, v{r+2}
                v_max_u32 v{tmp}, v{tmp}, v{r+3}
                v_cmp_eq_u32 vcc, -1, v{tmp}""")
            cl(pf2); a('s_nop 15\ns_nop 15')
            a(f'{C}:'); cl(pf2+4); cc(pf2); a(f's_cbranch_vccz {CO}'); cl(pf2)
            a(f's_sub_u32 s{S_TO}, s{S_TO}, 1\ns_cbranch_scc1 {EXIT}')
            cc(pf2+4); a(f's_cbranch_vccnz {C}\n{CO}:')
        if OPT['pcan'] or not OPT['p2']:
            a(f'{L}:')
            issue(pf)
            a(f's_sub_u32 s{S_TO}, s{S_TO}, 1\ns_cbranch_scc1 {EXIT}')
            use(pf, 0)
            a(f's_cbranch_vccnz {L}')
        else:
            issue(pf)
            a('s_nop 15\n'*OPT['stag'])
            a(f'{L}:')
            issue(pf2)
            use(pf)
            a(f's_cbranch_vccz {J}')
            issue(pf)
            a(f"""s_sub_u32 s{S_TO}, s{S_TO}, 1
            s_cbranch_scc1 {EXIT}""")
            use(pf2)
            a(f's_cbranch_vccnz {L}')
        a(f'{J}:')
        st.mark(2)
        R = acc
        a('s_nop 5')
        for r in range(4):
            a(f'v_add_f32_dpp v{R+4+r}, v{OA(0,1)+r}, v{OA(0,0)+r} row_ror:8 row_mask:0xf bank_mask:0x3')
        for r in range(4):
            a(f'v_add_f32_dpp v{R+4+r}, v{OA(1,0)+r}, v{OA(1,1)+r} row_ror:8 row_mask:0xf bank_mask:0xc')
        a(f'ds_write_b128 v10, {vr(R+4,4)}')
        a(f's_add_u32 s{S_STEP}, s{S_STEP}, 1')
        a('s_waitcnt lgkmcnt(0)\ns_barrier')
        st.mark(2)
        a(f"""ds_read_b128 {vr(R,4)}, v11
        s_waitcnt lgkmcnt(0)
        v_permlane32_swap_b32 v{R}, v{R+2}
        v_permlane32_swap_b32 v{R+1}, v{R+3}
        v_add_f32 v{R}, v{R}, v{R+2}
        v_add_f32 v{R+1}, v{R+1}, v{R+3}
        s_nop 1
        v_permlane16_swap_b32 v{R}, v{R+1}
        v_add_f32 v{R}, v{R}, v{R+1}
        v_mov_b32 v{R+1}, v{R}
        s_nop 1
        v_permlane16_swap_b32 v{R}, v{R+1}
        v_cvt_pk_bf16_f32 v{tmp+2}, v{R}, v{R+1}
        v_min_u32 v{tmp+2}, 0xfffffffe, v{tmp+2}
        buffer_store_dword v{tmp+2}, v12, {SRD}, s{S_MEM} offen {sc1}
        s_mov_b32 s{S_MG}, s{S_MGN}
        s_add_u32 s{S_MGN}, s{S_MGN}, {MEM_SEG}""")
        if OPT['mgearly']: a(f'buffer_store_dword v{tmp+2}, v4, {SRD}, s{S_MG} offen sc1')
        st.mark(2)
        st.flush(tmp, 20)
        ring_off(a, S_PM, 0, PM_SEG, S_PB)
        a(f"""s_branch {LOOP}
        {LAST}:
        buffer_store_dwordx4 {vr(vmf,4)}, v1, {SRD}, s{S_VM} offen sc1
        buffer_store_dwordx4 {vr(vmf+4,4)}, v1, {SRD}, s{S_VM} offen offset:1024 sc1
        s_waitcnt vmcnt(0)
        s_barrier
        buffer_store_dword v15, v14, {SRD}, s{S_FM} offen sc1
        s_branch {DONE}""")
    loop('')
    a(f'{LS}:')
    loop('sc1')
    a(f'{DONE}:')
    if stamps: stamp_dump(a, None)
    if HANDOVER: a(f's_waitcnt vmcnt(0) lgkmcnt(0)\ns_barrier\ns_cmp_eq_u32 s{S_L}, 0\ns_cbranch_scc1 {PV_ENTRY}')
    a(f's_branch {EXIT}')
```

```python
import sys
from asmlib import *
from layout import *
import chain, workers
from chain import SRD, S_W, S_SLOT, S_L, S_P, S_FAST, S_STEP, S_TO

KN = 'interleave_layers__memory_aug_recurrent_mem_tr__glu_gated_glu__prompt'
R_IDLE, R_K, R_V, R_P, R_VX, R_B1, R_B2, R_PV = range(8)

def role_table():
    T = [R_IDLE]*256
    def enc(role, l=0, p=0, u=0): return role | (l << 4) | (p << 8) | (u << 16)
    for l in range(2):
        for r in range(16): T[l*32+r] = enc(R_K, l, r)
        for r in range(14): T[l*32+16+r] = enc(R_V, l, r)
    free = {x: list(range(x*32, x*32+32)) for x in range(2, 8)}
    for h in range(16):
        x = 2 + h % 6
        for u in range(workers.N_P): T[free[x].pop(0)] = enc(R_P, 0, h, u)
        for u in range(3): T[free[x].pop(0)] = enc(R_VX, 0, h, u)
    teams = [(R_B2, u) for u in range(workers.N_B2)] + [(R_PV, u) for u in range(workers.N_PV)]
    for (r, u), x in zip(teams, [2, 3, 4, 5, 6, 6, 7]):
        for c in range(7): T[free[x].pop(0)] = enc(r, 0, c, u)
    slots = free[6] + free[7] + free[2] + free[3] + free[4] + free[5]
    k = 0
    for c in range(14):
        for u in range(workers.N_B1): T[slots[k]] = enc(R_B1, 0, c, u); k += 1
    if workers.N_PV == 4:
        for c, sl in enumerate(slots[k:] + [30, 31, 62, 63]): T[sl] = enc(R_PV, 0, c, 3)
    return T

def kd(name, vgpr=512, sgpr=102, acc=256):
    return f'''.amdhsa_kernel {name}
  .amdhsa_next_free_vgpr {vgpr}
  .amdhsa_next_free_sgpr {sgpr}
  .amdhsa_accum_offset {acc}
  .amdhsa_group_segment_fixed_size 0
  .amdhsa_kernarg_size 112
  .amdhsa_user_sgpr_count 2
  .amdhsa_user_sgpr_kernarg_segment_ptr 1
  .amdhsa_system_sgpr_workgroup_id_x 1
.end_amdhsa_kernel
'''

DS = 's[80:83]'
PSTAMP = 0
def main_kernel(a, name, roles, stamps=False, force_slow=False, with_prep=True):
    EXIT = f'{name}_exit'
    a(f'.globl {name}\n.p2align 8\n.type {name},@function\n{name}:')
    a(f"""s_cmp_ge_u32 s2, 256
    s_cbranch_scc1 {EXIT}
    s_memrealtime s[78:79]
    s_load_dwordx2 s[4:5], s[0:1], 104
    s_load_dwordx2 s[80:81], s[0:1], 96
    s_load_dwordx4 s[40:43], s[0:1], 0
    s_load_dwordx4 s[44:47], s[0:1], 16
    s_load_dwordx4 s[48:51], s[0:1], 32
    s_getreg_b32 s7, hwreg(HW_REG_XCC_ID)
    s_and_b32 s7, s7, 7
    v_lshrrev_b32 v1, 6, v0
    s_mov_b32 s82, 256
    v_readfirstlane_b32 s{S_W}, v1
    s_mov_b32 s83, 0x20000
    s_mov_b32 s10, 0x10000000
    s_mov_b32 s11, 0x20000
    s_getpc_b64 s[22:23]
    s_waitcnt lgkmcnt(0)
    s_mov_b32 s8, s4
    s_mov_b32 s9, s5
    s_or_b32 s78, s78, 1
    {'s_mov_b32 s98, s78' if stamps else ''}""")
    Lw = a.label('Lra'); Lnat = a.label('Lnat'); Lov = a.label('Lov'); Lov2 = a.label('Lov2'); Lov3 = a.label('Lov3')
    TL = a.label('Ltouch'); TJ = a.label('Ltj')
    a(f"""s_cmp_eq_u32 s{S_W}, 0
    s_cbranch_scc1 {TL}
    s_cmp_lg_u32 s{S_W}, 1
    s_cbranch_scc1 {TJ}
    s_bfe_u32 s20, s2, 0x50003
    s_lshl_b32 s20, s20, 11
    v_and_b32 v1, 15, v0
    v_lshlrev_b32 v1, 7, v1
    v_add_u32 v1, s20, v1
    v_min_u32 v2, {name}_tab-{name}-256, v1
    global_load_dword v250, v2, s[22:23]
    s_branch {TJ}
    {TL}:
    s_mov_b64 exec, 1
    s_lshl_b32 s21, s7, 2
    v_mov_b32 v1, 0
    v_mov_b32 v250, 1
    v_mov_b32 v252, s78
    v_mov_b32 v253, s79
    v_mov_b32 v254, 0
    v_mov_b32 v255, 0
    buffer_atomic_add v250, v1, {DS}, s21 offen sc0 sc1
    buffer_atomic_cmpswap_x2 v[252:255], v1, {DS}, 0 offen offset:128 sc0 sc1
    s_mov_b64 exec, -1
    {TJ}:""")
    def hook():
        a(f"""v_readfirstlane_b32 s6, v250
        v_readfirstlane_b32 s20, v252
        v_readfirstlane_b32 s21, v253
        s_cmp_eq_u64 s[20:21], 0
        s_cselect_b64 s[78:79], s[78:79], s[20:21]""")
    if with_prep: prep.prep_body(a, a.label('Lprep_end'), hook, PSTAMP or stamps)
    else:
        a('s_waitcnt vmcnt(0)'); hook()
    a(f"""s_mov_b32 s{S_TO}, 0x80000
    s_mov_b32 s{S_FAST}, 1
    s_waitcnt vmcnt(0)
    s_barrier
    s_cmp_lg_u32 s{S_W}, 0
    s_cbranch_scc1 {Lw}
    s_mov_b64 exec, 1
    v_mov_b32 v1, 0
    v_mov_b32 v2, s78
    v_mov_b32 v3, s79
    s_lshl_b32 s21, s2, 7
    s_add_u32 s21, s21, {DONEF}
    buffer_store_dwordx2 v[2:3], v1, {SRD}, s21 offen sc1
    s_lshl_b32 s{S_SLOT}, s7, 5
    s_add_u32 s{S_SLOT}, s{S_SLOT}, s6
    s_cmp_lt_u32 s6, 32
    s_cbranch_scc1 {Lnat}
    v_mov_b32 v2, 1
    buffer_atomic_add v2, v1, {DS}, 0 offen offset:32 sc0 sc1
    s_waitcnt vmcnt(0)
    v_readfirstlane_b32 s22, v2
    s_mov_b64 exec, 0xff
    v_mbcnt_lo_u32_b32 v1, -1, 0
    v_lshlrev_b32 v1, 2, v1""")
    a(f'''
    {Lov}:
    buffer_load_dword v2, v1, {DS}, 0 offen sc1
    s_sub_u32 s{S_TO}, s{S_TO}, 1
    s_cbranch_scc1 {EXIT}
    s_waitcnt vmcnt(0)
    s_mov_b32 s23, 0''')
    for x in range(8):
        a(f'v_readlane_b32 s24, v2, {x}\ns_add_u32 s23, s23, s24')
    a(f'''s_cmp_lt_u32 s23, 256
    s_cbranch_scc1 {Lov}
    s_mov_b32 s23, 0
    {Lov2}:
    v_readlane_b32 s24, v2, s23
    s_min_u32 s24, s24, 32
    s_sub_u32 s25, 32, s24
    s_cmp_lt_u32 s22, s25
    s_cbranch_scc1 {Lov3}
    s_sub_u32 s22, s22, s25
    s_add_u32 s23, s23, 1
    s_cmp_lt_u32 s23, 8
    s_cbranch_scc1 {Lov2}
    s_mov_b32 s{S_SLOT}, 30
    s_branch {Lnat}
    {Lov3}:
    s_lshl_b32 s{S_SLOT}, s23, 5
    s_add_u32 s{S_SLOT}, s{S_SLOT}, s24
    s_add_u32 s{S_SLOT}, s{S_SLOT}, s22
    {Lnat}:
    s_mov_b64 exec, -1
    v_mov_b32 v1, 0
    v_mov_b32 v2, s{S_SLOT}
    v_mov_b32 v3, s78
    v_mov_b32 v4, s79
    ds_write_b96 v1, v[2:4]
    s_waitcnt lgkmcnt(0)
    {Lw}:
    s_barrier
    v_mov_b32 v1, 0
    ds_read_b96 v[2:4], v1
    s_getpc_b64 s[20:21]
    {name}_pc:
    s_add_u32 s20, s20, {name}_tab-{name}_pc
    s_addc_u32 s21, s21, 0
    s_waitcnt lgkmcnt(0)
    v_readfirstlane_b32 s{S_SLOT}, v2
    v_readfirstlane_b32 s78, v3
    v_readfirstlane_b32 s79, v4
    s_and_b32 s{S_SLOT}, s{S_SLOT}, 255
    s_lshl_b32 s22, s{S_SLOT}, 2
    s_load_dword s22, s[20:21], s22
    s_barrier
    s_waitcnt lgkmcnt(0)
    s_bfe_u32 s{S_L}, s22, 0x10004
    s_bfe_u32 s{S_P}, s22, 0x80008
    s_bfe_u32 s19, s22, 0x80010
    s_and_b32 s22, s22, 15
    {'s_memrealtime s[100:101]' if stamps else ''}''')
    labels = {r: a.label(f'Lrole{r}') for r in roles}
    Lch = a.label('Lch')
    for r in roles:
        a(f's_cmp_eq_u32 s22, {r}\ns_cbranch_scc1 {labels[r]}')
    a(f'{EXIT}:\ns_endpgm')
    def chain_mode(va, vd, need=30):
        L = a.label('Lcm'); Ld = a.label('Lcmd')
        a(f'''v_and_b32 v{va}, 7, v0
        v_lshlrev_b32 v{va}, 2, v{va}
        {L}:
        buffer_load_dword v{vd}, v{va}, {DS}, 0 offen sc1
        s_sub_u32 s{S_TO}, s{S_TO}, 1
        s_cbranch_scc1 {EXIT}
        s_waitcnt vmcnt(0)
        s_lshr_b32 s23, s{S_SLOT}, 5
        s_nop 3
        v_readlane_b32 s22, v{vd}, s23
        s_cmp_ge_u32 s22, {need}
        s_cbranch_scc1 {Ld}
        s_mov_b32 s23, 0''')
        for x in range(8):
            a(f'v_readlane_b32 s22, v{vd}, {x}\ns_add_u32 s23, s23, s22')
        a(f'''s_cmp_lt_u32 s23, 256
        s_cbranch_scc1 {L}
        s_mov_b32 s{S_FAST}, 0
        {Ld}:''')
        if force_slow: a(f's_mov_b32 s{S_FAST}, 0')
    for r in roles:
        a(f'{labels[r]}:')
        if r in (R_K, R_V, R_B2): roles[r](a, EXIT, stamps, chain_mode)
        else: roles[r](a, EXIT, stamps)
    a(f'.p2align 2\n.type {name}_tab,@object\n{name}_tab:')
    T = role_table()
    for i in range(0, 256, 8):
        a('.long ' + ', '.join(f'0x{x:x}' for x in T[i:i+8]))

import workers, prep
ALL = {R_K: chain.k_cu, R_V: chain.v_cu, R_P: workers.p_role, R_VX: workers.vx_role, R_B1: workers.b1_role, R_B2: workers.b2_role, R_PV: workers.pv_role}

HEADER = open('cdna_kernels/' + KN + '.s.ref').read().split('; Override launch geometry')[0]

def build(roles=None, stamps=0, force_slow=False, with_prep=True):
    a = Asm()
    a(HEADER)
    name = KN + '_kernel'
    a('; @launch grid=(256,1,1) block=(256,1,1) lds=163840')
    a('.amdgcn_target "amdgcn-amd-amdhsa--gfx950"\n.text')
    chain.HANDOVER = False
    chain.PREP = with_prep
    main_kernel(a, name, {r: ALL[r] for r in (ALL if roles is None else roles)}, stamps, force_slow, with_prep)
    a('.section .rodata,"a"\n.p2align 6')
    a(kd(name))
    return a.text()

def with_timeout_diag(txt):
    lines = txt.split('\n'); out = []; stubs = []; n = 0
    for i, ln in enumerate(lines):
        if ln.strip() == f's_cbranch_scc1 {KN}_kernel_exit' and lines[i-1].strip().startswith('s_sub_u32 s18'):
            n += 1
            out.append(f'    s_cbranch_scc1 Lto_{n}   ; site {n}')
            stubs.append(f'Lto_{n}:\n    s_mov_b32 s99, {n}\n    s_branch Lto_common')
        elif ln.startswith(f'.type {KN}_kernel_tab') :
            out.pop()
            out += stubs
            out.append(f"""Lto_common:
    s_mov_b64 exec, 1
    s_lshl_b32 s20, s13, 2
    s_add_u32 s20, s20, s12
    s_lshl_b32 s20, s20, 4
    s_add_u32 s20, s20, {STAMP+0x900000}
    v_mov_b32 v1, 0
    v_mov_b32 v4, s99
    v_mov_b32 v5, s17
    v_mov_b32 v6, s44
    v_mov_b32 v7, s47
    buffer_store_dwordx4 v[4:7], v1, s[8:11], s20 offen
    s_endpgm
.p2align 2""")
            out.append(ln)
        else: out.append(ln)
    return '\n'.join(out).replace('s_mov_b32 s18, 0x80000', 's_mov_b32 s18, 0x4000')

if __name__ == '__main__':
    E = 'exp/'
    open(E+'chain1.s', 'w').write(build([R_K, R_V], 1, with_prep=False))
    open(E+'chain2.s', 'w').write(build([R_K, R_V], 2, with_prep=False))
    open(E+'prep.s', 'w').write(build([]))
    for nm, r in (('p', R_P), ('vx', R_VX), ('b1', R_B1), ('b2', R_B2), ('pv', R_PV)):
        open(E+f'r_{nm}.s', 'w').write(build([r], 1, with_prep=False))
    open(E+'full.s', 'w').write(build())
    open(E+'full_to.s', 'w').write(with_timeout_diag(build()))
    open(E+'slow_to.s', 'w').write(with_timeout_diag(build(force_slow=True)))
    open(E+'full_cy.s', 'w').write(build(stamps=1))
    chain.STAMP_OP = 's_memrealtime'
    open(E+'chain3.s', 'w').write(build([R_K, R_V], 2, with_prep=False))
    open(E+'full_st.s', 'w').write(build(stamps=1))
    open(E+'prep_st.s', 'w').write(build([], stamps=1))
```

```python
from asmlib import *
from layout import *
from workers import gather_pairs, mf
SRD = 's[8:11]'
SCALE = 0x3db8aa3b
WST = 'sc1'
NT = ''

def prep_body(a, END, hook, stamps=0):
    n_st = [0]
    def mark():
        if stamps:
            a(f's_memrealtime s[{60+2*n_st[0]}:{61+2*n_st[0]}]'); n_st[0] += 1
    def dump():
        if not stamps: return
        a(f'''s_waitcnt vmcnt(0)
        s_memrealtime s[76:77]
        s_waitcnt lgkmcnt(0)
        s_lshl_b32 s20, s2, 2
        s_add_u32 s20, s20, s12
        s_lshl_b32 s20, s20, 6
        s_add_u32 s20, s20, {STAMP+0x800000}
        v_mov_b32 v2, 0''')
        for k in range(9):
            a(f'v_mov_b32 v3, s{60+2*k}\nbuffer_store_dword v3, v2, s[8:11], s20 offen offset:{4*k}')
    EXIT = END
    mark()
    a(f'''v_and_b32 v7, 63, v0
    v_lshlrev_b32 v1, 4, v7
    v_lshlrev_b32 v2, 4, v0
    v_mov_b32 v16, -1
    v_mov_b32 v17, -1
    v_mov_b32 v18, -1
    v_mov_b32 v19, -1
    v_mov_b32 v20, 0
    v_mov_b32 v21, 0
    v_mov_b32 v22, 0
    v_mov_b32 v23, 0''')
    LN = a.label('Lln')
    def fills():
        nb = (SENT1-SENT0)//8192
        skip = [0, 4, (MEMG-SENT0)//8192, (MEMG-SENT0)//8192+64]
        OOBS = 0x70000000
        for rnd in range(2):
            a(f's_lshl_b32 s20, s2, 13\ns_add_u32 s20, s20, {SENT0 + 256*8192*rnd}')
            if rnd == 0:
                for b in skip: a(f's_cmp_eq_u32 s2, {b}\ns_cselect_b32 s20, {OOBS}, s20')
            else:
                a(f's_cmp_ge_u32 s2, {nb-256}\ns_cselect_b32 s20, {OOBS}, s20')
            a(f'''s_add_u32 s21, s20, 4096
            buffer_store_dwordx4 v[16:19], v2, {SRD}, s20 offen {WST}
            buffer_store_dwordx4 v[16:19], v2, {SRD}, s21 offen {WST}''')
        a(f's_mul_i32 s20, s2, 20480\ns_add_u32 s20, s20, {PF}')
        for k in range(5): a(f'buffer_store_dwordx4 v[16:19], v2, {SRD}, s20 offen {WST}\ns_add_u32 s20, s20, 4096')
        nz = (ZERO1-ZERO0)//4096
        assert (ZERO1-ZERO0) % 4096 == 0 and 256 <= nz <= 512
        for rnd in range(2):
            a(f's_lshl_b32 s20, s2, 12\ns_add_u32 s20, s20, {ZERO0 + 256*4096*rnd}')
            if rnd: a(f's_cmp_ge_u32 s2, {nz-256}\ns_cselect_b32 s20, {OOBS}, s20')
            a(f'buffer_store_dwordx4 v[20:23], v2, {SRD}, s20 offen {WST}')
    a(f's_cmp_ge_u32 s2, 224\ns_cbranch_scc1 {LN}')
    LV = a.label('Lfv'); LJ = a.label('Lfj')
    a(f'''s_lshr_b32 s20, s2, 3
    s_mul_i32 s21, s20, 37
    s_lshr_b32 s21, s21, 8
    s_mul_i32 s22, s21, 7
    s_sub_u32 s14, s20, s22
    s_and_b32 s22, s2, 7
    s_lshl_b32 s22, s22, 1
    s_lshl_b32 s13, s21, 1
    s_and_b32 s13, s13, 4
    s_add_u32 s22, s22, s13
    s_and_b32 s13, s21, 1
    s_add_u32 s15, s22, s13
    s_and_b32 s15, s15, 15
    s_lshl_b32 s13, s21, 3
    s_and_b32 s13, s13, 16
    s_add_u32 s13, s13, s15
    s_lshl_b32 s16, s14, 2
    s_add_u32 s16, s16, s12
    v_and_b32 v3, 15, v7
    v_lshrrev_b32 v4, 4, v7
    v_lshrrev_b32 v5, 2, v3
    v_and_b32 v6, 3, v3
    v_lshl_add_u32 v5, v5, 3, v6
    v_lshlrev_b32 v5, 13, v5
    v_lshl_add_u32 v5, v4, 4, v5
    s_lshl_b32 s17, s15, 9
    s_lshl_b32 s37, s12, 13
    s_mov_b32 s26, {448*8192}
    s_mov_b32 s27, 0x20000
    s_mov_b32 s30, {448*8192}
    s_mov_b32 s31, 0x20000
    s_cmp_ge_u32 s13, 16
    s_cbranch_scc1 {LV}
    s_mov_b32 s24, s44
    s_mov_b32 s25, s45
    s_mov_b32 s28, s46
    s_mov_b32 s29, s47
    v_lshrrev_b32 v24, 2, v7
    v_lshlrev_b32 v24, 13, v24
    v_and_b32 v25, 3, v7
    v_lshl_add_u32 v24, v25, 7, v24
    s_lshl_b32 s21, s16, 17
    s_add_u32 s21, s21, s17
    buffer_load_dword v251, v24, s[24:27], s21 offen {NT}
    s_mov_b32 s32, {SCALE}
    s_mov_b32 s33, {WA}
    s_lshr_b32 s20, s16, 1
    s_lshl_b32 s20, s20, 5
    s_and_b32 s21, s16, 1
    s_lshl_b32 s21, s21, 2
    s_add_u32 s20, s20, s21
    s_lshl_b32 s20, s20, 13
    s_add_u32 s20, s20, s17''')
    for kd in range(8):
        a(f's_add_u32 m0, s37, {kd*1024 - kd*64}\ns_nop 0\nbuffer_load_dwordx4 v5, s[28:31], s20 offen offset:{kd*64} {NT} lds')
    a(f"""s_branch {LJ}
    {LV}:
    s_mov_b32 s24, s48
    s_mov_b32 s25, s49
    s_mov_b32 s28, s50
    s_mov_b32 s29, s51
    v_lshrrev_b32 v24, 2, v7
    v_lshlrev_b32 v24, 13, v24
    v_and_b32 v25, 3, v7
    v_lshl_add_u32 v24, v25, 7, v24
    s_lshl_b32 s21, s16, 17
    s_add_u32 s21, s21, s17
    buffer_load_dword v251, v24, s[24:27], s21 offen {NT}
    s_mov_b32 s32, 1.0
    s_mov_b32 s33, {WV}
    v_lshrrev_b32 v8, 1, v7
    v_mul_u32_u24 v8, 896, v8
    v_and_b32 v9, 1, v7
    v_lshl_add_u32 v8, v9, 4, v8
    s_mul_i32 s21, s15, {256*896}
    s_lshl_b32 s20, s16, 5
    s_add_u32 s21, s21, s20""")
    for kd in range(8):
        a(f's_add_u32 m0, s37, {kd*1024}\ns_add_u32 s20, s21, {kd*32*896}\nbuffer_load_dwordx4 v8, s[28:31], s20 offen {NT} lds')
    a(f'{LJ}:')
    mark()
    AF = lambda n, ab, kd: 64*(n & 1) + 32*ab + 4*kd
    a(f"""v_lshrrev_b32 v24, 3, v7
    v_and_b32 v25, 7, v7
    v_bfe_u32 v26, v7, 4, 1
    v_xor_b32 v25, v25, v26
    v_lshlrev_b32 v24, 13, v24""")
    for rg in range(4):
        a(f"""v_xor_b32 v26, {2*rg}, v25
        v_lshl_add_u32 v{10+rg}, v26, 4, v24
        v_add_u32 v{10+rg}, {rg*8*8192}, v{10+rg}""")
    a(f"""s_lshl_b32 s38, s12, 15
    s_add_u32 s38, s38, 32768
    v_lshrrev_b32 v24, 2, v3
    v_lshlrev_b32 v14, 10, v24
    v_lshl_add_u32 v14, v6, 7, v14
    v_lshlrev_b32 v24, 1, v24
    v_lshrrev_b32 v25, 1, v6
    v_or_b32 v24, v24, v25
    v_xor_b32 v24, v24, v4
    v_lshl_add_u32 v14, v24, 4, v14
    v_add_u32 v14, s38, v14
    v_xor_b32 v15, 64, v14""")
    def adma(n):
        a(f"""s_add_u32 s34, s12, {4*n}
        s_lshl_b32 s34, s34, 18
        s_add_u32 s34, s34, s17""")
        for cg in range(4):
            for rg in range(4):
                a(f's_add_u32 m0, s38, {(n&1)*16384 + (cg*4+rg)*1024 - cg*128}\ns_nop 0\nbuffer_load_dwordx4 v{10+rg}, s[24:27], s34 offen offset:{cg*128} {NT} lds')
    def aread(n):
        for ab in range(2):
            for kd in range(8):
                a(f'ds_read_b128 {ar(AF(n,ab,kd),4)}, v{14+(kd&1)} offset:{(n&1)*16384 + (kd>>1)*4096 + ab*512}')
    adma(0); adma(1)
    fills()
    a('s_waitcnt vmcnt(43)')
    hook()
    a('s_barrier')
    mark()
    LB = a.label('Lfb'); LC = a.label('Lfc')
    a(f's_cmp_ge_u32 s13, 16\ns_cbranch_scc1 {LB}')
    for i in range(32): a(f'ds_read_b128 {vr(128+4*i,4)}, v1 offset:{i*1024}')
    a(f"""s_branch {LC}
    {LB}:
    v_lshlrev_b32 v9, 8, v4
    v_lshl_add_u32 v9, v3, 3, v9""")
    for i in range(32):
        for jh in range(2): a(f'ds_read_b64_tr_b16 {vr(128+4*i+2*jh,2)}, v9 offset:{i*1024+jh*128}')
        if i % 4 == 3: a('s_waitcnt lgkmcnt(4)')
    a(f"""{LC}:
    s_mul_i32 s36, s15, 28
    s_lshl_b32 s20, s14, 2
    s_add_u32 s36, s36, s20
    s_mul_i32 s36, s36, 14336
    s_add_u32 s36, s36, s33
    s_lshl_b32 s20, s12, 10
    s_add_u32 s36, s36, s20""")
    AC = 64
    def adma_list(n):
        out = [f's_add_u32 s34, s12, {4*n}', 's_lshl_b32 s34, s34, 18', 's_add_u32 s34, s34, s17']
        for cg in range(4):
            for rg in range(4):
                out += [f's_add_u32 m0, s38, {(n&1)*16384 + (cg*4+rg)*1024 - cg*128}', f'buffer_load_dwordx4 v{10+rg}, s[24:27], s34 offen offset:{cg*128} {NT} lds', '']
        return out
    def epi(n):
        A0 = AC + 32*(n & 1); out = []
        for tt in range(4):
            O = 24+4*tt
            for ab in range(2):
                A = A0+16*ab+4*tt
                out += [f'v_mul_f32 v{A+r}, s32, v{A+r}' for r in range(4)]
                out += [f'v_cvt_pk_bf16_f32 v{O+2*ab}, v{A}, v{A+1}', f'v_cvt_pk_bf16_f32 v{O+2*ab+1}, v{A+2}, v{A+3}']
            out += [f's_add_u32 s20, s36, {tt*14336 + n*4096}\nbuffer_store_dwordx4 {vr(O,4)}, v1, {SRD}, s20 offen {WST}']
        return out
    a('s_waitcnt vmcnt(27)')
    aread(0)
    for n in range(4):
        if n == 3: a(f's_cmp_ge_u32 s12, 2\ns_cbranch_scc1 {EXIT}_e2')
        a('s_waitcnt lgkmcnt(0)')
        mark()
        main = [mf(vr(AC+32*(n&1)+16*ab+4*tt,4), ar(AF(n,ab,kd),4), vr(128+4*(tt*8+kd),4), 0 if kd == 0 else None)
                for kd in range(8) for ab in range(2) for tt in range(4)]
        F = {}
        if n < 2:
            for k, x in enumerate(adma_list(n+2)): F.setdefault(k, []).append(x)
        if n >= 1:
            for k, x in enumerate(epi(n-1)): F.setdefault(8+k, []).append(x)
        for x in interleave(main, F): a(x)
        if n < 3:
            a(f's_waitcnt vmcnt({(27, 20, 4)[n]})')
            aread(n+1)
    a('s_nop 7')
    for x in epi(3): a(x)
    a(f's_branch {EXIT}_f\n{EXIT}_e2:\ns_nop 7')
    for x in epi(2): a(x)
    a(f'{EXIT}_f:')
    a(f'{EXIT}_d:')
    dump()
    a(f's_branch {END}')
    n_st[0] = 1
    X = 24
    a(f'''{LN}:
    s_sub_u32 s13, s2, 224
    s_lshl_b32 s14, s13, 2
    s_add_u32 s14, s14, s12
    s_mov_b32 s24, s40
    s_mov_b32 s25, s41
    s_mov_b32 s26, {2048*896}
    s_mov_b32 s27, 0x20000
    v_and_b32 v3, 15, v7
    v_lshrrev_b32 v4, 4, v7
    v_mul_u32_u24 v5, 896, v3
    v_lshl_add_u32 v5, v4, 4, v5
    s_mul_i32 s16, s14, 14336''')
    for ks in range(14): a(f'buffer_load_dwordx4 {vr(X+4*ks,4)}, v5, s[24:27], s16 offen offset:{ks*64} {NT}')
    fills()
    LM = a.label('Lm0')
    a(f'''s_cmp_ge_u32 s13, 2
    s_cbranch_scc1 {LM}
    s_mov_b32 s28, s42
    s_mov_b32 s29, s43
    s_mov_b32 s30, 7168
    s_mov_b32 s31, 0x20000
    s_lshl_b32 s21, s13, 15
    s_add_u32 s21, s21, {MEMF}
    s_lshl_b32 s22, s13, 19
    s_add_u32 s22, s22, {MEMG}''')
    for rnd in range(2):
        a(f'''v_add_u32 v8, {256*rnd}, v0
        v_min_u32 v8, 447, v8
        v_and_b32 v9, 7, v8
        v_mul_u32_u24 v10, 896, v9
        v_lshrrev_b32 v11, 3, v8
        v_lshl_add_u32 v10, v11, 4, v10
        buffer_load_dwordx4 v[12:15], v10, s[28:31], 0 offen
        v_lshlrev_b32 v10, 4, v8
        v_lshrrev_b32 v11, 4, v8
        v_lshlrev_b32 v11, 8, v11
        v_lshl_add_u32 v11, v9, 4, v11
        v_bfe_u32 v9, v8, 3, 1
        v_lshl_add_u32 v11, v9, 3, v11
        s_waitcnt vmcnt(0)''')
        for r in range(4): a(f'v_min_u32 v{12+r}, 0xfffffffe, v{12+r}')
        a(f'''buffer_store_dwordx4 v[12:15], v10, {SRD}, s22 offen sc1
        buffer_store_dword v12, v11, {SRD}, s21 offen sc1
        buffer_store_dword v13, v11, {SRD}, s21 offen offset:128 sc1
        buffer_store_dword v14, v11, {SRD}, s21 offen offset:4 sc1
        buffer_store_dword v15, v11, {SRD}, s21 offen offset:132 sc1
        s_nop 1''')
    a(f'{LM}:\ns_waitcnt vmcnt(0)')
    hook()
    mark()
    U = 96
    for i in range(56):
        a(f'v_lshlrev_b32 v{U+2*i}, 16, v{X+i}\nv_and_b32 v{U+2*i+1}, 0xffff0000, v{X+i}')
    a('v_mov_b32 v8, 0\nv_mov_b32 v9, 0\nv_mov_b32 v10, 0\nv_mov_b32 v11, 0')
    for i in range(56):
        a(f'v_pk_add_f32 v[8:9], v[8:9], {vr(U+2*i,2)}\nv_pk_fma_f32 v[10:11], {vr(U+2*i,2)}, {vr(U+2*i,2)}, v[10:11]')
    a('v_add_f32 v8, v8, v9\nv_add_f32 v9, v10, v11')
    for sw in ('16', '32'):
        a(f'''v_mov_b32 v10, v8
        v_mov_b32 v11, v9
        s_nop 1
        v_permlane{sw}_swap_b32 v8, v10
        v_permlane{sw}_swap_b32 v9, v11
        v_add_f32 v8, v8, v10
        v_add_f32 v9, v9, v11''')
    a(f'''s_mov_b32 s22, 0x3b124925
    s_mov_b32 s23, 0x3727c5ac
    v_mul_f32 v8, s22, v8
    v_mul_f32 v9, s22, v9
    v_fma_f32 v9, -v8, v8, v9
    v_max_f32 v9, 0, v9
    v_add_f32 v9, s23, v9
    v_rsq_f32 v10, v9
    s_add_u32 s20, s16, {XN}
    v_mul_f32 v8, v8, v10
    v_mov_b32 v11, v10
    v_sub_f32 v8, 0, v8
    v_mov_b32 v9, v8''')
    for ks in range(14):
        for d in range(4):
            i = 4*ks+d
            a(f'v_pk_fma_f32 {vr(U+2*i,2)}, {vr(U+2*i,2)}, v[10:11], v[8:9]\nv_cvt_pk_bf16_f32 v{X+i}, v{U+2*i}, v{U+2*i+1}\nv_min_u32 v{X+i}, 0xfffffffe, v{X+i}')
        a(f'buffer_store_dwordx4 {vr(X+4*ks,4)}, v1, {SRD}, s20 offen offset:{(ks&3)*1024} {WST}')
        if (ks & 3) == 3: a('s_add_u32 s20, s20, 4096')
    dump()
    a(f'{END}:')
```

```python
from asmlib import *
from layout import *
from chain import SRD, S_W, S_SLOT, S_L, S_P, S_TO, S_U, wait_flags, need_head, all_done, Stamps, stamp_dump, DPP
import chain

S_K, S_S, S_LS = 42, 43, 44
OOB = 0x7f000000
D_V, D_PV, D_B2, D_B1, D_P = 17, 15, 15, 15, 15
N_PV, N_B2, N_B1, N_P = 3, 4, 2, 4
DEC = 147392
ONES = ST + 7168
ZEROS = CNT + 1152
S_NL, S_NS, S_NLS, S_HAVE, S_PEND, S_BUF = 45, 46, 47, 52, 53, 54
SRD2 = 's[56:59]'
S_FAST = chain.S_FAST

def w4(i, nA=64, vb=120):
    return ar(4*i, 4) if i < nA else vr(vb + 4*(i-nA), 4)

def load_frags(a, n, sreg, dst, voff=1, start=0):
    for i in range(n):
        a(f'buffer_load_dwordx4 {dst(i)}, v{voff}, {SRD}, s{sreg} offen offset:{(i & 3)*1024} sc1')
        if (i & 3) == 3: a(f's_add_u32 s{sreg}, s{sreg}, 4096')
        if start+i >= 47 and (start+i) % 8 == 7: a('s_waitcnt vmcnt(40)')

S_SCH = 70
S0_P, S0_PV, S0_B1, S0_B2, S1_V = 38, 37, 36, 56, 21
MERGE = {'PV': 10}
def sched_table(role):
    if role == 'VX': return [(S1_V//3, 0, 3, 0, 1, 2, 0), (S1_V//3, 0, 3, 1, 1, 2, 1), (S1_V//3, 0, 3, 2, 0, 1, S1_V)]
    if role == 'B2': return [(32, 0, 2, 0, 1, 4, S0_B2), (32, 0, 2, 1, 1, 4, S0_B2+1), (S0_B2//2, 1, 2, 0, 1, 4, S0_B2+2), (S0_B2//2, 1, 2, 1, 1, 4, S0_B2+3)]
    if role == 'P': return [(32, 0, 2, 0, 1, 4, 64), (32, 0, 2, 1, 1, 4, 64), (32, 1, 2, 0, 1, 4, 64), (32, 1, 2, 1, 1, 4, 64)]
    if role == 'PV' and N_PV == 4: return [(32, 0, 2, 0, 1, 4, 64), (32, 0, 2, 1, 1, 4, 64), (32, 1, 2, 0, 1, 4, 64), (32, 1, 2, 1, 1, 4, 64)]
    if role == 'B1': return [(64, 0, 1, 0, 1, 1, 64), (64, 1, 1, 0, 1, 1, 64)]
    S0, N = {'P': (S0_P, 4), 'PV': (S0_PV, 5), 'B1': (S0_B1, 3)}[role]
    return [(32, 0, 2, 0, 1, N, S0+1), (32, 0, 2, 1, 1, N, S0+2), (S0, 1, 1, 0, 1, N, S0)] + [(0, 1, 1, 0, 1, N, S0+u) for u in range(3, N)]
def task_list(role, u):
    if role in MERGE:
        D = MERGE[role]; out = []
        for k in range(u, 128, 3):
            if k < D: out.append(k)
            elif k >= 128-D: out.append(k)
            else:
                kk = k-D; l = kk & 1; out.append(64*l + (kk >> 1) + (1-l)*D)
        return out
    c1, l1, t1, b1, l2, t2, b2 = sched_table(role)[u]
    out = []; k = 0
    while True:
        l, s = (l1, b1+t1*k) if k < c1 else (l2, b2+t2*(k-c1))
        if s >= 64: return out
        out.append(64*l+s); k += 1
CUR_ROLE = [None]
def sched_setup(a, role):
    CUR_ROLE[0] = role
    if role in MERGE: return
    T = sched_table(role)
    J = a.label('Lsj')
    for u, row in enumerate(T):
        N = a.label('Lsn')
        if u < len(T)-1: a(f's_cmp_eq_u32 s{S_U}, {u}\ns_cbranch_scc0 {N}')
        for i, v in enumerate(row): a(f's_mov_b32 s{S_SCH+i}, {v}')
        if u < len(T)-1: a(f's_branch {J}\n{N}:')
    a(f'{J}:')

def task_calc(S_L, S_S, S_LS):
    return [f's_sub_u32 s20, s{S_K}, s{S_SCH}\ns_cselect_b32 s20, s{S_K}, s20\ns_cselect_b32 s{S_L}, s{S_SCH+1}, s{S_SCH+4}\n'
            f's_cselect_b32 s21, s{S_SCH+2}, s{S_SCH+5}\ns_cselect_b32 s{S_S}, s{S_SCH+3}, s{S_SCH+6}',
            's_mul_i32 s20, s20, s21', f's_add_u32 s{S_S}, s{S_S}, s20', f's_lshl_b32 s{S_LS}, s{S_L}, 6', f's_add_u32 s{S_LS}, s{S_LS}, s{S_S}']

def merged_task(a, D, DONE, S_L=S_L, S_S=S_S, S_LS=S_LS):
    if CUR_ROLE[0] in MERGE:
        D = MERGE[CUR_ROLE[0]]
        L2 = a.label('Lm2'); LD = a.label('Lmd')
        a(f'''s_mul_i32 s21, s{S_K}, 3
        s_add_u32 s21, s21, s{S_U}
        s_mov_b32 s{S_L}, 0
        s_mov_b32 s{S_S}, s21
        s_cmp_lt_u32 s21, {D}
        s_cbranch_scc1 {LD}
        s_cmp_ge_u32 s21, {128-D}
        s_cbranch_scc1 {L2}
        s_sub_u32 s20, s21, {D}
        s_and_b32 s{S_L}, s20, 1
        s_lshr_b32 s{S_S}, s20, 1
        s_xor_b32 s20, s{S_L}, 1
        s_mul_i32 s20, s20, {D}
        s_add_u32 s{S_S}, s{S_S}, s20
        s_branch {LD}
        {L2}:
        s_mov_b32 s{S_L}, 1
        s_sub_u32 s{S_S}, s21, 64
        {LD}:
        s_lshl_b32 s{S_LS}, s{S_L}, 6
        s_add_u32 s{S_LS}, s{S_LS}, s{S_S}
        s_cmp_ge_u32 s{S_S}, 64
        s_cbranch_scc1 {DONE}''')
        return
    a(f'''s_sub_u32 s20, s{S_K}, s{S_SCH}
    s_cselect_b32 s20, s{S_K}, s20
    s_cselect_b32 s{S_L}, s{S_SCH+1}, s{S_SCH+4}
    s_cselect_b32 s21, s{S_SCH+2}, s{S_SCH+5}
    s_cselect_b32 s{S_S}, s{S_SCH+3}, s{S_SCH+6}
    s_mul_i32 s20, s20, s21
    s_add_u32 s{S_S}, s{S_S}, s20
    s_lshl_b32 s{S_LS}, s{S_L}, 6
    s_add_u32 s{S_LS}, s{S_LS}, s{S_S}
    s_cmp_ge_u32 s{S_S}, 64
    s_cbranch_scc1 {DONE}''')

def flag_off(a, dst, kind, ls=S_LS):
    a(f's_mul_i32 s{dst}, s{ls}, {flag_seg(kind)}\ns_add_u32 s{dst}, s{dst}, {flag_base(kind)}')

def pend_flag(a, kind, sidx, ls=S_LS, add=0):
    a(f"""s_mul_i32 s{S_PEND}, s{ls}, {flag_seg(kind)}
    s_lshl_b32 s20, s{sidx}, 7
    s_add_u32 s{S_PEND}, s{S_PEND}, s20
    s_add_u32 s{S_PEND}, s{S_PEND}, {flag_base(kind) + add*flag_seg(kind)}""")

def flush(a, cnt=0):
    a(f"""s_waitcnt vmcnt({cnt})
    s_barrier
    buffer_store_dword v15, v14, {SRD}, s{S_PEND} offen sc1
    s_mov_b32 s{S_PEND}, {DUMMY}""")

def pipe_setup(a, vdw, vdr):
    a(f"""s_lshl_b32 s20, s{S_W}, 2
    s_add_u32 s20, s20, {DEC}
    v_mov_b32 v{vdw}, s20
    v_mov_b32 v{vdr}, {DEC}
    s_mov_b32 s56, s4
    s_mov_b32 s57, s5
    s_mov_b32 s58, 0
    s_mov_b32 s59, 0x20000
    s_mov_b32 s{S_HAVE}, 0
    s_mov_b32 s{S_PEND}, {DUMMY}
    s_mov_b32 s{S_BUF}, 0""")

def mid_sync(a, vfl, vdw, vdr, vt):
    a(f"""s_waitcnt vmcnt(0)
    v_cmp_eq_u32 vcc, 0, v{vfl}
    s_nop 1
    v_mov_b32 v{vt}, vcc_lo
    v_or_b32 v{vt}, vcc_hi, v{vt}
    ds_write_b32 v{vdw}, v{vt}
    s_waitcnt lgkmcnt(0)
    s_barrier
    ds_read_b32 v{vt}, v{vdr}
    buffer_store_dword v15, v14, {SRD}, s{S_PEND} offen sc1
    s_mov_b32 s{S_PEND}, {DUMMY}
    s_waitcnt lgkmcnt(0)
    v_readfirstlane_b32 s20, v{vt}
    s_cmp_eq_u32 s20, 0
    s_cselect_b32 s{S_HAVE}, 1, 0
    s_cselect_b32 s58, 0x10000000, 0""")

def dma_list(n, s_src, s_lds, srd=SRD, flags='sc1'):
    out = []
    for i in range(n):
        pre = []
        if (i & 3) == 0:
            if i: pre.append(f's_add_u32 s{s_src}, s{s_src}, 4096')
            pre.append(f's_mov_b32 m0, s{s_lds}')
            pre.append(f's_add_u32 s{s_lds}, s{s_lds}, 4096')
        out.append((pre, f'buffer_load_dwordx4 v1, {srd}, s{s_src} offen offset:{(i&3)*1024} {flags} lds'))
    return out

def set_flag(a, kind, sidx, vz=14, v1_=15, st=20):
    a(f'''s_mul_i32 s{st}, s{S_LS}, {flag_seg(kind)}
    s_lshl_b32 s{st+1}, s{sidx}, 7
    s_add_u32 s{st}, s{st}, s{st+1}
    s_add_u32 s{st}, s{st}, {flag_base(kind)}
    s_waitcnt vmcnt(0)
    s_barrier
    buffer_store_dword v{v1_}, v{vz}, {SRD}, s{st} offen sc1''')

def common_setup(a):
    a(f'''v_and_b32 v7, 63, v0
    v_lshlrev_b32 v1, 4, v7
    v_cmp_eq_u32 vcc, 0, v0
    v_mov_b32 v14, {OOB}
    v_mov_b32 v15, 1
    v_cndmask_b32 v14, v14, 0, vcc''')

def dma_frags(a, n, s_src, lds_base_s, flags='sc1'):
    for i in range(n):
        if (i & 3) == 0:
            a(f's_mov_b32 m0, s{lds_base_s}\ns_add_u32 s{lds_base_s}, s{lds_base_s}, 4096')
        a(f'buffer_load_dwordx4 v1, {SRD}, s{s_src} offen offset:{(i&3)*1024} {flags} lds')
        if (i & 3) == 3: a(f's_add_u32 s{s_src}, s{s_src}, 4096')

def gather_pairs(a, batches, T0=64, dst='a'):
    P = [[e for e in b if not isinstance(e, str)] for b in batches]
    def issue(b):
        k = 0
        for e in batches[b]:
            if isinstance(e, str): a(e); continue
            a(e[0].format(T0+32*(b % 2)+2*k)); a(e[1].format(T0+32*(b % 2)+2*k+1)); k += 1
    def fin(b):
        for k, (lo, hi, d) in enumerate(P[b]):
            t = T0+32*(b % 2)+2*k
            if dst == 'a': a(f'v_lshl_or_b32 v{t}, v{t+1}, 16, v{t}\nv_accvgpr_write_b32 a{d}, v{t}')
            else: a(f'v_lshl_or_b32 v{d}, v{t+1}, 16, v{t}')
    n = len(batches)
    for b in range(n+1):
        if b < n: issue(b)
        if b >= 1:
            a(f's_waitcnt vmcnt({2*len(P[b]) if b < n else 0})')
            fin(b-1)

def mf(D, A, B, C=None):
    return f'v_mfma_f32_16x16x32_bf16 {D}, {A}, {B}, {D if C is None else C}'


def hint(a, kind, sidx, add=0):
    a(f"""s_mul_i32 s21, s{S_LS}, {flag_seg(kind)}
    s_lshl_b32 s20, s{sidx}, 7
    s_add_u32 s21, s21, s20
    s_add_u32 s21, s21, {flag_base(kind) + add*flag_seg(kind)}
    s_barrier
    buffer_store_dword v15, v14, {SRD}, s21 offen sc1""")

def guard(a, r, n):
    for i in range(n): a(f'v_min_u32 v{r+i}, 0xfffffffe, v{r+i}')

def vote(a, vfl, vdw, vdr, vt, cnt):
    a(f"""s_waitcnt vmcnt({cnt})
    v_cmp_eq_u32 vcc, 0, v{vfl}
    s_nop 1
    v_mov_b32 v{vt}, vcc_lo
    v_or_b32 v{vt}, vcc_hi, v{vt}
    ds_write_b32 v{vdw}, v{vt}
    s_waitcnt lgkmcnt(0)
    s_barrier
    ds_read_b32 v{vt}, v{vdr}
    s_waitcnt lgkmcnt(0)
    v_readfirstlane_b32 s20, v{vt}
    s_cmp_eq_u32 s20, 0
    s_cselect_b32 s{S_HAVE}, 1, 0
    s_cselect_b32 s58, 0x10000000, 0""")

def chk4(m, r, first=False):
    if first: return [f'v_max3_u32 v{m}, v{r}, v{r+1}, v{r+2}', f'v_max_u32 v{m}, v{m}, v{r+3}']
    return [f'v_max3_u32 v{m}, v{m}, v{r}, v{r+1}', f'v_max3_u32 v{m}, v{m}, v{r+2}, v{r+3}']

def redo_if_bad(a, m, REDO, EXIT):
    a(f"""v_cmp_eq_u32 vcc, -1, v{m}
    s_cbranch_vccnz {REDO}""")

def vote_pre(a, vfl, vdw, vt):
    a(f"""v_cmp_eq_u32 vcc, 0, v{vfl}
    s_nop 1
    v_mov_b32 v{vt}, vcc_lo
    v_or_b32 v{vt}, vcc_hi, v{vt}
    ds_write_b32 v{vdw}, v{vt}
    s_waitcnt lgkmcnt(0)""")

def vote_post(a, vdr, vt, between=()):
    a(f'ds_read_b32 v{vt}, v{vdr}')
    for x in between: a(x)
    a(f"""s_waitcnt lgkmcnt({len([x for x in between if x.startswith('ds_')])})
    v_readfirstlane_b32 s20, v{vt}
    s_cmp_eq_u32 s20, 0
    s_cselect_b32 s{S_HAVE}, 1, 0
    s_cselect_b32 s58, 0x10000000, 0""")

def chk2(m, r0, r1, first=False):
    return f'v_max_u32 v{m}, v{r0}, v{r1}' if first else f'v_max3_u32 v{m}, v{m}, v{r0}, v{r1}'

def sched(a, main, lanes):
    F = {}
    for start, step, ins in lanes:
        for k, x in enumerate(ins): F.setdefault(start+k*step, []).append(x)
    for x in interleave(main, F): a(x)

SPEC = 1
def wait_spec(a, voff, soff, vd, EXIT, setup, loads, n):
    L = a.label('Lws')
    a(f'{L}:')
    setup()
    a(f'buffer_load_dword v{vd}, v{voff}, {SRD}, s{soff} offen sc1')
    loads()
    a(f"""s_sub_u32 s{S_TO}, s{S_TO}, 1
    s_cbranch_scc1 {EXIT}
    s_waitcnt vmcnt({n})
    v_cmp_eq_u32 vcc, 0, v{vd}
    s_cbranch_vccnz {L}""")
def vx_role(a, EXIT, stamps=0):
    a('; ================= VX role =================')
    acc, xr, o, m = 16, 72, 96, 106
    common_setup(a)
    sched_setup(a, 'VX')
    need_head(a, 1, EXIT)
    a(f'''s_mul_i32 s20, s{S_P}, 28
    s_mul_i32 s21, s{S_W}, 7
    s_add_u32 s30, s20, s21
    s_mul_i32 s20, s30, 14336
    s_add_u32 s20, s20, {WV}''')
    load_frags(a, 98, 20, w4)
    a(f'''s_lshl_b32 s30, s30, 10
    s_mul_i32 s31, s{S_W}, 7168
    v_and_b32 v8, 7, v7
    v_min_u32 v8, 6, v8
    v_lshlrev_b32 v8, 7, v8
    s_mov_b32 s{S_K}, 0''')
    all_done(a, EXIT)
    pipe_setup(a, 10, 11)
    merged_task(a, D_V, EXIT)
    st = Stamps(a, stamps)
    LOOP = a.label('Lvx'); NW = a.label('Lnw'); HV = a.label('Lhv'); GO = a.label('Lgo'); REDO = a.label('Lredo'); RUN = a.label('Lrun')
    def src(ls, buf_expr):
        a(f'''s_mul_i32 s22, s{ls}, {XN_SEG}
        s_add_u32 s22, s22, s31
        s_add_u32 s22, s22, {XN}
        {buf_expr}
        s_add_u32 s23, s23, s31''')
    def lookahead():
        NJ = a.label('Lnj')
        a(f's_add_u32 s{S_K}, s{S_K}, 1\ns_mov_b32 s25, {ZEROS}')
        merged_task(a, D_V, NJ, S_NL, S_NS, S_NLS)
        flag_off(a, 25, F_XN, S_NLS)
        a(f'''s_cmp_eq_u32 s{S_NL}, 0
        s_cselect_b32 s25, {ONES}, s25
        {NJ}:
        buffer_load_dword v9, v8, {SRD}, s25 offen sc1''')
    lookahead()
    a(f'{LOOP}:')
    st.mark()
    a(f's_cmp_eq_u32 s{S_HAVE}, 1\ns_cbranch_scc1 {HV}')
    flush(a)
    a(f's_cmp_eq_u32 s{S_L}, 0\ns_cbranch_scc1 {NW}')
    if SPEC & 2:
        flag_off(a, 26, F_XN)
        wait_spec(a, 8, 26, 12, EXIT, lambda: src(S_LS, f's_mov_b32 s23, s{S_BUF}'), lambda: dma_frags(a, 7, 22, 23), 7)
        a(f's_branch {NW}_j')
    else:
        flag_off(a, 22, F_XN)
        wait_flags(a, 8, 22, 12, EXIT)
    a(f'{NW}:')
    src(S_LS, f's_mov_b32 s23, s{S_BUF}')
    dma_frags(a, 7, 22, 23)
    a(f'{NW}_j:\nbuffer_load_dword v9, v8, {SRD}, s25 offen sc1')
    a(f's_waitcnt vmcnt(0)\ns_branch {GO}\n{HV}:\ns_waitcnt vmcnt(7)\n{GO}:')
    st.mark()
    a(f'''v_add_u32 v2, s{S_BUF}, v1
    s_mul_i32 s24, s{S_LS}, {VX_SEG}
    s_add_u32 s24, s24, s30
    s_add_u32 s24, s24, {VX}
    {RUN}:''')
    src(S_NLS, f's_xor_b32 s23, s{S_BUF}, 28672')
    vote_pre(a, 9, 10, 12)
    a('s_barrier')
    st.mark()
    def rd(ks): return [f'ds_read_b128 {vr(xr+8*(ks%3)+4*rt,4)}, v2 offset:{(rt*14+ks)*1024}' for rt in range(2)]
    vote_post(a, 11, 12, rd(0) + rd(1))
    main = []; lanes = []
    dl = dma_list(7, 22, 23, SRD2)
    for ks in range(14):
        b = 14*ks
        for t in range(7):
            for rt in range(2):
                main.append(mf(vr(acc+28*rt+4*t,4), vr(xr+8*(ks%3)+4*rt,4), w4(t*14+ks), 0 if ks == 0 else None))
        lanes.append((b-1, 1, [f's_waitcnt lgkmcnt({2 if ks < 13 else 0})']))
        if ks+2 < 14: lanes.append((b, 3, rd(ks+2)))
        lanes.append((b+1, 1, [chk2(m, xr+8*(ks%3), xr+8*(ks%3)+4, ks == 0)]))
        if ks < 7: lanes.append((b+6, 1, dl[ks][0] + [dl[ks][1]]))
    lanes.append((14*5+4, 1, ['s_waitcnt vmcnt(5)\ns_barrier', f'buffer_store_dword v15, v14, {SRD}, s{S_PEND} offen sc1', f's_mov_b32 s{S_PEND}, {DUMMY}']))
    sched(a, main, lanes)
    st.mark()
    redo_if_bad(a, m, REDO, EXIT)
    pend_flag(a, F_VX, S_P)
    st.flush(104, 20, S_LS); st.n = 0
    a(f'''s_mov_b32 s{S_L}, s{S_NL}
    s_mov_b32 s{S_S}, s{S_NS}
    s_mov_b32 s{S_LS}, s{S_NLS}
    s_xor_b32 s{S_BUF}, s{S_BUF}, 28672
    s_mov_b32 s35, s{S_NS}''')
    lookahead()
    for t in range(7):
        O = o+4*(t & 1)
        for rt in range(2):
            A = acc+28*rt+4*t
            a(f'v_cvt_pk_bf16_f32 v{O+2*rt}, v{A}, v{A+1}\nv_cvt_pk_bf16_f32 v{O+2*rt+1}, v{A+2}, v{A+3}')
        a(f'buffer_store_dwordx4 {vr(O,4)}, v1, {SRD}, s24 offen offset:{(t&3)*1024} sc1')
        if t == 3: a('s_add_u32 s24, s24, 4096')
    st.mark()
    a(f's_cmp_lt_u32 s35, 64\ns_cbranch_scc1 {LOOP}')
    flush(a)
    if stamps: stamp_dump(a, EXIT)
    else: a(f's_branch {EXIT}')
    a(f'{REDO}:\ns_sub_u32 s{S_TO}, s{S_TO}, 64\ns_cbranch_scc1 {EXIT}\ns_barrier')
    src(S_LS, f's_mov_b32 s23, s{S_BUF}')
    dma_frags(a, 7, 22, 23)
    a(f's_waitcnt vmcnt(0)\ns_branch {RUN}')
    st.n = 0

def p_role(a, EXIT, stamps=0):
    a('; ================= P role =================')
    PART = 65536
    SW = 4096
    acc, qr, xk, s4, m, ninf = 16, 44, 84, 112, 116, 117
    TB = lambda rt, u: 56 + 14*rt + 2*u - (0 if u == 0 else 0)
    TBP = lambda rt, p: 56 + 14*rt + 2 + 4*p
    S_XP, S_XS, S_MP, S_MS = 30, 31, 32, 33
    CM = 82
    WD = a.label('Lpwd')
    a(f's_mov_b32 s23, 0\ns_branch {WD}\n{chain.P_ENTRY}:\ns_mov_b32 s{S_U}, 3\ns_mov_b32 s23, 1\n{WD}:')
    common_setup(a)
    sched_setup(a, 'P')
    a(f"""s_cmp_eq_u32 s23, 1
    s_cbranch_scc1 {WD}_skip""")
    need_head(a, 0, EXIT)
    a(f"""s_mul_i32 s20, s{S_P}, 28
    s_mul_i32 s21, s{S_W}, 7
    s_add_u32 s20, s20, s21
    s_and_b32 s22, s{S_W}, 1
    s_add_u32 s21, s20, s22
    s_mul_i32 s21, s21, 14336
    s_add_u32 s21, s21, {WA}
    s_xor_b32 s22, s22, 1
    s_mul_i32 s22, s22, 6
    s_add_u32 s20, s20, s22
    s_mul_i32 s20, s20, 14336
    s_add_u32 s20, s20, {WA}""")
    load_frags(a, 14, 20, w4)
    load_frags(a, 84, 21, lambda i: w4(14+i), start=14)
    a(f"""{WD}_skip:
    s_mul_i32 s20, s{S_W}, 7
    s_add_u32 s20, s20, 1
    s_lshr_b32 s20, s20, 1
    s_lshr_b32 s21, s{S_W}, 1
    s_mul_i32 s21, s21, 7
    s_add_u32 s21, s21, 3
    s_lshl_b32 s{S_XP}, s20, 10
    s_lshl_b32 s{S_XS}, s21, 10
    s_lshl_b32 s{S_MP}, s20, 9
    s_lshl_b32 s{S_MS}, s21, 9
    s_and_b32 s22, s{S_W}, 1
    s_lshl_b32 s34, s22, 3
    v_lshrrev_b32 v10, 4, v7
    v_and_b32 v11, 15, v7
    v_and_b32 v3, 7, v7
    v_min_u32 v8, 6, v3
    v_lshlrev_b32 v8, 7, v8
    v_lshlrev_b32 v3, 4, v3
    v_lshl_add_u32 v3, v10, 7, v3
    v_add_u32 v4, s34, v3
    v_mul_u32_u24 v5, 272, v10
    v_lshl_add_u32 v5, v11, 4, v5
    s_lshl_b32 s20, s{S_W}, 12
    s_add_u32 s20, s20, {PART}
    v_add_u32 v5, s20, v5
    s_lshl_b32 s20, s{S_W}, 2
    v_add_u32 v12, s20, v10
    v_min_u32 v6, 11, v11
    v_mul_u32_u24 v6, 272, v6
    v_lshl_add_u32 v6, v12, 4, v6
    v_add_u32 v6, {PART}, v6
    s_lshl_b32 s20, s{S_P}, 11
    v_and_b32 v13, 3, v11
    v_lshlrev_b32 v13, 8, v13
    v_lshl_add_u32 v13, v12, 4, v13
    v_lshrrev_b32 v9, 2, v11
    v_lshl_add_u32 v9, v9, 3, v13
    v_add_u32 v9, s20, v9
    s_lshr_b32 s20, s{S_P}, 2
    s_lshl_b32 s20, s20, 11
    s_add_u32 s20, s20, 32768
    s_and_b32 s21, s{S_P}, 2
    s_lshl_b32 s21, s21, 8
    s_add_u32 s20, s20, s21
    s_and_b32 s21, s{S_P}, 1
    s_lshl_b32 s21, s21, 3
    s_add_u32 s20, s20, s21
    v_add_u32 v13, s20, v13
    v_cmp_gt_u32 vcc, 8, v11
    v_cmp_gt_u32 s[22:23], 10, v11
    v_lshlrev_b32 v10, 2, v11
    v_cndmask_b32 v9, v13, v9, vcc
    v_mov_b32 v13, {OOB}
    v_cndmask_b32 v9, v13, v9, s[22:23]
    v_mov_b32 v13, 64
    v_cndmask_b32 v13, v13, 0, s[22:23]
    v_cndmask_b32 v10, v13, v10, vcc
    v_mov_b32 v{ninf}, 0xff800000""")
    for rt in range(2):
        for r in range(4):
            c = CM + 2*(4*rt+r)
            a(f"""v_add_u32 v13, {r}, v10
            v_cndmask_b32 v13, v10, v13, vcc
            v_add_u32 v2, {16*rt}, v12
            v_cmp_le_u32 s[{c}:{c+1}], v13, v2""")
    pipe_setup(a, 10, 11)
    a(f's_mul_i32 s29, s{S_W}, 7168\ns_mov_b32 s{S_K}, 0')
    all_done(a, EXIT)
    merged_task(a, D_P, EXIT)
    XK = lambda u, kt: xk + (2*kt if u == 0 else 4 + 8*(u-1) + 4*kt)
    def src(ls, buf_expr):
        a(f"""s_mul_i32 s22, s{ls}, {XN_SEG}
        s_add_u32 s22, s22, s29
        s_add_u32 s22, s22, {XN}
        {buf_expr}
        s_add_u32 s23, s23, s29""")
    def lookahead():
        NJ = a.label('Lnj')
        a(f's_add_u32 s{S_K}, s{S_K}, 1\ns_mov_b32 s36, {ZEROS}')
        merged_task(a, D_P, NJ, S_NL, S_NS, S_NLS)
        flag_off(a, 36, F_XN, S_NLS)
        a(f"""s_cmp_eq_u32 s{S_NL}, 0
        s_cselect_b32 s36, {ONES}, s36
        {NJ}:
        buffer_load_dword v12, v8, {SRD}, s36 offen sc1""")
    st = Stamps(a, stamps)
    LOOP = a.label('Lp'); NW = a.label('Lnw'); HV = a.label('Lhv'); REDO = a.label('Lredo')
    lookahead()
    a(f'{LOOP}:')
    st.mark()
    a(f's_cmp_eq_u32 s{S_HAVE}, 1\ns_cbranch_scc1 {HV}')
    a(f's_cmp_eq_u32 s{S_L}, 0\ns_cbranch_scc1 {NW}')
    flag_off(a, 22, F_XN)
    wait_flags(a, 8, 22, 118, EXIT)
    a(f'{NW}:')
    src(S_LS, f's_mov_b32 s23, s{S_BUF}')
    dma_frags(a, 7, 22, 23)
    a(f'buffer_load_dword v12, v8, {SRD}, s36 offen sc1\ns_waitcnt vmcnt(0)\n{HV}:')
    a(f"""v_add_u32 v13, s{S_BUF}, v1
    s_lshl_b32 s27, s{S_LS}, 13
    s_add_u32 s27, s27, {MEMG}
    s_add_u32 s28, s27, s{S_MS}
    s_add_u32 s27, s27, s{S_MP}
    s_mul_i32 s24, s{S_LS}, {PF_SEG}
    s_add_u32 s24, s24, {PF}
    v_add_u32 v2, s{S_XP}, v13
    v_add_u32 v7, s{S_XS}, v13
    v_add_u32 v7, s34, v7""")
    src(S_NLS, f's_xor_b32 s23, s{S_BUF}, 32768')
    a('s_waitcnt vmcnt(3)')
    vote_pre(a, 12, 10, 118)
    a('s_barrier')
    st.mark()
    def rd(i): return f'ds_read_b128 {vr(qr+4*(i%3),4)}, v13 offset:{i*1024}'
    vote_post(a, 11, 118, [rd(0), rd(1)])
    kl = []
    for kt in range(2):
        kl.append(f'ds_read_b64 {vr(XK(0,kt),2)}, v7 offset:{kt*14336}')
        kl += [f'ds_read_b128 {vr(XK(u,kt),4)}, v2 offset:{kt*14336+(u-1)*1024}' for u in range(1, 4)]
    MK = lambda u: (118, qr+8, qr, qr+4)[u]
    mkl = [f'buffer_load_dwordx2 {vr(MK(0),2)}, v4, {SRD}, s28 offen sc1'] + [f'buffer_load_dwordx4 {vr(MK(u),4)}, v3, {SRD}, s27 offen offset:{(u-1)*512} sc1' for u in range(1, 4)]
    def cvts(rt): return [x for u in range(7) for x in (f'v_cvt_pk_bf16_f32 v{TB(rt,u)}, v{acc+4*u}, v{acc+4*u+1}', f'v_cvt_pk_bf16_f32 v{TB(rt,u)+1}, v{acc+4*u+2}, v{acc+4*u+3}')]
    def score(D, D2, K, rt):
        return [mf(vr(D,4), vr(K(1),4), vr(TBP(rt,0),4), 0), f'v_mfma_f32_16x16x16_bf16 {vr(D2,4)}, {vr(K(0),2)}, {vr(TB(rt,0),2)}, 0',
                mf(vr(D,4), vr(K(2),4), vr(TBP(rt,1),4)), mf(vr(D,4), vr(K(3),4), vr(TBP(rt,2),4))]
    def stream(rt, extra):
        main = []; lanes = list(extra)
        for ks in range(14):
            i = 14*rt+ks; b = 7*ks
            main += [mf(vr(acc+4*u,4), w4(u*14+ks), vr(qr+4*(i%3),4), 0 if ks == 0 else None) for u in range(7)]
            lanes.append((b-1, 1, [f's_waitcnt lgkmcnt({0 if i == 27 else 1})']))
            if i+2 < 28: lanes.append((b+5, 1, [rd(i+2)]))
            lanes.append((b+1, 1, [f'v_mov_b32 v{m}, v{qr}' if i == 0 else f'v_max_u32 v{m}, v{m}, v{qr+4*(i%3)}']))
        sched(a, main, lanes)
    dl = dma_list(7, 22, 23, SRD2)
    ex = [(7*k+2, 1, [kl[k]]) for k in range(8)]
    for k in range(4): ex.append((7*(3*k+1)+3, 7, ['\n'.join(dl[k][0]) or 's_nop 0', dl[k][1]]))
    stream(0, ex)
    st.mark(2)
    a('s_nop 0')
    for x in cvts(0): a(x)
    s0 = [f'v_mfma_f32_16x16x16_bf16 {vr(s4,4)}, {vr(XK(0,0),2)}, {vr(TB(0,0),2)}, 0'] + [mf(vr(s4,4), vr(XK(u,0),4), vr(TBP(0,u-1),4)) for u in range(1, 4)]
    ex = [(2, 1, [s0[0]]), (16, 1, s0[1:]), (30, 1, [f'ds_write_b128 v5, {vr(s4,4)}'])]
    for k in range(4, 7): ex.append((7*(3*(k-4)+1)+3, 7, ['\n'.join(dl[k][0]) or 's_nop 0', dl[k][1]]))
    MK = lambda u: (118, qr+4, qr+8, qr)[u]
    mkl = [f'buffer_load_dwordx2 {vr(MK(0),2)}, v4, {SRD}, s28 offen sc1'] + [f'buffer_load_dwordx4 {vr(MK(u),4)}, v3, {SRD}, s27 offen offset:{(u-1)*512} sc1' for u in range(1, 4)]
    ex += [(7*12+2, 1, [mkl[0]]), (7*12+4, 1, [mkl[1]]), (7*13+2, 1, [mkl[2]]), (7*13+6, 1, [mkl[3]])]
    stream(1, ex)
    redo_if_bad(a, m, REDO, EXIT)
    for x in cvts(1): a(x)
    st.mark()
    d0, d1, e0, e1, t = acc, acc+4, acc+8, acc+12, s4
    sa = score(d0, e0, lambda u: XK(u, 0), 1); sb = score(d1, e1, lambda u: XK(u, 1), 1)
    for x, y in zip(sa, sb): a(x); a(y)
    a(f"""s_mov_b32 s37, s{S_LS}
    s_mov_b32 s{S_L}, s{S_NL}
    s_mov_b32 s{S_LS}, s{S_NLS}
    s_xor_b32 s{S_BUF}, s{S_BUF}, 32768
    s_mov_b32 s35, s{S_NS}""")
    lookahead()
    for r in range(4): a(f'v_add_f32 v{d0+r}, v{d0+r}, v{e0+r}')
    a(f'ds_write_b128 v5, {vr(d0,4)} offset:16384')
    for r in range(4): a(f'v_add_f32 v{d1+r}, v{d1+r}, v{e1+r}')
    a(f'ds_write_b128 v5, {vr(d1,4)} offset:{16384+1088}')
    L = a.label('Lpmk'); LC = a.label('Lpc')
    def check():
        a(f"""v_max3_u32 v{t}, v118, v119, v{qr}
        v_max3_u32 v{t+1}, v{qr+1}, v{qr+2}, v{qr+3}
        v_max3_u32 v{t}, v{t}, v{qr+4}, v{qr+5}
        v_max3_u32 v{t+1}, v{t+1}, v{qr+6}, v{qr+7}
        v_max3_u32 v{t}, v{t}, v{qr+8}, v{qr+9}
        v_max3_u32 v{t+1}, v{t+1}, v{qr+10}, v{qr+11}
        v_max_u32 v{t}, v{t}, v{t+1}
        v_cmp_eq_u32 vcc, -1, v{t}""")
    st.mark(2)
    a('s_waitcnt vmcnt(1)')
    check()
    a(f's_cbranch_vccz {LC}\n{L}:')
    for x in mkl: a(x)
    a(f"""s_sub_u32 s{S_TO}, s{S_TO}, 1
    s_cbranch_scc1 {EXIT}
    s_waitcnt vmcnt(0)""")
    check()
    a(f's_cbranch_vccnz {L}\n{LC}:')
    st.mark()
    d0, d1, e0, e1 = acc+16, acc+20, acc+8, acc+12
    sa = score(d0, e0, MK, 0); sb = score(d1, e1, MK, 1)
    for x, y in zip(sa, sb): a(x); a(y)
    a(f"""s_mul_i32 s21, s37, {flag_seg(F_P)}
    s_lshl_b32 s20, s{S_P}, 7
    s_add_u32 s21, s21, s20
    s_add_u32 s21, s21, {flag_base(F_P)}
    s_nop 2""")
    for r in range(4): a(f'v_add_f32 v{d0+r}, v{d0+r}, v{e0+r}')
    a(f'ds_write_b128 v5, {vr(d0,4)} offset:2176')
    for r in range(4): a(f'v_add_f32 v{d1+r}, v{d1+r}, v{e1+r}')
    a(f'ds_write_b128 v5, {vr(d1,4)} offset:{16384+2176}')
    st.mark(2)
    a('s_waitcnt lgkmcnt(0)\ns_barrier')
    st.mark(2)
    RR = [56, 84]
    for rt in range(2):
        for w in range(4): a(f'ds_read_b128 {vr(RR[rt]+4*w,4)}, v6 offset:{rt*16384+w*SW}')
    for rt in range(2):
        R = RR[rt]
        a(f"""s_waitcnt lgkmcnt({4-4*rt})
        v_pk_add_f32 {vr(R,2)}, {vr(R,2)}, {vr(R+4,2)}
        v_pk_add_f32 {vr(R+2,2)}, {vr(R+2,2)}, {vr(R+6,2)}
        v_pk_add_f32 {vr(R+8,2)}, {vr(R+8,2)}, {vr(R+12,2)}
        v_pk_add_f32 {vr(R+10,2)}, {vr(R+10,2)}, {vr(R+14,2)}
        v_pk_add_f32 {vr(R,2)}, {vr(R,2)}, {vr(R+8,2)}
        v_pk_add_f32 {vr(R+2,2)}, {vr(R+2,2)}, {vr(R+10,2)}""")
        for r in range(4): a(f'v_cndmask_b32 v{R+r}, v{ninf}, v{R+r}, s[{CM+2*(4*rt+r)}:{CM+2*(4*rt+r)+1}]')
    st.mark(2)
    def both(f):
        for R in RR: a(f(R))
    both(lambda R: f'v_max3_f32 v{R+4}, v{R}, v{R+1}, v{R+2}')
    both(lambda R: f'v_max_f32 v{R+4}, v{R+4}, v{R+3}')
    for k in (8, 4, 2, 1):
        a('s_nop 0'); both(lambda R: f'v_max_f32_dpp v{R+4}, v{R+4}, v{R+4} row_ror:{k} {DPP}')
    for r in range(4): both(lambda R: f'v_sub_f32 v{R+r}, v{R+r}, v{R+4}')
    for r in range(4): both(lambda R: f'v_exp_f32 v{R+r}, v{R+r}')
    both(lambda R: f'v_add_f32 v{R+4}, v{R}, v{R+1}')
    both(lambda R: f'v_add_f32 v{R+5}, v{R+2}, v{R+3}')
    both(lambda R: f'v_add_f32 v{R+4}, v{R+4}, v{R+5}')
    for k in (8, 4, 2, 1):
        a('s_nop 0'); both(lambda R: f'v_add_f32_dpp v{R+4}, v{R+4}, v{R+4} row_ror:{k} {DPP}')
    both(lambda R: f'v_rcp_f32 v{R+4}, v{R+4}')
    a('s_nop 0')
    for rt, R in enumerate(RR):
        a(f"""v_pk_mul_f32 {vr(R,2)}, {vr(R+4,2)}, {vr(R,2)} op_sel_hi:[0,1]
        v_pk_mul_f32 {vr(R+2,2)}, {vr(R+4,2)}, {vr(R+2,2)} op_sel_hi:[0,1]
        v_cvt_pk_bf16_f32 v{s4+2*rt}, v{R}, v{R+1}
        v_cvt_pk_bf16_f32 v{s4+2*rt+1}, v{R+2}, v{R+3}
        v_min_u32 v{s4+2*rt}, 0xfffffffe, v{s4+2*rt}
        buffer_store_dwordx2 {vr(s4+2*rt,2)}, v9, {SRD}, s24 offen offset:{1024*rt} sc1""")
    a(f's_barrier\nbuffer_store_dword v15, v14, {SRD}, s21 offen sc1')
    st.mark()
    st.flush(118, 20, 37)
    a(f's_cmp_lt_u32 s35, 64\ns_cbranch_scc1 {LOOP}')
    if stamps: stamp_dump(a, EXIT)
    else: a(f's_branch {EXIT}')
    a(f'{REDO}:\ns_sub_u32 s{S_TO}, s{S_TO}, 64\ns_cbranch_scc1 {EXIT}\ns_waitcnt lgkmcnt(0)\ns_barrier\ns_branch {NW}')

def rscatter(a, q):
    a(f'''s_nop 1
    v_permlane32_swap_b32 v{q}, v{q+2}
    v_permlane32_swap_b32 v{q+1}, v{q+3}
    v_add_f32 v{q}, v{q}, v{q+2}
    v_add_f32 v{q+1}, v{q+1}, v{q+3}
    s_nop 1
    v_permlane16_swap_b32 v{q}, v{q+1}
    v_add_f32 v{q}, v{q}, v{q+1}''')

def stats_partial(a, A, q):
    for rt in range(2):
        x = A+4*rt
        a(f'''v_add_f32 v{q+2*rt}, v{x}, v{x+1}
        v_mul_f32 v{q+2*rt+1}, v{x}, v{x}
        v_add_f32 v{q+2*rt}, v{q+2*rt}, v{x+2}
        v_fmac_f32 v{q+2*rt+1}, v{x+1}, v{x+1}
        v_add_f32 v{q+2*rt}, v{q+2*rt}, v{x+3}
        v_fmac_f32 v{q+2*rt+1}, v{x+2}, v{x+2}
        v_fmac_f32 v{q+2*rt+1}, v{x+3}, v{x+3}''')
    rscatter(a, q)

def stats_loads(G, vg, s_st, srd=SRD):
    return [f'buffer_load_dwordx4 {vr(G+4*i,4)}, v{vg}, {srd}, s{s_st} offen offset:{256*i} sc1' for i in range(7)]

def stats_check(a, G, t):
    a(f'''v_max3_u32 v{t}, v{G}, v{G+4}, v{G+8}
    v_max3_u32 v{t+1}, v{G+12}, v{G+16}, v{G+20}
    v_max3_u32 v{t}, v{t}, v{t+1}, v{G+24}
    v_cmp_eq_u32 vcc, -1, v{t}''')

def stats_finish(a, G, keep=None, pairs=((0, 1), (2, 3), (4, 5), (0, 2), (4, 6), (0, 4))):
    for (i, j) in pairs:
        a(f'v_pk_add_f32 {vr(G+4*i,2)}, {vr(G+4*i,2)}, {vr(G+4*j,2)}\nv_pk_add_f32 {vr(G+4*i+2,2)}, {vr(G+4*i+2,2)}, {vr(G+4*j+2,2)}')
    rscatter(a, G)
    a(f'''v_mov_b32 v{G+1}, v{G}
    s_nop 1
    v_permlane16_swap_b32 v{G}, v{G+1}
    v_mov_b32 v{G+2}, v{G}
    v_mov_b32 v{G+3}, v{G+1}
    s_mov_b32 s20, 0x3b124925
    s_mov_b32 s21, 0x3727c5ac
    v_permlane32_swap_b32 v{G}, v{G+2}
    v_permlane32_swap_b32 v{G+1}, v{G+3}''')
    for rt in range(2):
        m = G+2*rt; v = m+1
        a(f'''v_mul_f32 v{m}, s20, v{m}
        v_mul_f32 v{v}, s20, v{v}
        v_fma_f32 v{v}, -v{m}, v{m}, v{v}
        v_max_f32 v{v}, 0, v{v}
        v_add_f32 v{v}, s21, v{v}''')
        if keep is not None: a(f'v_sqrt_f32 v{keep+rt}, v{v}')
        a(f'v_rsq_f32 v{v}, v{v}')
    a('s_nop 0')

def sent4(a, r):
    for i in range(4): a(f'v_mov_b32 v{r+i}, -1')

def b1_role(a, EXIT, stamps=0):
    a('; ================= B1 role =================')
    W = lambda tt, ks: ar(4*(tt*14+ks), 4)
    ACC = lambda rt, tt: 48+16*rt+4*tt
    yr, o, cs, GS, MS, m, PK, SN = 16, 40, 80, 96, 152, 158, 160, 176
    common_setup(a)
    sched_setup(a, 'B1')
    a(f'''s_load_dwordx4 s[24:27], s[0:1], 64
    s_lshl_b32 s20, s{S_P}, 2
    s_add_u32 s30, s20, s{S_W}
    v_lshrrev_b32 v2, 2, v7
    v_mul_u32_u24 v2, 3584, v2
    v_and_b32 v3, 3, v7
    v_lshl_add_u32 v2, v3, 4, v2
    v_lshrrev_b32 v4, 4, v7
    v_lshlrev_b32 v5, 9, v4
    v_bfe_u32 v6, v7, 2, 2
    v_lshl_add_u32 v5, v6, 6, v5
    v_lshl_add_u32 v5, v3, 4, v5
    s_mul_i32 s31, s{S_W}, 28672
    v_add_u32 v5, s31, v5
    v_and_b32 v6, 15, v7
    v_lshlrev_b32 v13, 4, v6
    v_lshl_add_u32 v13, v4, 9, v13
    v_add_u32 v6, 256, v13
    v_cmp_gt_u32 vcc, 3, v4
    v_mov_b32 v4, {OOB}
    v_mov_b32 v3, v6
    v_cndmask_b32 v6, v4, v3, vcc
    s_waitcnt lgkmcnt(0)
    s_mov_b32 s36, s24
    s_mov_b32 s37, s25
    s_mov_b32 s38, {448*3584}
    s_mov_b32 s39, 0x20000
    s_mov_b32 s48, s26
    s_mov_b32 s49, s27
    s_mov_b32 s50, {448*3584}
    s_mov_b32 s51, 0x20000
    s_lshl_b32 s22, s30, 6''')
    for rr in range(2):
        a(f's_mov_b32 s23, s31')
        for k in range(7):
            for mat in range(2):
                for hf in range(2):
                    a(f'''s_mov_b32 m0, s23
                    s_add_u32 s21, s22, {(32*(7*rr+k)+16*hf)*3584}
                    buffer_load_dwordx4 v2, s[{36+12*mat}:{39+12*mat}], s21 offen lds
                    s_add_u32 s23, s23, 1024''')
        for k in range(7):
            a(f's_waitcnt vmcnt({4*(6-k)})')
            for mat in range(2):
                for t2 in range(2):
                    for jh in range(2):
                        b = 4*((2*mat+t2)*14+7*rr+k)+2*jh
                        a(f'ds_read_b64_tr_b16 {ar(b,2)}, v5 offset:{k*4096+mat*2048+jh*256+t2*8}')
            a('s_waitcnt lgkmcnt(0)')
    a('s_barrier')
    for r in range(4): a(f'v_mov_b32 v{yr+r}, 0x3f803f80')
    sent4(a, SN)
    for ks in range(14):
        for tt in range(4): a(mf(vr(cs+4*tt,4), W(tt,ks), vr(yr,4), 0 if ks == 0 else None))
    LF = a.label('Lpf'); LFD = a.label('Lpfd'); DONE = a.label('Ldone')
    a(f'''s_lshl_b32 s30, s30, 10
    s_mul_i32 s31, s{S_W}, 7168
    s_mov_b32 s33, 0xbfb8aa3b
    s_mov_b32 s34, 0x3b124925
    s_mov_b32 s35, 0x3727c5ac
    s_mov_b32 s{S_K}, 0
    {LF}:''')
    merged_task(a, D_B1, LFD)
    a(f'''s_add_u32 s{S_K}, s{S_K}, 1
    s_mul_i32 s24, s{S_LS}, {HF_SEG}
    s_add_u32 s24, s24, s30
    s_add_u32 s24, s24, {HF}
    s_add_u32 s25, s24, {56*1024}
    buffer_store_dwordx4 {vr(SN,4)}, v1, {SRD}, s24 offen sc1
    buffer_store_dwordx4 {vr(SN,4)}, v1, {SRD}, s25 offen sc1
    s_cmp_lt_u32 s{S_K}, 4
    s_cbranch_scc1 {LF}
    {LFD}:
    s_mov_b32 s{S_K}, 0''')
    st = Stamps(a, stamps)
    G = GS; G2 = GS+8
    LOOP = a.label('Lb1'); LD = a.label('Lld'); SP = a.label('Lsp'); SOK = a.label('Lsok'); REDO = a.label('Lredo'); HV = a.label('Lhv'); GO = a.label('Lgo')
    pipe_setup(a, 10, 11)
    def nxt_calc():
        return task_calc(S_NL, S_NS, S_NLS) + [f's_lshl_b32 s27, s{S_NL}, 6', f's_add_u32 s27, s27, s{S_NLS}', 's_lshl_b32 s27, s27, 13', f's_add_u32 s27, s27, {ST}',
                f's_mul_i32 s28, s{S_NLS}, {XN_SEG}', 's_add_u32 s28, s28, s31', f's_add_u32 s28, s28, {YN}', f's_xor_b32 s29, s{S_BUF}, 32768', 's_add_u32 s29, s29, s31',
                f's_cmp_lt_u32 s{S_NS}, 64\ns_cselect_b32 s58, 0x10000000, 0']
    def sl(G, s, srd): return [f'buffer_load_dwordx4 {vr(G,4)}, v13, {srd}, s{s} offen sc1', f'buffer_load_dwordx4 {vr(G+4,4)}, v6, {srd}, s{s} offen sc1']
    all_done(a, EXIT)
    a(f's_mov_b32 s{S_BUF}, 32768')
    for x in nxt_calc(): a(x)
    a(f'{LOOP}:')
    st.mark()
    a(f"""s_mov_b32 s{S_LS}, s{S_NLS}
    s_mov_b32 s26, s27
    s_xor_b32 s{S_BUF}, s{S_BUF}, 32768
    s_mul_i32 s24, s{S_LS}, {HF_SEG}
    s_add_u32 s24, s24, s30
    s_add_u32 s24, s24, {HF}
    s_add_u32 s25, s24, {56*1024}
    v_add_u32 v5, s{S_BUF}, v1
    s_add_u32 s{S_K}, s{S_K}, 1
    s_cmp_eq_u32 s{S_HAVE}, 1
    s_cbranch_scc1 {HV}
    {LD}:
    s_mul_i32 s22, s{S_LS}, {XN_SEG}
    s_add_u32 s22, s22, s31
    s_add_u32 s22, s22, {YN}
    s_add_u32 s23, s31, s{S_BUF}
    {SP}:""")
    for x in sl(G2, 26, SRD): a(x)
    if SPEC & 1:
        dma_frags(a, 7, 22, 23)
        a(f"""s_sub_u32 s{S_TO}, s{S_TO}, 1
        s_cbranch_scc1 {EXIT}
        s_waitcnt vmcnt(7)
        v_max_u32 v2, v{G2}, v{G2+4}
        v_cmp_eq_u32 vcc, -1, v2
        s_cbranch_vccnz {LD}""")
    else:
        a(f"""s_sub_u32 s{S_TO}, s{S_TO}, 1
        s_cbranch_scc1 {EXIT}
        s_waitcnt vmcnt(0)
        v_max_u32 v2, v{G2}, v{G2+4}
        v_cmp_eq_u32 vcc, -1, v2
        s_cbranch_vccz {SOK}
        s_sleep 1
        s_branch {SP}
        {SOK}:""")
        dma_frags(a, 7, 22, 23)
    a(f's_mov_b32 s{S_HAVE}, 0\n{HV}:')
    a(f'v_pk_add_f32 {vr(G,2)}, {vr(G2,2)}, {vr(G2+4,2)}\nv_pk_add_f32 {vr(G+2,2)}, {vr(G2+2,2)}, {vr(G2+6,2)}')
    sf = Asm(); stats_finish(sf, G, MS+4, ())
    for x in sf.lines:
        if 's_mov' not in x: a(x.replace('s20', 's34').replace('s21', 's35'))
    for rt in range(2):
        P = PK+6*rt
        a(f"""v_sub_f32 v{P}, 0, v{G+2*rt}
        v_mul_f32 v{P+2}, s33, v{G+2*rt+1}
        v_mov_b32 v{P+4}, v{MS+4+rt}""")
        for k in range(8): a(f'v_pk_mul_f32 {vr(ACC(rt,0)+2*k,2)}, {vr(P,2)}, {vr(cs+2*k,2)} op_sel_hi:[0,1]')
    a(f"""s_cmp_eq_u32 s{S_HAVE}, 1
    s_cbranch_scc1 {GO}
    s_waitcnt vmcnt(0)
    {GO}:
    s_waitcnt vmcnt(3)
    s_barrier""")
    st.mark()
    def rd(i): return f'ds_read_b128 {vr(yr+4*(i%6),4)}, v5 offset:{i*1024}'
    for i in range(4): a(rd(i))
    def epi(rt, pk):
        P = PK+6*rt; A = ACC(rt, 0); out = []
        if pk: out += [f'v_pk_mul_f32 {vr(A+2*k,2)}, {vr(P+2,2)}, {vr(A+2*k,2)} op_sel_hi:[0,1]' for k in range(4)]
        else: out += [f'v_mul_f32 v{A+k}, v{P+2}, v{A+k}' for k in range(8)]
        out += [f'v_exp_f32 v{A+k}, v{A+k}' for k in range(8)]
        if pk: out += [f'v_pk_fma_f32 {vr(A+2*k,2)}, {vr(A+2*k,2)}, {vr(P+4,2)}, {vr(P+4,2)} op_sel_hi:[1,0,0]' for k in range(4)]
        else: out += [f'v_fma_f32 v{A+k}, v{A+k}, v{P+4}, v{P+4}' for k in range(8)]
        out += [f'v_rcp_f32 v{A+k}, v{A+k}' for k in range(8)]
        if pk: out += [f'v_pk_mul_f32 {vr(A+2*k,2)}, {vr(A+2*k,2)}, {vr(A+8+2*k,2)}' for k in range(4)]
        else: out += [f'v_mul_f32 v{A+k}, v{A+k}, v{A+8+k}' for k in range(8)]
        out += [f'v_cvt_pk_bf16_f32 v{o+4*rt+d}, v{A+2*d}, v{A+2*d+1}' for d in range(4)]
        out.append(f'v_min_u32 v{o+4*rt}, 0xfffffffe, v{o+4*rt}')
        return out
    main = []; lanes = []
    for i in range(28):
        rt, ks = divmod(i, 14); b = 4*i
        main += [mf(vr(ACC(rt,tt),4), W(tt,ks), vr(yr+4*(i%6),4)) for tt in range(4)]
        if i % 2 == 0: lanes.append((b-1, 1, [f's_waitcnt lgkmcnt({max(0, min(2, 26-i))})']))
        if i+4 < 28: lanes.append((b, 1, [rd(i+4)]))
        if i & 1: lanes.append((b-1, 1, [chk2(m, yr+4*((i-1)%6), yr+4*(i%6), i == 1)]))
    free = [p for p in range(1, 62) if p % 4 in (1, 2)]
    nc = nxt_calc(); nc = nc[:9] + nc[-1:] + sl(G2, 27, SRD2) + nc[9:-1]
    nc += [f's_and_b32 s36, s{S_LS}, 63', f's_add_u32 s37, s24, {4*HF_SEG}', f's_cmp_lt_u32 s36, 60\ns_cselect_b32 s37, s37, {DUMMY}',
           f'buffer_store_dwordx4 {vr(SN,4)}, v1, {SRD}, s37 offen sc1', f's_add_u32 s37, s37, {56*1024}', f'buffer_store_dwordx4 {vr(SN,4)}, v1, {SRD}, s37 offen sc1']
    assert len(nc) <= len(free)-5
    for p, x in zip(free, nc): lanes.append((p, 1, [x]))
    lanes.append((free[-5], 1, [f's_waitcnt vmcnt(2)\nv_max_u32 v2, v{G2}, v{G2+4}']))
    lanes.append((free[-4], 1, ['v_cmp_eq_u32 vcc, -1, v2']))
    lanes.append((free[-2], 1, [f's_cmp_eq_u64 vcc, 0\ns_cselect_b32 s58, s58, 0\ns_cmp_lg_u32 s58, 0\ns_cselect_b32 s{S_HAVE}, 1, 0']))
    dl = dma_list(7, 28, 29, SRD2)
    for k in range(7): lanes.append((63+7*k, 1, ['\n'.join(dl[k][0] + [dl[k][1]])]))
    e0 = epi(0, False)
    pos = [p for p in range(62, 112) if (p % 4 != 0 or p >= 96) and (p-63) % 7 != 0]
    for p, x in zip(pos, e0): lanes.append((p, 1, [x]))
    sched(a, main, lanes)
    for x in e0[len(pos):]: a(x)
    st.mark()
    redo_if_bad(a, m, REDO, EXIT)
    a(f'buffer_store_dwordx4 {vr(o,4)}, v1, {SRD}, s24 offen sc1\ns_nop 3')
    for x in epi(1, True): a(x)
    a(f'buffer_store_dwordx4 {vr(o+4,4)}, v1, {SRD}, s25 offen sc1')
    hint(a, F_H, S_P)
    st.mark()
    st.flush(2, 20, S_LS)
    a(f's_cmp_lt_u32 s{S_NS}, 64\ns_cbranch_scc1 {LOOP}\n{DONE}:')
    if stamps: stamp_dump(a, EXIT)
    else: a(f's_branch {EXIT}')
    a(f'{REDO}:\ns_sub_u32 s{S_TO}, s{S_TO}, 64\ns_cbranch_scc1 {EXIT}\ns_waitcnt vmcnt(0)\ns_barrier\ns_branch {LD}')

S_T = 30
def team_setup(a):
    a(f'''s_lshl_b32 s{S_T}, s{S_P}, 2
    s_add_u32 s{S_T}, s{S_T}, s{S_W}
    v_and_b32 v2, 15, v7
    v_lshrrev_b32 v3, 4, v7
    v_mul_u32_u24 v11, 896, v2
    s_lshl_b32 s20, s{S_T}, 5
    v_add_u32 v11, s20, v11
    v_lshl_add_u32 v10, v3, 3, v11
    v_lshlrev_b32 v12, 4, v2
    v_mul_u32_u24 v13, {7*256}, v3
    v_add_u32 v13, v13, v12
    v_lshl_add_u32 v12, v3, 2, v12
    s_lshl_b32 s20, s{S_T}, 8
    v_add_u32 v12, s20, v12
    v_lshrrev_b32 v4, 1, v3
    v_lshl_add_u32 v11, v4, 4, v11
    v_lshlrev_b32 v6, 8, v4
    v_lshl_add_u32 v6, v2, 4, v6
    s_lshl_b32 s20, s{S_T}, 9
    v_add_u32 v6, s20, v6
    v_and_b32 v4, 1, v3
    v_mul_u32_u24 v9, 14336, v4
    v_add_u32 v5, v6, v9
    v_add_u32 v11, v11, v9
    v_lshl_add_u32 v6, v4, 3, v6''')

def cu_stats_setup(a, lds):
    a(f"""v_lshlrev_b32 v169, 2, v7
    v_add_u32 v169, {lds}, v169
    s_lshl_b32 s20, s{S_W}, 8
    v_add_u32 v168, s20, v169
    v_lshlrev_b32 v13, 4, v2
    v_lshl_add_u32 v12, v3, 2, v13
    s_lshl_b32 s20, s{S_P}, 8
    v_add_u32 v12, s20, v12
    v_lshl_add_u32 v13, v3, 9, v13
    v_add_u32 v170, 256, v13
    v_mov_b32 v171, {OOB}
    v_cmp_gt_u32 vcc, 64, v0
    v_cmp_gt_u32 s[20:21], 3, v3
    s_nop 1
    v_cndmask_b32 v12, v171, v12, vcc
    v_cndmask_b32 v170, v171, v170, s[20:21]""")

def cu_stats(a, q):
    a(f"""ds_write_b32 v168, v{q}
    s_waitcnt lgkmcnt(0)
    s_barrier
    ds_read2st64_b32 {vr(q,2)}, v169 offset0:0 offset1:1
    ds_read2st64_b32 {vr(q+2,2)}, v169 offset0:2 offset1:3
    s_waitcnt lgkmcnt(0)
    v_add_f32 v{q}, v{q}, v{q+1}
    v_add_f32 v{q+2}, v{q+2}, v{q+3}
    v_add_f32 v{q}, v{q}, v{q+2}
    v_min_u32 v{q}, 0xfffffffe, v{q}""")

def add_residual(a, A, RS, XP):
    for rt in range(2):
        for d in range(2):
            x = A+4*rt+2*d; r = RS+2*rt+d
            a(f'''v_lshlrev_b32 v2, 16, v{r}
            v_and_b32 v3, 0xffff0000, v{r}
            v_add_f32 v{x}, v{x}, v2
            v_add_f32 v{x+1}, v{x+1}, v3
            v_cvt_pk_bf16_f32 v{XP+2*rt+d}, v{x}, v{x+1}
            v_lshlrev_b32 v{x}, 16, v{XP+2*rt+d}
            v_and_b32 v{x+1}, 0xffff0000, v{XP+2*rt+d}''')

def pair_swap(a, XP):
    a(f's_nop 1\nv_permlane16_swap_b32 v{XP}, v{XP+2}\nv_permlane16_swap_b32 v{XP+1}, v{XP+3}')

def res_valid(a, RS, s0, EXIT):
    L = a.label('Lrv'); OK = a.label('Lrok')
    a(f'''{L}:
    v_max3_u32 v2, v{RS}, v{RS+1}, v{RS+2}
    v_max_u32 v2, v2, v{RS+3}
    v_cmp_eq_u32 vcc, -1, v2
    s_cbranch_vccz {OK}
    buffer_load_dwordx2 {vr(RS,2)}, v6, {SRD}, s{s0} offen sc1
    buffer_load_dwordx2 {vr(RS+2,2)}, v6, {SRD}, s{s0+1} offen sc1
    s_sub_u32 s{S_TO}, s{S_TO}, 1
    s_cbranch_scc1 {EXIT}
    s_waitcnt vmcnt(0)
    s_branch {L}
    {OK}:''')

def b2_role(a, EXIT, stamps=0, mode_fn=None):
    a('; ================= B2 role =================')
    DONE = a.label('Ldone')
    W = lambda ks: ar(4*ks, 4)
    hr, A, RSv, XP, AC, G, YP, m = 40, 16, 24, 28, 64, 80, 32, 36
    common_setup(a)
    sched_setup(a, 'B2')
    team_setup(a)
    cu_stats_setup(a, 122880)
    a(f'''s_load_dwordx2 s[36:37], s[0:1], 80
    s_load_dwordx2 s[48:49], s[0:1], 88
    v_lshrrev_b32 v4, 1, v7
    v_mul_u32_u24 v4, 896, v4
    v_and_b32 v8, 1, v7
    v_lshl_add_u32 v4, v8, 4, v4
    v_min_u32 v8, 13, v2
    v_lshlrev_b32 v8, 7, v8
    s_mul_i32 s31, s{S_W}, 28672
    v_lshlrev_b32 v9, 8, v3
    v_and_b32 v2, 15, v7
    v_lshl_add_u32 v9, v2, 3, v9
    v_add_u32 v9, s31, v9
    s_mov_b32 s38, {1792*896}
    s_mov_b32 s39, 0x20000
    s_mov_b32 s50, {2048*896}
    s_mov_b32 s51, 0x20000
    s_lshl_b32 s22, s{S_T}, 5
    s_waitcnt lgkmcnt(0)''')
    for rr in range(2):
        a('s_mov_b32 s23, s31')
        for k in range(28):
            a(f'''s_mov_b32 m0, s23
            s_add_u32 s23, s23, 1024
            buffer_load_dwordx4 v4, s[36:39], s22 offen lds
            s_add_u32 s22, s22, {32*896}''')
        for k in range(28):
            if k % 4 == 0: a(f's_waitcnt vmcnt({24-k}) lgkmcnt(0)')
            for jh in range(2): a(f'ds_read_b64_tr_b16 {ar(4*(28*rr+k)+2*jh,2)}, v9 offset:{k*1024+jh*128}')
        a('s_waitcnt lgkmcnt(0)')
    all_done(a, EXIT)
    mode_fn(16, 17, 32)
    sent4(a, XP)
    LF = a.label('Lpf'); LFD = a.label('Lpfd')
    a(f's_mov_b32 s{S_K}, 0\n{LF}:')
    merged_task(a, D_B2, LFD)
    a(f'''s_add_u32 s{S_K}, s{S_K}, 1
    s_cmp_eq_u32 s{S_L}, 0
    s_cbranch_scc0 {LF}
    s_mul_i32 s23, s{S_S}, 28672
    s_add_u32 s25, s23, {XN + 64*XN_SEG}
    s_add_u32 s26, s23, {X2}
    buffer_store_dwordx4 {vr(XP,4)}, v5, {SRD}, s25 offen sc1
    buffer_store_dwordx4 {vr(XP,4)}, v5, {SRD}, s26 offen sc1
    s_waitcnt vmcnt(32)
    s_branch {LF}
    {LFD}:
    v_add_u32 v9, 57344, v1
    s_and_b32 s31, s{S_W}, 1
    s_mul_i32 s31, s31, 4096
    s_lshr_b32 s25, s{S_W}, 1
    s_mul_i32 s25, s25, {56*1024}
    s_add_u32 s31, s31, s25
    s_mov_b32 s{S_K}, 0''')
    st = Stamps(a, stamps)
    LOOP = a.label('Lb2'); LD = a.label('Lld'); REDO = a.label('Lredo')
    def nxt():
        NE = a.label('Lne')
        merged_task(a, D_B2, NE, S_NL, S_NS, S_NLS)
        flag_off(a, 29, F_H, S_NLS)
        a(f'buffer_load_dword v4, v8, {SRD}, s29 offen sc1\n{NE}:')
    nxt()
    a(f'''s_waitcnt vmcnt(0)
    {LOOP}:
    s_mov_b32 s{S_L}, s{S_NL}
    s_mov_b32 s{S_S}, s{S_NS}
    s_mov_b32 s{S_LS}, s{S_NLS}
    v_cmp_eq_u32 vcc, 0, v4
    s_cbranch_vccz {LD}''')
    def hsrc():
        a(f'''s_mul_i32 s22, s{S_LS}, {HF_SEG}
        s_add_u32 s22, s22, {HF}
        s_add_u32 s22, s22, s31
        s_mov_b32 s23, s31''')
    def chunk(c):
        out = [f's_mov_b32 m0, s23', f's_add_u32 s23, s23, 8192']
        out += [f'buffer_load_dwordx4 v1, {SRD}, s22 offen offset:{i*1024} sc1 lds' for i in range(4)]
        out += [f's_add_u32 s22, s22, 8192']
        return out
    if SPEC & 8:
        a('s_barrier')
        wait_spec(a, 8, 29, 4, EXIT, hsrc, lambda: [a(x) for x in chunk(0)+chunk(1)], 8)
        a(f's_branch {LD}_j')
    else: wait_flags(a, 8, 29, 4, EXIT)
    a(f'{LD}:\ns_barrier')
    st.mark()
    hsrc()
    for x in chunk(0)+chunk(1): a(x)
    a(f'{LD}_j:')
    for x in chunk(2): a(x)
    a(f'''s_mul_i32 s26, s{S_LS}, 28672
    s_add_u32 s26, s26, {YN}
    s_add_u32 s27, s26, 14336
    s_lshl_b32 s24, s{S_S}, 13
    s_add_u32 s24, s24, {ST + 64*ST_SEG}''')
    extra = [f'buffer_load_dwordx2 {vr(RSv,2)}, v6, {SRD}, s26 offen sc1', f'buffer_load_dwordx2 {vr(RSv+2,2)}, v6, {SRD}, s27 offen sc1',
             f'buffer_load_dwordx4 {vr(G,4)}, v13, {SRD}, s24 offen sc1', f'buffer_load_dwordx4 {vr(G+4,4)}, v170, {SRD}, s24 offen sc1']
    def rd(ks): return [f'ds_read_b128 {vr(hr+8*(ks%3),4)}, v1 offset:{ks*1024}', f'ds_read_b128 {vr(hr+8*(ks%3)+4,4)}, v9 offset:{ks*1024}']
    for c in range(7):
        younger = 4*(min(c+2, 6)-c) + (4 if c >= 5 else 0)
        a(f's_waitcnt vmcnt({younger})\ns_barrier')
        if c == 0: st.mark()
        k0 = 8*c
        ex = chunk(c+3) if c+3 < 7 else (extra if c == 4 else [])
        for ins in rd(k0) + rd(k0+1): a(ins)
        for ks in range(k0, k0+8):
            a(f's_waitcnt lgkmcnt({2 if ks < k0+7 else 0})')
            for rt in range(2):
                a(mf(vr(AC+8*rt+4*(ks&1),4), W(ks), vr(hr+8*(ks%3)+4*rt,4), 0 if ks < 2 else None))
                if ks+2 < k0+8: a(rd(ks+2)[rt])
                if rt == 1: a(chk2(m, hr+8*(ks%3), hr+8*(ks%3)+4, ks == 0))
            if ex: a(ex.pop(0))
    st.mark()
    redo_if_bad(a, m, REDO, EXIT)
    a(f's_add_u32 s{S_K}, s{S_K}, 1\ns_waitcnt vmcnt(0)')
    res_valid(a, RSv, 26, EXIT)
    for rt in range(2):
        for r in range(4): a(f'v_add_f32 v{A+4*rt+r}, v{AC+8*rt+r}, v{AC+8*rt+4+r}')
    add_residual(a, A, RSv, XP)
    L1 = a.label('Lb2l1'); LE = a.label('Lb2e'); LS = a.label('Lsl'); L = a.label('Lst')
    a(f'''s_mul_i32 s23, s{S_S}, 28672
    s_cmp_eq_u32 s{S_L}, 0
    s_cbranch_scc0 {L1}''')
    q = G+28
    stats_partial(a, A, q)
    cu_stats(a, q)
    a(f'''s_cmp_eq_u32 s{S_FAST}, 1
    s_cbranch_scc0 {LS}
    buffer_store_dword v{q}, v12, {SRD}, s24 offen
    s_branch {L}
    {LS}:
    buffer_store_dword v{q}, v12, {SRD}, s24 offen sc1
    {L}:
    buffer_load_dwordx4 {vr(G,4)}, v13, {SRD}, s24 offen sc1
    buffer_load_dwordx4 {vr(G+4,4)}, v170, {SRD}, s24 offen sc1
    s_sub_u32 s{S_TO}, s{S_TO}, 1
    s_cbranch_scc1 {EXIT}
    s_waitcnt vmcnt(0)
    v_max_u32 v2, v{G}, v{G+4}
    v_cmp_eq_u32 vcc, -1, v2
    s_cbranch_vccnz {L}''')
    nxt()
    stats_finish(a, G, None, ((0, 1),))
    for rt in range(2):
        x = A+4*rt
        for r in range(4): a(f'v_sub_f32 v{x+r}, v{x+r}, v{G+2*rt}')
        for r in range(4): a(f'v_mul_f32 v{x+r}, v{x+r}, v{G+2*rt+1}')
        a(f'v_cvt_pk_bf16_f32 v{YP+2*rt}, v{x}, v{x+1}\nv_cvt_pk_bf16_f32 v{YP+2*rt+1}, v{x+2}, v{x+3}')
    guard(a, XP, 4); guard(a, YP, 4)
    pair_swap(a, YP)
    a(f's_add_u32 s25, s23, {XN + 64*XN_SEG}\nbuffer_store_dwordx4 {vr(YP,4)}, v5, {SRD}, s25 offen sc1')
    hint(a, F_XN, S_P, add=64)
    pair_swap(a, XP)
    a(f's_add_u32 s26, s23, {X2}\nbuffer_store_dwordx4 {vr(XP,4)}, v5, {SRD}, s26 offen sc1')
    a(f's_waitcnt vmcnt(3)\ns_branch {LE}\n{L1}:')
    nxt()
    pair_swap(a, XP)
    a(f'buffer_store_dwordx4 {vr(XP,4)}, v11, s[48:51], s23 offen\ns_waitcnt vmcnt(1)\n{LE}:')
    st.mark()
    st.flush(2, 20, S_LS)
    a(f's_cmp_lt_u32 s{S_NS}, 64\ns_cbranch_scc1 {LOOP}\n{DONE}:')
    if stamps: stamp_dump(a, EXIT)
    else: a(f's_branch {EXIT}')
    a(f'{REDO}:\ns_sub_u32 s{S_TO}, s{S_TO}, 64\ns_cbranch_scc1 {EXIT}\ns_branch {LD}')

def pv_role(a, EXIT, stamps=0):
    a('; ================= PV role =================')
    DONE = a.label('Ldone')
    vx, vm, pr, A, RS, XP, AC, q, m = 32, 96, 112, 16, 24, 28, 144, 160, 166
    WD = a.label('Lpvd')
    a(f'''s_branch {WD}
    {chain.PV_ENTRY}:
    s_cmp_ge_u32 s{S_P}, 7
    s_cselect_b32 s{S_U}, 4, 3
    s_cselect_b32 s20, 7, 0
    s_sub_u32 s{S_P}, s{S_P}, s20
    {WD}:''')
    common_setup(a)
    sched_setup(a, 'PV')
    team_setup(a)
    cu_stats_setup(a, 49152)
    a(f'''s_load_dwordx2 s[36:37], s[0:1], 0
    v_lshlrev_b32 v8, 7, v2
    v_mov_b32 v13, v8
    v_and_b32 v4, 1, v7
    s_lshl_b32 s20, s{S_P}, 1
    v_add_u32 v4, s20, v4
    v_lshlrev_b32 v4, 7, v4
    s_mov_b32 s38, {2048*896}
    s_mov_b32 s39, 0x20000
    s_mov_b32 s{S_K}, 0
    s_waitcnt lgkmcnt(0)''')
    sent4(a, XP)
    LF = a.label('Lpf'); LFD = a.label('Lpfd')
    a(f'{LF}:')
    merged_task(a, D_PV, LFD)
    a(f'''s_add_u32 s{S_K}, s{S_K}, 1
    s_mul_i32 s25, s{S_LS}, 28672
    s_add_u32 s25, s25, {YN}
    buffer_store_dwordx4 {vr(XP,4)}, v5, {SRD}, s25 offen sc1
    s_waitcnt vmcnt(32)
    s_branch {LF}
    {LFD}:
    s_mov_b32 s{S_K}, 0''')
    st = Stamps(a, stamps)
    LOOP = a.label('Lpv'); L1 = a.label('Lpv1'); LJ = a.label('Lpvj'); REDO = a.label('Lredo'); RUN = a.label('Lrun'); NR_ = a.label('Lnr')
    def nxt():
        NE = a.label('Lne')
        merged_task(a, D_PV, NE, S_NL, S_NS, S_NLS)
        flag_off(a, 26, F_VX, S_NLS); flag_off(a, 27, F_P, S_NLS); flag_off(a, 28, F_VM, S_NLS)
        a(f'''buffer_load_dword v9, v8, {SRD}, s26 offen sc1
        buffer_load_dword v164, v13, {SRD}, s27 offen sc1
        buffer_load_dword v165, v4, {SRD}, s28 offen sc1
        {NE}:''')
    all_done(a, EXIT)
    nxt()
    a(f'''s_waitcnt vmcnt(0)
    {LOOP}:
    s_mov_b32 s{S_L}, s{S_NL}
    s_mov_b32 s{S_S}, s{S_NS}
    s_mov_b32 s{S_LS}, s{S_NLS}''')
    def need(v, voff, soff):
        LOK = a.label('Lok')
        a(f'v_cmp_eq_u32 vcc, 0, v{v}\ns_cbranch_vccz {LOK}')
        wait_flags(a, voff, soff, v, EXIT)
        a(f'{LOK}:')
    a('s_waitcnt vmcnt(2)')
    need(9, 8, 26)
    st.mark()
    def vxl():
        LA = a.label('La'); LB = a.label('Lb')
        a(f'''s_mul_i32 s22, s{S_LS}, {VX_SEG}
        s_lshl_b32 s23, s{S_T}, 10
        s_add_u32 s22, s22, s23
        s_add_u32 s22, s22, {VX}''')
        for h in range(16):
            a(f'buffer_load_dwordx4 {vr(vx+4*h,4)}, v1, {SRD}, s22 offen sc1')
            if h < 15: a('s_add_u32 s22, s22, 28672')
        a(f'''s_mul_i32 s32, s{S_S}, 28672
        s_cmp_eq_u32 s{S_L}, 0
        s_cbranch_scc0 {LA}
        s_add_u32 s33, s32, 14336
        buffer_load_dwordx2 {vr(RS,2)}, v10, s[36:39], s32 offen
        buffer_load_dwordx2 {vr(RS+2,2)}, v10, s[36:39], s33 offen
        s_branch {LB}
        {LA}:
        s_add_u32 s32, s32, {X2}
        s_add_u32 s33, s32, 14336
        buffer_load_dwordx2 {vr(RS,2)}, v6, {SRD}, s32 offen sc1
        buffer_load_dwordx2 {vr(RS+2,2)}, v6, {SRD}, s33 offen sc1
        {LB}:''')
    def pdma():
        a(f'''s_mul_i32 s22, s{S_LS}, {PF_SEG}
        s_mul_i32 s23, s{S_W}, 10240
        s_add_u32 s22, s22, s23
        s_add_u32 s22, s22, {PF}''')
        dma_frags(a, 10, 22, 23)
    def vml():
        a(f'''s_mul_i32 s22, s{S_LS}, {VM_SEG}
        s_lshl_b32 s23, s{S_T}, 10
        s_add_u32 s22, s22, s23
        s_add_u32 s22, s22, {VM}''')
        for hq in range(4):
            a(f'buffer_load_dwordx4 {vr(vm+4*hq,4)}, v1, {SRD}, s22 offen sc1')
            if hq < 3: a('s_add_u32 s22, s22, 28672')
    JIT = a.label('Ljit')
    a(f'''s_mul_i32 s25, s{S_LS}, 28672
    s_add_u32 s25, s25, {YN}
    s_lshl_b32 s24, s{S_L}, 7
    s_add_u32 s24, s24, s{S_S}
    s_lshl_b32 s24, s24, 13
    s_add_u32 s24, s24, {ST}
    v_min_u32 v2, v164, v165
    v_cmp_eq_u32 vcc, 0, v2
    s_cbranch_vccnz {JIT}''')
    pdma(); vxl(); vml()
    st.mark()
    a(f's_mov_b32 s29, 1\ns_waitcnt vmcnt(22)\ns_branch {RUN}\n{JIT}:')
    st.n -= 1
    vxl()
    if SPEC & 16:
        wait_spec(a, 13, 27, 164, EXIT, lambda: None, pdma, 10)
        st.mark()
    else:
        need(164, 13, 27)
        st.mark()
        pdma()
    a(f'''buffer_load_dword v165, v4, {SRD}, s28 offen sc1
    s_mov_b32 s29, 0
    s_waitcnt vmcnt(0)
    v_cmp_eq_u32 vcc, 0, v165
    s_cbranch_vccnz {RUN}''')
    vml()
    a(f'''s_mov_b32 s29, 1
    {RUN}:
    s_barrier''')
    st.mark()
    NR = 8
    def rd(i): return f'ds_read_b128 {vr(pr+4*(i%NR),4)}, v1 offset:{i*1024}'
    for i in range(6): a(rd(i))
    for i in range(40):
        if i == 32:
            VOK = a.label('Lvok')
            a(f's_cmp_eq_u32 s29, 1\ns_cbranch_scc1 {VOK}')
            need(165, 4, 28)
            vml()
            a(f's_mov_b32 s29, 1\n{VOK}:\ns_waitcnt vmcnt(0)')
        if i % 2 == 0: a(f's_waitcnt lgkmcnt({max(0, min(4, 38-i))})' + (f' vmcnt({21-i//2})' if i < 32 else ''))
        rt = i & 1; par = (i >> 1) & 1
        Aop = vx+4*(i >> 1) if i < 32 else vm+4*((i-32) >> 1)
        a(mf(vr(AC+8*rt+4*par,4), vr(Aop,4), vr(pr+4*(i%NR),4), 0 if i < 4 else None))
        a(chk2(m, pr+4*(i%NR), pr+4*(i%NR)+2, i == 0))
        if i+6 < 40: a(rd(i+6))
    st.mark()
    redo_if_bad(a, m, REDO, EXIT)
    a(f's_cmp_eq_u32 s{S_L}, 0\ns_cbranch_scc1 {NR_}')
    res_valid(a, RS, 32, EXIT)
    a(f'{NR_}:\ns_add_u32 s{S_K}, s{S_K}, 1')
    nxt()
    for rt in range(2):
        for r in range(4): a(f'v_add_f32 v{A+4*rt+r}, v{AC+8*rt+r}, v{AC+8*rt+4+r}')
    st.mark(2)
    add_residual(a, A, RS, XP)
    guard(a, XP, 4)
    pair_swap(a, XP)
    a(f'buffer_store_dwordx4 {vr(XP,4)}, v5, {SRD}, s25 offen sc1')
    st.mark(2)
    stats_partial(a, A, q)
    cu_stats(a, q)
    a(f'''buffer_store_dword v{q}, v12, {SRD}, s24 offen sc1''')
    st.mark()
    st.flush(2, 20, S_LS)
    a(f's_cmp_lt_u32 s{S_NS}, 64\ns_cbranch_scc1 {LOOP}\n{DONE}:')
    if stamps: stamp_dump(a, EXIT)
    else: a(f's_branch {EXIT}')
    a(f'{REDO}:\ns_sub_u32 s{S_TO}, s{S_TO}, 64\ns_cbranch_scc1 {EXIT}\ns_barrier')
    pdma()
    a(f's_waitcnt vmcnt(0)\ns_branch {RUN}')
```

```python
import re, gen, sys
KN = gen.KN
def ev(word, va=248, vb=249):
    return f"""    s_load_dwordx2 s[84:85], s[0:1], 96
    s_memrealtime s[86:87]
    s_waitcnt lgkmcnt(0)
    v_mov_b32 v{va}, 0
    v_mov_b32 v{vb}, s86
    s_mov_b64 exec, 1
    global_atomic_umax v{va}, v{vb}, s[84:85] offset:{4*word} sc1
    s_mov_b64 exec, -1
"""
def make(path):
    t = gen.build()
    t = t.replace("    s_lshl_b32 s13, s7, 5\n", "    v_mov_b32 v4, s78\n    buffer_store_dword v4, v1, s[80:83], 0 offen offset:36 sc1\n" + ev(10, 5, 6).replace('    s_mov_b64 exec, -1\n', '') + "    s_lshl_b32 s13, s7, 5\n", 1)
    t = t.replace(f'{KN}_kernel_exit:\n', f'{KN}_kernel_exit2:\n    s_cmp_lg_u32 s12, 0\n    s_cbranch_scc1 {KN}_kernel_exit\n' + ev(15, 2, 3) + f'{KN}_kernel_exit:\n')
    def chain_done(m):
        return m.group(0) + """    s_load_dwordx2 s[84:85], s[0:1], 96
    s_memrealtime s[86:87]
    s_lshl_b32 s88, s14, 2
    s_waitcnt lgkmcnt(0)
    v_mov_b32 v2, s88
    v_mov_b32 v3, s86
    s_mov_b64 exec, 1
    global_atomic_umax v2, v3, s[84:85] offset:48 sc1
    s_mov_b64 exec, -1
"""
    i_k = t.index('= chain K-CU'); i_v = t.index('= chain V-CU')
    kpart = re.sub(r'Ldone_\d+:\n', chain_done, t[i_k:i_v], count=1)
    kpart = kpart.replace('    s_cmp_eq_u32 s16, 1\n    s_cbranch_scc0 Lkslow', '    s_cmp_eq_u32 s14, 1\n    s_cbranch_scc1 Lnoev\n' + ev(11, 112, 113) + 'Lnoev:\n    s_cmp_eq_u32 s16, 1\n    s_cbranch_scc0 Lkslow', 1)
    kpart = re.sub(r'(Lkf_\d+:\n)', lambda m: m.group(1) + '    s_lshl_b32 s88, s14, 8\n    s_add_u32 s88, s88, s17\n    s_cmp_lg_u32 s88, 2\n    s_cbranch_scc1 Lnoev2\n' + ev(14, 112, 113) + 'Lnoev2:\n', kpart, count=1)
    rest = t[i_v:].replace(f's_branch {KN}_kernel_exit\n', f's_branch {KN}_kernel_exit2\n')
    open(path, 'w').write(t[:i_k] + kpart + rest)
if __name__ == '__main__': make('dbgt.s')
```

```python
from asmlib import *
from layout import *
from workers import gather_pairs, mf
SRD = 's[8:11]'
SCALE = 0x3db8aa3b
WST = 'sc1'
NT = ''
TOUCH = 1

def prep_body(a, END, hook, stamps=0):
    n_st = [0]
    def mark():
        if stamps:
            a(f's_memrealtime s[{60+2*n_st[0]}:{61+2*n_st[0]}]'); n_st[0] += 1
    def dump():
        if stamps == 9: a('s_memrealtime s[74:75]\ns_waitcnt vmcnt(0)\ns_memrealtime s[76:77]\ns_waitcnt lgkmcnt(0)')
        if not stamps or stamps == 9: return
        a(f'''s_waitcnt vmcnt(0)
        s_memrealtime s[76:77]
        s_waitcnt lgkmcnt(0)
        s_lshl_b32 s20, s2, 2
        s_add_u32 s20, s20, s12
        s_lshl_b32 s20, s20, 6
        s_add_u32 s20, s20, {STAMP+0x800000}
        v_mov_b32 v2, 0''')
        for k in range(9):
            a(f'v_mov_b32 v3, s{60+2*k}\nbuffer_store_dword v3, v2, s[8:11], s20 offen offset:{4*k}')
    EXIT = END
    mark()
    a(f'''v_and_b32 v7, 63, v0
    v_lshlrev_b32 v1, 4, v7
    v_lshlrev_b32 v2, 4, v0
    v_mov_b32 v16, -1
    v_mov_b32 v17, -1
    v_mov_b32 v18, -1
    v_mov_b32 v19, -1
    v_mov_b32 v20, 0
    v_mov_b32 v21, 0
    v_mov_b32 v22, 0
    v_mov_b32 v23, 0''')
    if TOUCH & 2:
        a(f'''s_cmp_lt_u32 s12, 2
        s_cselect_b32 s24, s44, s48
        s_cselect_b32 s25, s45, s49
        s_cselect_b32 s28, s46, s50
        s_cselect_b32 s29, s47, s51
        s_bitcmp1_b32 s12, 0
        s_cselect_b32 s24, s28, s24
        s_cselect_b32 s25, s29, s25
        s_mov_b32 s26, {448*8192}
        s_mov_b32 s27, 0x20000
        s_mul_i32 s20, s2, 14336
        v_lshlrev_b32 v8, 7, v7
        v_min_u32 v9, 47, v7
        v_lshlrev_b32 v9, 7, v9
        s_add_u32 s21, s20, 8192
        buffer_load_dword v251, v8, s[24:27], s20 offen
        buffer_load_dword v251, v9, s[24:27], s21 offen''')
    LN = a.label('Lln')
    def fills():
        nb = (SENT1-SENT0)//8192
        skip = [0, 4, (MEMG-SENT0)//8192, (MEMG-SENT0)//8192+64]
        OOBS = 0x70000000
        for rnd in range(2):
            a(f's_lshl_b32 s20, s2, 13\ns_add_u32 s20, s20, {SENT0 + 256*8192*rnd}')
            if rnd == 0:
                for b in skip: a(f's_cmp_eq_u32 s2, {b}\ns_cselect_b32 s20, {OOBS}, s20')
            else:
                a(f's_cmp_ge_u32 s2, {nb-256}\ns_cselect_b32 s20, {OOBS}, s20')
            a(f'''s_add_u32 s21, s20, 4096
            buffer_store_dwordx4 v[16:19], v2, {SRD}, s20 offen {WST}
            buffer_store_dwordx4 v[16:19], v2, {SRD}, s21 offen {WST}''')
        a(f's_mul_i32 s20, s2, 20480\ns_add_u32 s20, s20, {PF}')
        for k in range(5): a(f'buffer_store_dwordx4 v[16:19], v2, {SRD}, s20 offen {WST}\ns_add_u32 s20, s20, 4096')
        nz = (ZERO1-ZERO0)//4096
        assert (ZERO1-ZERO0) % 4096 == 0 and 256 <= nz <= 512
        for rnd in range(2):
            a(f's_lshl_b32 s20, s2, 12\ns_add_u32 s20, s20, {ZERO0 + 256*4096*rnd}')
            if rnd: a(f's_cmp_ge_u32 s2, {nz-256}\ns_cselect_b32 s20, {OOBS}, s20')
            a(f'buffer_store_dwordx4 v[20:23], v2, {SRD}, s20 offen {WST}')
    a(f's_cmp_ge_u32 s2, 224\ns_cbranch_scc1 {LN}')
    LV = a.label('Lfv'); LJ = a.label('Lfj')
    a(f'''s_lshr_b32 s20, s2, 3
    s_mul_i32 s21, s20, 37
    s_lshr_b32 s21, s21, 8
    s_mul_i32 s22, s21, 7
    s_sub_u32 s14, s20, s22
    s_and_b32 s22, s2, 7
    s_lshl_b32 s22, s22, 1
    s_lshl_b32 s13, s21, 1
    s_and_b32 s13, s13, 4
    s_add_u32 s22, s22, s13
    s_and_b32 s13, s21, 1
    s_add_u32 s15, s22, s13
    s_and_b32 s15, s15, 15
    s_lshl_b32 s13, s21, 3
    s_and_b32 s13, s13, 16
    s_add_u32 s13, s13, s15
    s_lshl_b32 s16, s14, 2
    s_add_u32 s16, s16, s12
    v_and_b32 v3, 15, v7
    v_lshrrev_b32 v4, 4, v7
    v_lshrrev_b32 v5, 2, v3
    v_and_b32 v6, 3, v3
    v_lshl_add_u32 v5, v5, 3, v6
    v_lshlrev_b32 v5, 13, v5
    v_lshl_add_u32 v5, v4, 4, v5
    s_lshl_b32 s17, s15, 9
    s_lshl_b32 s37, s12, 13
    s_mov_b32 s26, {448*8192}
    s_mov_b32 s27, 0x20000
    s_mov_b32 s30, {448*8192}
    s_mov_b32 s31, 0x20000
    s_cmp_ge_u32 s13, 16
    s_cbranch_scc1 {LV}
    s_mov_b32 s24, s44
    s_mov_b32 s25, s45
    s_mov_b32 s28, s46
    s_mov_b32 s29, s47
    v_lshrrev_b32 v24, 2, v7
    v_lshlrev_b32 v24, 13, v24
    v_and_b32 v25, 3, v7
    v_lshl_add_u32 v24, v25, 7, v24
    s_lshl_b32 s21, s16, 17
    s_add_u32 s21, s21, s17
    {'buffer_load_dword v251, v24, s[24:27], s21 offen' if TOUCH & 1 else ''}
    s_mov_b32 s32, {SCALE}
    s_mov_b32 s33, {WA}
    s_lshr_b32 s20, s16, 1
    s_lshl_b32 s20, s20, 5
    s_and_b32 s21, s16, 1
    s_lshl_b32 s21, s21, 2
    s_add_u32 s20, s20, s21
    s_lshl_b32 s20, s20, 13
    s_add_u32 s20, s20, s17''')
    for kd in range(8):
        a(f's_add_u32 m0, s37, {kd*1024 - kd*64}\ns_nop 0\nbuffer_load_dwordx4 v5, s[28:31], s20 offen offset:{kd*64} {NT} lds')
    a(f"""s_branch {LJ}
    {LV}:
    s_mov_b32 s24, s48
    s_mov_b32 s25, s49
    s_mov_b32 s28, s50
    s_mov_b32 s29, s51
    v_lshrrev_b32 v24, 2, v7
    v_lshlrev_b32 v24, 13, v24
    v_and_b32 v25, 3, v7
    v_lshl_add_u32 v24, v25, 7, v24
    s_lshl_b32 s21, s16, 17
    s_add_u32 s21, s21, s17
    {'buffer_load_dword v251, v24, s[24:27], s21 offen' if TOUCH & 1 else ''}
    s_mov_b32 s32, 1.0
    s_mov_b32 s33, {WV}
    v_lshrrev_b32 v8, 1, v7
    v_mul_u32_u24 v8, 896, v8
    v_and_b32 v9, 1, v7
    v_lshl_add_u32 v8, v9, 4, v8
    s_mul_i32 s21, s15, {256*896}
    s_lshl_b32 s20, s16, 5
    s_add_u32 s21, s21, s20""")
    for kd in range(8):
        a(f's_add_u32 m0, s37, {kd*1024}\ns_add_u32 s20, s21, {kd*32*896}\nbuffer_load_dwordx4 v8, s[28:31], s20 offen {NT} lds')
    a(f'{LJ}:')
    mark()
    AF = lambda n, ab, kd: 64*(n & 1) + 32*ab + 4*kd
    a(f"""v_lshrrev_b32 v24, 3, v7
    v_and_b32 v25, 7, v7
    v_bfe_u32 v26, v7, 4, 1
    v_xor_b32 v25, v25, v26
    v_lshlrev_b32 v24, 13, v24""")
    for rg in range(4):
        a(f"""v_xor_b32 v26, {2*rg}, v25
        v_lshl_add_u32 v{10+rg}, v26, 4, v24
        v_add_u32 v{10+rg}, {rg*8*8192}, v{10+rg}""")
    a(f"""s_lshl_b32 s38, s12, 15
    s_add_u32 s38, s38, 32768
    v_lshrrev_b32 v24, 2, v3
    v_lshlrev_b32 v14, 10, v24
    v_lshl_add_u32 v14, v6, 7, v14
    v_lshlrev_b32 v24, 1, v24
    v_lshrrev_b32 v25, 1, v6
    v_or_b32 v24, v24, v25
    v_xor_b32 v24, v24, v4
    v_lshl_add_u32 v14, v24, 4, v14
    v_add_u32 v14, s38, v14
    v_xor_b32 v15, 64, v14""")
    def adma(n):
        a(f"""s_add_u32 s34, s12, {4*n}
        s_lshl_b32 s34, s34, 18
        s_add_u32 s34, s34, s17""")
        for cg in range(4):
            for rg in range(4):
                a(f's_add_u32 m0, s38, {(n&1)*16384 + (cg*4+rg)*1024 - cg*128}\ns_nop 0\nbuffer_load_dwordx4 v{10+rg}, s[24:27], s34 offen offset:{cg*128} {NT} lds')
    def aread(n):
        for ab in range(2):
            for kd in range(8):
                a(f'ds_read_b128 {ar(AF(n,ab,kd),4)}, v{14+(kd&1)} offset:{(n&1)*16384 + (kd>>1)*4096 + ab*512}')
    adma(0); adma(1)
    fills()
    a('s_waitcnt vmcnt(43)')
    hook()
    a('s_barrier')
    mark()
    LB = a.label('Lfb'); LC = a.label('Lfc')
    a(f's_cmp_ge_u32 s13, 16\ns_cbranch_scc1 {LB}')
    for i in range(32): a(f'ds_read_b128 {vr(128+4*i,4)}, v1 offset:{i*1024}')
    a(f"""s_branch {LC}
    {LB}:
    v_lshlrev_b32 v9, 8, v4
    v_lshl_add_u32 v9, v3, 3, v9""")
    for i in range(32):
        for jh in range(2): a(f'ds_read_b64_tr_b16 {vr(128+4*i+2*jh,2)}, v9 offset:{i*1024+jh*128}')
        if i % 4 == 3: a('s_waitcnt lgkmcnt(4)')
    a(f"""{LC}:
    s_mul_i32 s36, s15, 28
    s_lshl_b32 s20, s14, 2
    s_add_u32 s36, s36, s20
    s_mul_i32 s36, s36, 14336
    s_add_u32 s36, s36, s33
    s_lshl_b32 s20, s12, 10
    s_add_u32 s36, s36, s20""")
    AC = 64
    def adma_list(n):
        out = [f's_add_u32 s34, s12, {4*n}', 's_lshl_b32 s34, s34, 18', 's_add_u32 s34, s34, s17']
        for cg in range(4):
            for rg in range(4):
                out += [f's_add_u32 m0, s38, {(n&1)*16384 + (cg*4+rg)*1024 - cg*128}', f'buffer_load_dwordx4 v{10+rg}, s[24:27], s34 offen offset:{cg*128} {NT} lds', '']
        return out
    def epi(n):
        A0 = AC + 32*(n & 1); out = []
        for tt in range(4):
            O = 24+4*tt
            for ab in range(2):
                A = A0+16*ab+4*tt
                out += [f'v_mul_f32 v{A+r}, s32, v{A+r}' for r in range(4)]
                out += [f'v_cvt_pk_bf16_f32 v{O+2*ab}, v{A}, v{A+1}', f'v_cvt_pk_bf16_f32 v{O+2*ab+1}, v{A+2}, v{A+3}']
            out += [f's_add_u32 s20, s36, {tt*14336 + n*4096}\nbuffer_store_dwordx4 {vr(O,4)}, v1, {SRD}, s20 offen {WST}']
        return out
    a('s_waitcnt vmcnt(27)')
    aread(0)
    for n in range(4):
        if n == 3: a(f's_cmp_ge_u32 s12, 2\ns_cbranch_scc1 {EXIT}_e2')
        a('s_waitcnt lgkmcnt(0)')
        mark()
        main = [mf(vr(AC+32*(n&1)+16*ab+4*tt,4), ar(AF(n,ab,kd),4), vr(128+4*(tt*8+kd),4), 0 if kd == 0 else None)
                for kd in range(8) for ab in range(2) for tt in range(4)]
        F = {}
        if n < 2:
            for k, x in enumerate(adma_list(n+2)): F.setdefault(k, []).append(x)
        if n >= 1:
            for k, x in enumerate(epi(n-1)): F.setdefault(8+k, []).append(x)
        for x in interleave(main, F): a(x)
        if n < 3:
            a(f's_waitcnt vmcnt({(27, 20, 4)[n]})')
            aread(n+1)
    a('s_nop 7')
    for x in epi(3): a(x)
    a(f's_branch {EXIT}_f\n{EXIT}_e2:\ns_nop 7')
    for x in epi(2): a(x)
    a(f'{EXIT}_f:')
    a(f'{EXIT}_d:')
    dump()
    a(f's_branch {END}')
    n_st[0] = 1
    X = 24
    a(f'''{LN}:
    s_sub_u32 s13, s2, 224
    s_lshl_b32 s14, s13, 2
    s_add_u32 s14, s14, s12
    s_mov_b32 s24, s40
    s_mov_b32 s25, s41
    s_mov_b32 s26, {2048*896}
    s_mov_b32 s27, 0x20000
    v_and_b32 v3, 15, v7
    v_lshrrev_b32 v4, 4, v7
    v_mul_u32_u24 v5, 896, v3
    v_lshl_add_u32 v5, v4, 4, v5
    s_mul_i32 s16, s14, 14336''')
    for ks in range(14): a(f'buffer_load_dwordx4 {vr(X+4*ks,4)}, v5, s[24:27], s16 offen offset:{ks*64} {NT}')
    fills()
    LM = a.label('Lm0')
    a(f'''s_cmp_ge_u32 s13, 2
    s_cbranch_scc1 {LM}
    s_mov_b32 s28, s42
    s_mov_b32 s29, s43
    s_mov_b32 s30, 7168
    s_mov_b32 s31, 0x20000
    s_lshl_b32 s21, s13, 15
    s_add_u32 s21, s21, {MEMF}
    s_lshl_b32 s22, s13, 19
    s_add_u32 s22, s22, {MEMG}''')
    for rnd in range(2):
        a(f'''v_add_u32 v8, {256*rnd}, v0
        v_min_u32 v8, 447, v8
        v_and_b32 v9, 7, v8
        v_mul_u32_u24 v10, 896, v9
        v_lshrrev_b32 v11, 3, v8
        v_lshl_add_u32 v10, v11, 4, v10
        buffer_load_dwordx4 v[12:15], v10, s[28:31], 0 offen
        v_lshlrev_b32 v10, 4, v8
        v_lshrrev_b32 v11, 4, v8
        v_lshlrev_b32 v11, 8, v11
        v_lshl_add_u32 v11, v9, 4, v11
        v_bfe_u32 v9, v8, 3, 1
        v_lshl_add_u32 v11, v9, 3, v11
        s_waitcnt vmcnt(0)''')
        for r in range(4): a(f'v_min_u32 v{12+r}, 0xfffffffe, v{12+r}')
        a(f'''buffer_store_dwordx4 v[12:15], v10, {SRD}, s22 offen sc1
        buffer_store_dword v12, v11, {SRD}, s21 offen sc1
        buffer_store_dword v13, v11, {SRD}, s21 offen offset:128 sc1
        buffer_store_dword v14, v11, {SRD}, s21 offen offset:4 sc1
        buffer_store_dword v15, v11, {SRD}, s21 offen offset:132 sc1
        s_nop 1''')
    a(f'{LM}:\ns_waitcnt vmcnt(0)')
    hook()
    mark()
    U = 96
    for i in range(56):
        a(f'v_lshlrev_b32 v{U+2*i}, 16, v{X+i}\nv_and_b32 v{U+2*i+1}, 0xffff0000, v{X+i}')
    a('v_mov_b32 v8, 0\nv_mov_b32 v9, 0\nv_mov_b32 v10, 0\nv_mov_b32 v11, 0')
    for i in range(56):
        a(f'v_pk_add_f32 v[8:9], v[8:9], {vr(U+2*i,2)}\nv_pk_fma_f32 v[10:11], {vr(U+2*i,2)}, {vr(U+2*i,2)}, v[10:11]')
    a('v_add_f32 v8, v8, v9\nv_add_f32 v9, v10, v11')
    for sw in ('16', '32'):
        a(f'''v_mov_b32 v10, v8
        v_mov_b32 v11, v9
        s_nop 1
        v_permlane{sw}_swap_b32 v8, v10
        v_permlane{sw}_swap_b32 v9, v11
        v_add_f32 v8, v8, v10
        v_add_f32 v9, v9, v11''')
    a(f'''s_mov_b32 s22, 0x3b124925
    s_mov_b32 s23, 0x3727c5ac
    v_mul_f32 v8, s22, v8
    v_mul_f32 v9, s22, v9
    v_fma_f32 v9, -v8, v8, v9
    v_max_f32 v9, 0, v9
    v_add_f32 v9, s23, v9
    v_rsq_f32 v10, v9
    s_add_u32 s20, s16, {XN}
    v_mul_f32 v8, v8, v10
    v_mov_b32 v11, v10
    v_sub_f32 v8, 0, v8
    v_mov_b32 v9, v8''')
    for ks in range(14):
        for d in range(4):
            i = 4*ks+d
            a(f'v_pk_fma_f32 {vr(U+2*i,2)}, {vr(U+2*i,2)}, v[10:11], v[8:9]\nv_cvt_pk_bf16_f32 v{X+i}, v{U+2*i}, v{U+2*i+1}\nv_min_u32 v{X+i}, 0xfffffffe, v{X+i}')
        a(f'buffer_store_dwordx4 {vr(X+4*ks,4)}, v1, {SRD}, s20 offen offset:{(ks&3)*1024} {WST}')
        if (ks & 3) == 3: a('s_add_u32 s20, s20, 4096')
    dump()
    a(f'{END}:')
```

```python
import gen, chain, workers, prep, sys
def mk(name, **kw):
    for k, v in kw.items():
        if k == 'DPV':
            if v: workers.MERGE['PV'] = v
            else: workers.MERGE.pop('PV', None)
        elif k == 'TOUCH': prep.TOUCH = v
        elif k == 'FMID': prep.FMID = v
        elif k == 'NT': prep.NT = 'nt' if v else ''
        elif k in chain.OPT: chain.OPT[k] = v
        else: setattr(workers, k, v)
    open(f'exp/{name}.s', 'w').write(gen.build())
if __name__ == '__main__':
    for spec in sys.argv[1:]:
        name, *kv = spec.split(',')
        mk(name, **{a.split('=')[0]: int(a.split('=')[1]) for a in kv})
```

```python
from asmlib import *
from layout import *

SRD = 's[8:11]'
S_W, S_SLOT, S_L, S_P, S_FAST, S_STEP, S_TO, S_U = 12, 13, 14, 15, 16, 17, 18, 19
NSTEP = 64
P_ENTRY, PV_ENTRY = 'Lp_from_k', 'Lpv_from_v'
HANDOVER = True
OPT = dict(mem2=True, p2=True, xk3late=False, stag=2, pcan=False, fpos=6, novx=False, nost=False, noxk=False, mgearly=0, pre=4, gw=0, ninf=0)
STAMP_OP = 's_memtime'
DPP = 'row_mask:0xf bank_mask:0xf'

def wreg(G, nA, vbase):
    return ar(8*G, 8) if G < nA else vr(vbase + 8*(G-nA), 8)
def wreg4(G, half, nA, vbase):
    return ar(8*G+4*half, 4) if G < nA else vr(vbase + 8*(G-nA) + 4*half, 4)

class Stamps:
    def __init__(self, a, on, base=60):
        self.a, self.on, self.base, self.n = a, on, base, 0
    def mark(self, lvl=1):
        if self.on >= lvl:
            self.a(f'{STAMP_OP} s[{self.base+2*self.n}:{self.base+2*self.n+1}]'); self.n += 1
    def flush(self, vt0, soff, sstep=S_STEP):
        if not self.on: return
        a = self.a
        a(f"""s_waitcnt lgkmcnt(0)
        s_lshl_b32 s{soff}, s{S_W}, 7
        s_add_u32 s{soff}, s{soff}, s{sstep}
        s_lshl_b32 s{soff}, s{soff}, 5
        s_add_u32 s{soff}, s{soff}, {STL}
        v_mov_b32 v{vt0}, s{soff}""")
        for k in range(0, self.n, 2):
            a(f'v_mov_b32 v{vt0+1}, s{self.base+2*k}')
            a(f'ds_write_b16 v{vt0}, v{vt0+1} offset:{2*k}')
            if k+1 < self.n:
                a(f'v_mov_b32 v{vt0+1}, s{self.base+2*k+2}')
                a(f'ds_write_b16 v{vt0}, v{vt0+1} offset:{2*k+2}')
        self.n = 0

STL = 147456
def stamp_dump(a, EXIT):
    a(f"""s_memrealtime s[22:23]
    s_waitcnt lgkmcnt(0)
    v_and_b32 v1, 63, v0
    v_lshlrev_b32 v1, 4, v1
    s_lshl_b32 s20, s{S_W}, 12
    s_add_u32 s21, s20, {STL}
    v_mov_b32 v2, s21
    v_mov_b32 v3, s98
    ds_write_b16 v2, v3 offset:24
    v_mov_b32 v3, s100
    ds_write_b16 v2, v3 offset:26
    v_mov_b32 v3, s22
    ds_write_b16 v2, v3 offset:28
    v_add_u32 v2, s21, v1
    s_lshl_b32 s21, s{S_SLOT}, 14
    s_add_u32 s20, s20, s21
    s_add_u32 s20, s20, {STAMP}""")
    for k in range(4):
        a(f"""ds_read_b128 v[4:7], v2 offset:{k*1024}
        s_waitcnt lgkmcnt(0)
        buffer_store_dwordx4 v[4:7], v1, {SRD}, s20 offen offset:{k*1024}
        s_nop 1""")
    if EXIT: a(f's_branch {EXIT}')
    else: a(f's_add_u32 s{S_SLOT}, s{S_SLOT}, 256\ns_waitcnt vmcnt(0)')

def poll_mem(a, soff, d, t, EXIT, MEMS, d2):
    L = a.label('Lpm'); OK = a.label('Lpmok')
    def issue(r):
        a(f"""buffer_load_dwordx4 {vr(r[0],4)}, v2, {SRD}, s{soff} offen sc1
        buffer_load_dwordx4 {vr(r[1],4)}, v3, {SRD}, s{soff} offen sc1""")
    def check(r, n=2):
        p, q = r
        a(f"""s_waitcnt vmcnt({n})
        v_max3_u32 v{t}, v{p}, v{p+1}, v{p+2}
        v_max3_u32 v{t+1}, v{p+3}, v{q}, v{q+1}
        v_max3_u32 v{t}, v{t}, v{q+2}, v{q+3}
        v_max_u32 v{t}, v{t}, v{t+1}
        v_cmp_eq_u32 vcc, -1, v{t}
        ds_write_b128 v2, {vr(p,4)} offset:{MEMS}
        ds_write_b128 v3, {vr(q,4)} offset:{MEMS}""")
    if not OPT['mem2']:
        a(f'{L}:')
        issue(d)
        a(f's_sub_u32 s{S_TO}, s{S_TO}, 1\ns_cbranch_scc1 {EXIT}')
        check(d, 0)
        a(f's_cbranch_vccnz {L}')
        return
    issue(d)
    a('s_nop 15\n'*OPT['stag'])
    a(f'{L}:')
    issue(d2)
    check(d)
    a(f's_cbranch_vccz {OK}')
    issue(d)
    a(f"""s_sub_u32 s{S_TO}, s{S_TO}, 1
    s_cbranch_scc1 {EXIT}""")
    check(d2)
    a(f's_cbranch_vccnz {L}')
    a(f'{OK}:')

def mem_addr_setup(a):
    a(f'''v_and_b32 v7, 63, v0
    v_lshlrev_b32 v1, 4, v7
    s_mul_i32 s20, s{S_W}, 112
    v_add_u32 v2, s20, v7
    v_min_u32 v3, 47, v7
    s_add_u32 s20, s20, 64
    v_add_u32 v3, s20, v3
    v_lshlrev_b32 v2, 4, v2
    v_lshlrev_b32 v3, 4, v3
    v_and_b32 v8, 8, v7
    v_cmp_eq_u32 vcc, 0, v8
    v_mov_b32 v6, 0xeeee
    v_mov_b32 v8, 0x4444
    v_cndmask_b32 v6, v6, v8, vcc''')

def wait_flags(a, voff, soff, vd, EXIT):
    L = a.label('Lwf'); Lok = a.label('Lwfok')
    a(f'''{L}:
    buffer_load_dword v{vd}, v{voff}, {SRD}, s{soff} offen sc1
    s_sub_u32 s{S_TO}, s{S_TO}, 1
    s_cbranch_scc1 {EXIT}
    s_waitcnt vmcnt(0)
    v_cmp_eq_u32 vcc, 0, v{vd}
    s_cbranch_vccz {Lok}
    s_sleep 2
    s_branch {L}
    {Lok}:''')

PREP = True
def wait_done(a, voff, vd, EXIT, off=0):
    if not PREP: return
    L = a.label('Lwd'); OK = a.label('Lwdok')
    a(f"""s_mov_b32 s20, {DONEF}
    {L}:
    buffer_load_dwordx2 {vr(vd,2)}, v{voff}, {SRD}, s20 offen offset:{off} sc1
    s_sub_u32 s{S_TO}, s{S_TO}, 1
    s_cbranch_scc1 {EXIT}
    s_waitcnt vmcnt(0)
    v_xor_b32 v{vd}, s78, v{vd}
    v_xor_b32 v{vd+1}, s79, v{vd+1}
    v_or_b32 v{vd}, v{vd}, v{vd+1}
    v_cmp_ne_u32 vcc, 0, v{vd}
    s_cbranch_vccz {OK}
    s_sleep 2
    s_branch {L}
    {OK}:""")

def peek_done(a, voff, vd):
    if PREP: a(f's_mov_b32 s20, {DONEF}\nbuffer_load_dwordx2 {vr(vd,2)}, v{voff}, {SRD}, s20 offen sc1')
def after_peek(a, voff, vd, n, EXIT):
    if not PREP: return
    OK = a.label('Lpk')
    a(f"""s_waitcnt vmcnt({n})
    v_xor_b32 v{vd}, s78, v{vd}
    v_xor_b32 v{vd+1}, s79, v{vd+1}
    v_or_b32 v{vd}, v{vd}, v{vd+1}
    v_cmp_ne_u32 vcc, 0, v{vd}
    s_cbranch_vccz {OK}""")
    wait_done(a, voff, vd, EXIT)
    a(f'{OK}:')

def job_line(a, t):
    a(f"""v_lshrrev_b32 v{t+1}, 5, v{t}
    v_and_b32 v{t}, 31, v{t}
    v_lshl_add_u32 v{t}, v{t}, 3, v{t+1}
    v_add_u32 v{t}, 1, v{t}
    v_lshlrev_b32 v{t}, 7, v{t}""")

def need_head(a, typ, EXIT, t=16, off=0):
    if OPT['gw']: return all_done(a, EXIT, t)
    if not PREP: return
    a(f"""s_mul_i32 s20, s{S_P}, 7
    s_add_u32 s20, s20, {112*typ}
    v_and_b32 v{t}, 7, v0
    v_min_u32 v{t}, 6, v{t}
    v_add_u32 v{t}, s20, v{t}""")
    job_line(a, t)
    wait_done(a, t, t+2, EXIT, off)

def need_cols(a, EXIT, t=16, off=0):
    if OPT['gw']: return all_done(a, EXIT, t)
    if not PREP: return
    a(f"""v_and_b32 v{t}, 15, v0
    v_mul_u32_u24 v{t}, 7, v{t}
    s_lshr_b32 s20, s{S_P}, 1
    s_add_u32 s20, s20, 112
    v_add_u32 v{t}, s20, v{t}""")
    job_line(a, t)
    wait_done(a, t, t+2, EXIT, off)

def all_done(a, EXIT, t=16):
    if not PREP: return
    a(f'v_lshlrev_b32 v{t}, 7, v0')
    wait_done(a, t, t+2, EXIT)
    a('s_barrier')

def hold_back(a, EXIT, t=16, skip=f's_cmp_eq_u32 s{S_L}, 0'):
    if not PREP: return
    L = a.label('Lhb')
    a(f'{skip}\ns_cbranch_scc1 {L}')
    all_done(a, EXIT, t)
    a(f'v_and_b32 v{t}, 15, v0\nv_lshlrev_b32 v{t}, 7, v{t}\ns_mov_b32 s21, {flag_base(F_VX)}')
    wait_flags(a, t, 21, t+2, EXIT)
    a(f'{L}:')

def ring_off(a, dst, step_plus, seg, base_s):
    sh = seg.bit_length()-1
    a(f'''s_add_u32 s{dst}, s{S_STEP}, {step_plus & 3}
    s_and_b32 s{dst}, s{dst}, 3
    s_lshl_b32 s{dst}, s{dst}, {sh}
    s_add_u32 s{dst}, s{dst}, s{base_s}''')

def k_cu(a, EXIT, stamps=0, mode_fn=None):
    MEMS, TIMG, PART = 0, 8192, 24576
    SW = 2048
    nA, vb = 32, 120
    memA, tb, sc, pd, tmp = 16, 60, 92, 92, 112
    X, Mx = 60, 112
    D2 = (60, 100)
    ACC = [44, 48, 52, 56, 44, 48, 64]
    mk, mk2, tb2 = 116, 52, 56
    XKR = {(0, 0): 68, (0, 1): 70, (1, 0): 72, (1, 1): 76, (2, 0): 80, (2, 1): 84, (3, 0): 104, (3, 1): 108}
    S_D = 36
    S_FS = 40
    S_MEM, S_PM, S_XN, S_FX, S_T0, S_T1, S_XP, S_XS, S_MB, S_PB, S_RA = 24, 25, 26, 27, 28, 29, 30, 31, 32, 33, 34
    DONE = a.label('Ldone')
    hold_back(a, EXIT)
    need_head(a, 0, EXIT, off=16)
    mem_addr_setup(a)
    a(f'''s_mul_i32 s20, s{S_P}, 28
    s_mul_i32 s21, s{S_W}, 7
    s_add_u32 s20, s20, s21
    s_and_b32 s22, s{S_W}, 1
    s_add_u32 s21, s20, s22
    s_mul_i32 s21, s21, 14336
    s_add_u32 s21, s21, {WA}
    s_xor_b32 s22, s22, 1
    s_mul_i32 s22, s22, 6
    s_add_u32 s20, s20, s22
    s_mul_i32 s20, s20, 14336
    s_add_u32 s20, s20, {WA}''')
    a('s_mov_b32 s24, s20\ns_mov_b32 s25, s21')
    n = 0
    for lo, hi in ((0, 4), (4, 14)):
        if lo: after_peek(a, 16, 18, 16, EXIT)
        for u in range(7):
            if not lo and u == 3: peek_done(a, 16, 18)
            for ks in range(lo, hi):
                if ks == lo or (ks & 3) == 0: a(f's_add_u32 s22, s{24 if u == 0 else 25}, {max(u-1, 0)*14336 + (ks & ~3)*1024}')
                a(f'buffer_load_dwordx4 {wreg4(u*7 + ks//2, ks & 1, nA, vb)}, v1, {SRD}, s22 offen offset:{(ks & 3)*1024} sc1')
                n += 1
                if lo and n >= 76 and n % 8 == 0: a('s_waitcnt vmcnt(40)')
    a(f'''v_mov_b32 v114, v7
    v_and_b32 v112, 15, v114
    v_lshrrev_b32 v113, 4, v114
    s_mul_i32 s20, s{S_W}, 3584
    s_add_u32 s20, s20, {TIMG}
    v_lshlrev_b32 v8, 3, v114
    v_add_u32 v8, s20, v8
    v_lshlrev_b32 v7, 5, v112
    v_lshl_add_u32 v7, v113, 3, v7
    v_add_u32 v7, s20, v7
    s_mul_i32 s20, s{S_W}, 7
    s_add_u32 s20, s20, 1
    s_lshr_b32 s20, s20, 1
    s_lshr_b32 s21, s{S_W}, 1
    s_mul_i32 s21, s21, 7
    s_add_u32 s21, s21, 3
    s_lshl_b32 s{S_XP}, s20, 10
    s_lshl_b32 s{S_XS}, s21, 10
    s_and_b32 s22, s{S_W}, 1
    v_and_b32 v115, 7, v114
    v_lshlrev_b32 v116, 4, v115
    v_lshrrev_b32 v117, 1, v113
    v_lshl_add_u32 v116, v117, 8, v116
    v_and_b32 v117, 1, v113
    v_lshl_add_u32 v116, v117, 3, v116
    s_lshl_b32 s20, s20, 9
    s_add_u32 s20, s20, {MEMS}
    v_add_u32 v9, s20, v116
    v_add_u32 v4, 1024, v9
    s_lshl_b32 s21, s21, 9
    s_lshl_b32 s23, s22, 2
    s_add_u32 s21, s21, s23
    s_add_u32 s21, s21, {MEMS}
    v_add_u32 v10, s21, v116
    s_lshl_b32 s22, s22, 3
    v_add_u32 v12, s22, v1''')
    a(f'''s_lshl_b32 s20, s{S_W}, 11
    s_add_u32 s20, s20, {PART}
    v_bfe_u32 v117, v114, 3, 1
    v_lshl_add_u32 v118, v117, 2, v113
    v_mul_u32_u24 v13, 144, v118
    v_lshl_add_u32 v13, v115, 4, v13
    v_add_u32 v13, s20, v13
    v_lshl_add_u32 v118, v113, 1, v117
    v_mul_u32_u24 v5, 80, v118
    v_lshl_add_u32 v5, v115, 3, v5
    s_add_u32 s20, s20, 1152
    v_add_u32 v5, s20, v5''')
    a(f'''v_and_b32 v115, 31, v114
    v_lshrrev_b32 v116, 5, v114
    s_lshl_b32 s20, s{S_W}, 1
    v_add_u32 v116, s20, v116
    v_lshrrev_b32 v117, 1, v115
    v_and_b32 v118, 1, v115
    v_mul_u32_u24 v14, 144, v117
    v_lshl_add_u32 v14, v116, 4, v14
    v_lshl_add_u32 v14, v118, 3, v14
    v_min_u32 v119, 19, v115
    v_subrev_u32 v119, 16, v119
    v_mul_u32_u24 v119, 80, v119
    v_lshl_add_u32 v119, v116, 3, v119
    v_add_u32 v119, 1152, v119
    v_cmp_gt_u32 vcc, 16, v115
    s_nop 1
    v_cndmask_b32 v14, v119, v14, vcc
    v_add_u32 v14, {PART}, v14''')
    a(f'''s_lshr_b32 s20, s{S_P}, 1
    s_lshl_b32 s20, s20, 10
    s_and_b32 s21, s{S_P}, 1
    s_lshl_b32 s22, s21, 7
    s_add_u32 s20, s20, s22
    v_and_b32 v119, 3, v117
    v_lshlrev_b32 v15, 8, v119
    v_lshl_add_u32 v15, v116, 4, v15
    v_lshl_add_u32 v15, v118, 2, v15
    v_lshrrev_b32 v119, 3, v115
    v_lshl_add_u32 v15, v119, 3, v15
    v_add_u32 v15, s20, v15
    s_lshr_b32 s20, s{S_P}, 2
    s_lshl_b32 s20, s20, 9
    s_add_u32 s20, s20, 8192
    s_lshl_b32 s21, s21, 3
    s_add_u32 s20, s20, s21
    s_and_b32 s21, s{S_P}, 2
    s_lshl_b32 s21, s21, 7
    s_add_u32 s20, s20, s21
    v_and_b32 v119, 1, v117
    v_lshlrev_b32 v119, 7, v119
    v_lshl_add_u32 v119, v116, 4, v119
    v_lshl_add_u32 v119, v118, 2, v119
    v_add_u32 v119, s20, v119
    v_cndmask_b32 v15, v119, v15, vcc
    v_cmp_gt_u32 vcc, 20, v115
    v_mov_b32 v117, 0x7f000000
    v_mov_b32 v118, 0xff800000
    v_mov_b32 v119, 0x7f800000
    v_cndmask_b32 v15, v117, v15, vcc
    v_cndmask_b32 v90, v118, v119, vcc
    v_and_b32 v91, 7, v114
    v_min_u32 v91, 6, v91
    v_lshlrev_b32 v91, 7, v91
    v_mov_b32 v88, -1''')
    a(f'''s_lshl_b32 s{S_MB}, s{S_L}, 15
    s_add_u32 s{S_MB}, s{S_MB}, {MEMF}
    s_lshl_b32 s{S_PB}, s{S_L}, 16
    s_add_u32 s{S_PB}, s{S_PB}, {PM}
    s_lshl_b32 s20, s{S_L}, 6
    s_mul_i32 s{S_XN}, s20, {XN_SEG}
    s_add_u32 s{S_XN}, s{S_XN}, {XN}
    s_mul_i32 s{S_FX}, s20, {flag_seg(F_XN)}
    s_add_u32 s{S_FX}, s{S_FX}, {flag_base(F_XN)}
    s_mul_i32 s{S_FS}, s{S_L}, {flag_seg(F_XN)}
    s_cmp_eq_u32 s{S_L}, 0
    s_cselect_b32 s{S_FX}, {ST+7168}, s{S_FX}
    s_mov_b32 s{S_STEP}, 0
    s_mov_b32 s{S_MEM}, s{S_MB}
    s_mov_b32 s{S_PM}, s{S_PB}
    s_add_u32 s{S_RA}, s{S_PB}, {3*PM_SEG}''')
    def xk_setup():
        if OPT['noxk']: a(f's_sub_u32 s{S_XN}, s{S_XN}, {XN_SEG}')
        a(f"""s_add_u32 s{S_D}, s{S_XN}, s{S_XP}
        s_add_u32 s{S_D+1}, s{S_XN}, s{S_XS}
        s_add_u32 s{S_D+2}, s{S_D}, 14336
        s_add_u32 s{S_D+3}, s{S_D+1}, 14336
        s_add_u32 s{S_XN}, s{S_XN}, {XN_SEG}
        s_add_u32 s{S_FX}, s{S_FX}, s{S_FS}""")
    def xk_load(unit, kt):
        if unit == 0:
            return f'buffer_load_dwordx2 {vr(XKR[(0,kt)],2)}, v12, {SRD}, s{S_D+1+2*kt} offen sc1'
        return f'buffer_load_dwordx4 {vr(XKR[(unit,kt)],4)}, v1, {SRD}, s{S_D+2*kt} offen offset:{(unit-1)*1024} sc1'
    FLAGLD = f'buffer_load_dword v89, v91, {SRD}, s{S_FX} offen sc1'
    all_done(a, EXIT)
    if mode_fn: mode_fn(92, 93)
    wait_flags(a, 91, S_FX, 89, EXIT)
    xk_setup()
    for u in range(4):
        for kt in range(2): a(xk_load(u, kt))
    a(FLAGLD)
    a('s_waitcnt vmcnt(0)')
    LS = a.label('Lkslow')
    a(f's_cmp_eq_u32 s{S_FAST}, 1\ns_cbranch_scc0 {LS}')
    def loop(sc1):
        st = Stamps(a, stamps)
        LOOP = a.label('Lk'); Lok = a.label('Lkf')
        KB = a.label('Lkb'); KC = a.label('Lkc')
        a(f'{LOOP}:\ns_waitcnt vmcnt(1)\n{KC}:')
        a(f"""v_max3_u32 v{tmp}, v68, v70, v72
        v_max3_u32 v{tmp+1}, v76, v80, v84
        v_max3_u32 v{tmp}, v{tmp}, v104, v108
        v_max_u32 v{tmp}, v{tmp}, v{tmp+1}
        v_cmp_eq_u32 vcc, -1, v{tmp}
        s_cbranch_vccnz {KB}
        v_cmp_eq_u32 vcc, 0, v89
        s_cbranch_vccz {Lok}""")
        wait_flags(a, 91, S_FX, 89, EXIT)
        a(f'{Lok}:')
        xk_setup()
        for u in (0, 1, 2, 3, 6): a(f'v_mov_b64 {vr(ACC[u],2)}, 0\nv_mov_b64 {vr(ACC[u]+2,2)}, 0')
        st.mark()
        poll_mem(a, S_MEM, (pd, pd+4), tmp, EXIT, MEMS, D2)
        st.mark(2)
        a('s_waitcnt lgkmcnt(0)\ns_barrier')
        st.mark(2)
        for b in range(7): a(f'ds_read_b128 {vr(memA+4*b,4)}, v1 offset:{MEMS+1024*b}')
        main = []
        for u in range(7):
            for b in range(7):
                main.append(f'v_smfmac_f32_16x16x64_bf16 {vr(ACC[u],4)}, {vr(memA+4*b,4)}, {wreg(u*7+b, nA, vb)}, v6')
        F = {}
        def add(slot, *ins): F.setdefault(slot, []).extend(ins)
        def spread(slot, ins, step=1):
            for k, x in enumerate(ins): add(slot+k*step, x)
        [add(b-1, f's_waitcnt lgkmcnt({6-b})') for b in range(7)]
        def mkread(unit, R):
            if unit == 0: return [f'ds_read2_b32 {vr(R,2)}, v10 offset0:0 offset1:32']
            p = unit-1
            ar_, o = (9, p*128) if p < 2 else (4, 0)
            return [f'ds_read2_b32 {vr(R,2)}, v{ar_} offset0:{o} offset1:{o+32}', f'ds_read2_b32 {vr(R+2,2)}, v{ar_} offset0:{o+1} offset1:{o+33}']
        def tail_tile(u, half, tb=tb):
            A = ACC[u]; t = tmp+2*half
            return [f'v_cvt_pk_bf16_f32 v{t}, v{A}, v{A+1}', f'v_cvt_pk_bf16_f32 v{t+1}, v{A+2}, v{A+3}',
                    f'ds_write_b64 v7, {vr(t,2)} offset:{u*512}', f'ds_read_b64_tr_b16 {vr(tb+2*half,2)}, v8 offset:{u*512}']
        def score(unit, mkr=mk, tb=tb):
            K = [XKR[(unit, 0)], XKR[(unit, 1)], mkr]
            if unit == 0:
                return [f'v_mfma_f32_16x16x16_bf16 {vr(sc+4*k,4)}, {vr(K[k],2)}, {vr(tb,2)}, 0' for k in range(3)]
            return [f'v_mfma_f32_16x16x32_bf16 {vr(sc+4*k,4)}, {vr(K[k],4)}, {vr(tb,4)}, {vr(sc+4*k,4)}' for k in range(3)]
        def put_score(slot, sc_ins, fill):
            add(slot, 's_waitcnt lgkmcnt(0)')
            for k in range(3):
                add(slot, sc_ins[k])
                if k < len(fill): add(slot, fill[k])
        def z(u): return [f'v_mov_b64 {vr(ACC[u],2)}, 0', f'v_mov_b64 {vr(ACC[u]+2,2)}, 0']
        spread(7, mkread(0, mk)); add(10, FLAGLD)
        add(8, f'buffer_store_dword v88, v15, {SRD}, s{S_RA} offen {sc1}')
        add(13, 's_waitcnt vmcnt(2)')
        spread(14, tail_tile(0, 0))
        spread(18, z(4))
        t1 = tail_tile(1, 0); spread(20, t1[:2])
        put_score(22, score(0), [t1[2], xk_load(0, 0), t1[3]])
        spread(23, mkread(1, mk)); spread(25, z(5)); add(27, xk_load(0, 1))
        spread(28, tail_tile(2, 1))
        spread(32, mkread(3, mk2))
        t3 = tail_tile(3, 0); add(35, t3[0]); add(36, t3[1])
        put_score(36, score(1), [t3[2], xk_load(1, 0), t3[3]])
        spread(37, mkread(2, mk)); add(40, xk_load(1, 1))
        t4 = tail_tile(4, 1); spread(42, t4)
        t5 = tail_tile(5, 0, tb2)
        add(48, t5[0])
        put_score(48, score(2), [t5[1], t5[2], t5[3]])
        for ins in interleave(main, F): a(ins)
        st.mark(2)
        t6 = tail_tile(6, 1, tb2)
        for ins in t6: a(ins)
        a(xk_load(2, 0)); ring_off(a, S_MEM, 1, MEM_SEG, S_MB); a(xk_load(2, 1))
        a('s_waitcnt lgkmcnt(0)')
        s3 = score(3, mk2, tb2)
        for ins in (s3[2], s3[0], s3[1]): a(ins)
        st.mark(2)
        if OPT['xk3late']: a(f's_mov_b32 s{S_RA}, s{S_PM}\ns_nop 4')
        else: a(xk_load(3, 0)); a(f's_mov_b32 s{S_RA}, s{S_PM}'); a(xk_load(3, 1)); a('s_nop 2')
        for q in range(2):
            a(f'v_add_f32_dpp v{Mx+q}, v{sc+8+q}, v{sc+8+q} row_ror:8 row_mask:0xf bank_mask:0x3')
            a(f'v_add_f32_dpp v{Mx+q}, v{sc+10+q}, v{sc+10+q} row_ror:8 row_mask:0xf bank_mask:0xc')
        a(f'ds_write_b64 v5, {vr(Mx,2)}')
        for r in range(4):
            a(f'v_add_f32_dpp v{X+r}, v{sc+r}, v{sc+r} row_ror:8 row_mask:0xf bank_mask:0x3')
            a(f'v_add_f32_dpp v{X+r}, v{sc+4+r}, v{sc+4+r} row_ror:8 row_mask:0xf bank_mask:0xc')
        a(f'ds_write_b128 v13, {vr(X,4)}')
        a('s_waitcnt lgkmcnt(0)\ns_barrier')
        st.mark(2)
        R = 44
        for w in range(4): a(f'ds_read_b64 {vr(R+2*w,2)}, v14 offset:{w*SW}')
        a(f"""s_waitcnt lgkmcnt(2)
        v_pk_add_f32 {vr(R,2)}, {vr(R,2)}, {vr(R+2,2)}
        s_waitcnt lgkmcnt(0)
        v_pk_add_f32 {vr(R+4,2)}, {vr(R+4,2)}, {vr(R+6,2)}
        v_pk_add_f32 {vr(R,2)}, {vr(R,2)}, {vr(R+4,2)}
        v_min_f32 v{R}, v{R}, v90
        v_min_f32 v{R+1}, v{R+1}, v90
        v_max_f32 v{R+4}, v{R}, v{R+1}""")
        st.mark(2)
        for k in (8, 4, 2, 1):
            a(f's_nop 1\nv_max_f32_dpp v{R+4}, v{R+4}, v{R+4} row_ror:{k} {DPP}')
        a(f"""v_mov_b32 v{R+5}, v{R+4}
        s_nop 1
        v_permlane16_swap_b32 v{R+4}, v{R+5}
        v_max_f32 v{R+4}, v{R+4}, v{R+5}
        v_sub_f32 v{R}, v{R}, v{R+4}
        v_sub_f32 v{R+1}, v{R+1}, v{R+4}
        v_exp_f32 v{R}, v{R}
        v_exp_f32 v{R+1}, v{R+1}
        s_nop 0
        v_add_f32 v{R+4}, v{R}, v{R+1}""")
        for k in (8, 4, 2, 1):
            a(f's_nop 1\nv_add_f32_dpp v{R+4}, v{R+4}, v{R+4} row_ror:{k} {DPP}')
        a(f"""v_mov_b32 v{R+5}, v{R+4}
        s_nop 1
        v_permlane16_swap_b32 v{R+4}, v{R+5}
        v_add_f32 v{R+4}, v{R+4}, v{R+5}
        v_rcp_f32 v{R+4}, v{R+4}
        s_add_u32 s{S_STEP}, s{S_STEP}, 1
        v_mul_f32 v{R}, v{R}, v{R+4}
        v_mul_f32 v{R+1}, v{R+1}, v{R+4}
        v_cvt_pk_bf16_f32 v{R}, v{R}, v{R+1}
        v_min_u32 v{R}, 0xfffffffe, v{R}
        buffer_store_dword v{R}, v15, {SRD}, s{S_PM} offen {sc1}""")
        st.mark(2)
        st.flush(tmp, 20)
        a(f"""s_cmp_ge_u32 s{S_STEP}, {NSTEP-1}
        s_cbranch_scc1 {DONE}""")
        ring_off(a, S_PM, 0, PM_SEG, S_PB)
        if OPT['xk3late']: a(xk_load(3, 0)); a(xk_load(3, 1)); a('s_waitcnt vmcnt(0)')
        a(f's_branch {LOOP}')
        a(f'{KB}:\ns_sub_u32 s{S_TO}, s{S_TO}, 1\ns_cbranch_scc1 {EXIT}')
        for u in range(4):
            for kt in range(2): a(xk_load(u, kt))
        a(f's_waitcnt vmcnt(0)\ns_branch {KC}')
    loop('')
    a(f'{LS}:')
    loop('sc1')
    a(f'{DONE}:')
    if stamps: stamp_dump(a, None)
    if HANDOVER: a(f's_waitcnt vmcnt(0) lgkmcnt(0)\ns_barrier\ns_cmp_eq_u32 s{S_L}, 0\ns_cbranch_scc1 {P_ENTRY}')
    a(f's_branch {EXIT}')

def v_cu(a, EXIT, stamps=0, mode_fn=None):
    MEMS, PART, WL = 0, 8192, 16384
    nA, vb = 32, 176
    memA, acc, wr, vx, pf, vmf, oa, pd, fl, tmp = 16, 44, 76, 92, 124, 136, 144, 160, 168, 170
    S_MEM, S_PM, S_VX, S_FV, S_T0, S_MG, S_VM, S_FM, S_MB, S_PB, S_RA, S_MN, S_MGN, S_VMN = 24, 25, 26, 27, 28, 29, 30, 31, 32, 33, 34, 35, 40, 41
    DONE = a.label('Ldone')
    hold_back(a, EXIT)
    need_cols(a, EXIT, off=16)
    mem_addr_setup(a)
    a(f'''s_mul_i32 s20, s{S_W}, 28672
    s_add_u32 s20, s20, {WL}
    s_mul_i32 s21, s{S_W}, 112
    s_lshl_b32 s{S_T0}, s{S_P}, 1
    s_add_u32 s21, s21, s{S_T0}
    s_mul_i32 s21, s21, 14336
    s_add_u32 s21, s21, {WV}''')
    a('s_mov_b32 s24, s20\ns_mov_b32 s25, s21')
    n = 0
    for lo, hi in ((0, 4), (4, 14)):
        if lo: after_peek(a, 16, 18, 16, EXIT)
        for hh in (3, 0, 1, 2):
            if not lo and hh == 1: peek_done(a, 16, 18)
            for t in range(2):
                for ks in range(lo, hi):
                    if (ks & 3) == 0:
                        a(f's_add_u32 s{S_T0}, s25, {(hh*28+t)*14336 + ks*1024}')
                        if hh == 3: a(f's_add_u32 m0, s24, {t*14336 + ks*1024}\ns_nop 0')
                    if hh == 3: a(f'buffer_load_dwordx4 v1, {SRD}, s{S_T0} offen offset:{(ks&3)*1024} sc1 lds')
                    else: a(f'buffer_load_dwordx4 {wreg4((hh*2+t)*7 + ks//2, ks & 1, nA, vb)}, v1, {SRD}, s{S_T0} offen offset:{(ks&3)*1024} sc1')
                    n += 1
                    if lo and n >= 80 and n % 8 == 0: a('s_waitcnt vmcnt(40)')
    a('s_mov_b32 s20, s24')
    a(f'''v_mov_b32 v14, v7
    v_add_u32 v7, s20, v1
    v_and_b32 v15, 7, v14
    v_lshrrev_b32 v{tmp}, 4, v14
    v_bfe_u32 v{tmp+1}, v14, 3, 1
    v_lshrrev_b32 v{tmp+2}, 5, v14
    s_lshl_b32 s20, s{S_W}, 11
    v_add_u32 v8, s20, v1
    v_lshlrev_b32 v9, 7, v{tmp}
    v_lshl_add_u32 v9, v15, 4, v9
    v_lshl_add_u32 v10, v{tmp+1}, 9, v9
    s_lshl_b32 s20, s{S_W}, 10
    s_add_u32 s20, s20, {PART}
    v_add_u32 v10, s20, v10
    s_lshl_b32 s21, s{S_W}, 9
    s_add_u32 s21, s21, 8192
    v_add_u32 v9, s21, v9
    v_and_b32 v11, 15, v14
    v_lshlrev_b32 v11, 4, v11
    v_lshl_add_u32 v11, v{tmp}, 10, v11
    s_lshl_b32 s20, s{S_W}, 8
    s_add_u32 s20, s20, {PART}
    v_add_u32 v11, s20, v11
    v_lshlrev_b32 v12, 4, v15
    v_lshl_add_u32 v4, v{tmp+1}, 3, v12
    v_lshl_add_u32 v4, v{tmp+2}, 2, v4
    s_lshl_b32 s20, s{S_P}, 2
    s_add_u32 s20, s20, s{S_W}
    s_lshl_b32 s21, s20, 7
    v_add_u32 v4, s21, v4
    v_lshl_add_u32 v12, v{tmp+2}, 7, v12
    v_lshl_add_u32 v12, v{tmp+1}, 2, v12
    s_lshr_b32 s21, s20, 1
    s_lshl_b32 s21, s21, 8
    s_and_b32 s20, s20, 1
    s_lshl_b32 s20, s20, 3
    s_add_u32 s21, s21, s20
    v_add_u32 v12, s21, v12
    v_and_b32 v13, 3, v14
    s_lshl_b32 s20, s{S_W}, 2
    v_add_u32 v13, s20, v13
    v_lshlrev_b32 v13, 7, v13
    v_mov_b32 v5, -1
    v_cmp_eq_u32 vcc, 0, v0
    v_mov_b32 v14, 0x7f000000
    v_mov_b32 v15, 1
    v_cndmask_b32 v14, v14, 0, vcc''')
    a(f'''s_lshl_b32 s{S_MB}, s{S_L}, 15
    s_add_u32 s{S_MB}, s{S_MB}, {MEMF}
    s_lshl_b32 s{S_PB}, s{S_L}, 16
    s_add_u32 s{S_PB}, s{S_PB}, {PM}
    s_lshl_b32 s20, s{S_L}, 6
    s_lshl_b32 s{S_MGN}, s20, 13
    s_add_u32 s{S_MGN}, s{S_MGN}, {MEMG+MEM_SEG}
    s_mov_b32 s{S_MG}, {DUMMY}
    s_mul_i32 s{S_VX}, s20, {VX_SEG}
    s_mul_i32 s21, s{S_W}, 112
    s_lshl_b32 s{S_T0}, s{S_P}, 1
    s_add_u32 s21, s21, s{S_T0}
    s_lshl_b32 s21, s21, 10
    s_add_u32 s{S_VX}, s{S_VX}, s21
    s_add_u32 s{S_VX}, s{S_VX}, {VX}
    s_mul_i32 s{S_VM}, s20, {VM_SEG}
    s_mul_i32 s21, s{S_W}, 28
    s_add_u32 s21, s21, s{S_T0}
    s_lshl_b32 s21, s21, 10
    s_add_u32 s{S_VM}, s{S_VM}, s21
    s_add_u32 s{S_VMN}, s{S_VM}, {VM}
    s_mov_b32 s{S_VM}, {DUMMY}
    s_mul_i32 s{S_FV}, s20, {flag_seg(F_VX)}
    s_add_u32 s{S_MN}, s{S_FV}, {flag_base(F_VM)}
    s_add_u32 s{S_FV}, s{S_FV}, {flag_base(F_VX)}
    s_lshl_b32 s21, s{S_P}, 7
    s_add_u32 s{S_MN}, s{S_MN}, s21
    s_mov_b32 s{S_FM}, {DUMMY}
    s_mov_b32 s{S_STEP}, 0
    s_mov_b32 s{S_MEM}, s{S_MB}
    s_mov_b32 s{S_PM}, s{S_PB}
    s_add_u32 s{S_RA}, s{S_MB}, {3*MEM_SEG}
    v_mov_b32 v{fl}, 0''')
    all_done(a, EXIT)
    if mode_fn: mode_fn(pd, pd+1)
    S_X = 36
    S_FC = 42
    a(f's_mov_b32 s{S_T0}, 0x7f000000')
    a('s_mov_b32 s56, s4\ns_mov_b32 s57, s5\ns_mov_b32 s58, 0\ns_mov_b32 s59, 0x20000')
    D2 = (16, 20)
    LS = a.label('Lvslow')
    a(f's_cmp_eq_u32 s{S_FAST}, 1\ns_cbranch_scc0 {LS}')
    def loop(sc1):
        st = Stamps(a, stamps)
        LOOP = a.label('Lv'); LAST = a.label('Lvlast'); Lok = a.label('Lvf')
        a(f"""{LOOP}:
        v_cmp_eq_u32 vcc, 0, v{fl}
        s_mov_b32 s{S_FC}, s{S_FV}
        s_cbranch_vccz {LOOP}_f
        buffer_load_dword v{fl}, v13, {SRD}, s{S_FV} offen sc1
        {LOOP}_f:""")
        for r in range(16): a(f'v_mov_b64 {vr(acc+2*r,2)}, 0')
        for hh in range(4): a(f's_add_u32 s{S_X+hh}, s{S_VX}, {hh*28672}')
        st.mark()
        poll_mem(a, S_MEM, (pd, pd+4), tmp, EXIT, MEMS, D2)
        st.mark(2)
        X = '' if OPT['nost'] else 'sc1'
        a(f'v_cmp_eq_u32 vcc, 0, v{fl}')
        if OPT['pre']:
            a('s_nop 0\ns_cmp_eq_u64 vcc, 0\ns_cselect_b32 s58, 0x10000000, 0')
            for k in range(OPT['pre']): a(f'buffer_load_dwordx4 {vr(vx+4*k+4*(k//2*0),4)}, v1, s[56:59], s{S_X+k//2} offen offset:{(k&1)*1024} sc1')
        a(f"""buffer_store_dword v{tmp+2}, v{14 if OPT['mgearly'] else 4}, {SRD}, s{S_T0 if OPT['mgearly'] else S_MG} offen {X}
        buffer_store_dwordx4 {vr(vmf,4)}, v1, {SRD}, s{S_VM} offen {X}
        buffer_store_dwordx4 {vr(vmf+4,4)}, v1, {SRD}, s{S_VM} offen offset:1024 {X}
        s_cmp_eq_u64 vcc, 0
        s_cselect_b32 s58, 0x10000000, 0
        s_mov_b32 s{S_VM}, s{S_VMN}
        s_add_u32 s{S_VMN}, s{S_VMN}, {VM_SEG}
        s_add_u32 s{S_VX}, s{S_VX}, {VX_SEG}
        s_add_u32 s{S_FV}, s{S_FV}, {flag_seg(F_VX)}
        s_waitcnt lgkmcnt(0)
        s_barrier""")
        st.mark(2)
        def wread(i):
            o = i*2048; R = wr+8*(i & 1)
            return [f'ds_read_b128 {vr(R,4)}, v7 offset:{o}', f'ds_read_b128 {vr(R+4,4)}, v7 offset:{o+1024}']
        VL = lambda srd: [f'buffer_load_dwordx4 {vr(vx+8*hh+4*t,4)}, v1, {srd}, s{S_X+hh} offen offset:{t*1024} sc1' for hh in range(4) for t in range(2)]
        V = VL('s[56:59]')[OPT['pre']:]
        V = [f'buffer_load_dword v{fl}, v13, {SRD}, s{S_FV} offen sc1'] + V
        V += [f'buffer_store_dword v5, v12, {SRD}, s{S_RA} offen {sc1}']
        fi = OPT['fpos']
        if OPT['novx']: V = [x if 'dwordx4' not in x else f'buffer_load_dword v{tmp+3}, v14, {SRD}, s{S_RA} offen' for x in V]
        V.insert(fi, f's_waitcnt vmcnt({fi})\ns_barrier\nbuffer_store_dword v15, v14, {SRD}, s{S_FM} offen sc1' if fi < 99 else '')
        a(f's_waitcnt vmcnt({3+OPT["pre"]})')
        for b in range(7): a(f'ds_read_b128 {vr(memA+4*b,4)}, v1 offset:{MEMS+1024*b}')
        for ins in wread(0) + wread(1): a(ins)
        a('s_waitcnt lgkmcnt(4)')
        regs = [(ui, b) for ui in range(6) for b in range(7)]
        k = 0
        for i in range(14):
            for q in range(3):
                ui, b = regs[k]; k += 1
                a(f'v_smfmac_f32_16x16x64_bf16 {vr(acc+4*ui,4)}, {vr(memA+4*b,4)}, {wreg(ui*7+b, nA, vb)}, v6')
                if i > 0 and i+1 < 14 and q < 2: a(wread(i+1)[q])
                if q == 2: a(f's_waitcnt lgkmcnt({2 if i < 13 else 0})')
            a(f'v_smfmac_f32_16x16x64_bf16 {vr(acc+4*(6+i//7),4)}, {vr(memA+4*(i%7),4)}, {vr(wr+8*(i&1),8)}, v6')
            if i < len(V): a(V[i])
        st.mark(2)
        a(f"""s_mov_b32 s{S_RA}, s{S_MEM}
        s_mov_b32 s{S_FM}, s{S_MN}
        s_add_u32 s{S_MN}, s{S_MN}, {flag_seg(F_VM)}
        s_nop 0""")
        ring_off(a, S_MEM, 1, MEM_SEG, S_MB)
        for t in range(2):
            for lo in range(2):
                A0 = acc+4*(lo*2+t); A1 = acc+4*((lo+2)*2+t)
                for r in range(4): a(f'v_permlane32_swap_b32 v{A0+r}, v{A1+r}')
                for r in range(4): a(f'v_add_f32 v{A0+r}, v{A0+r}, v{A1+r}')
                a(f'v_cvt_pk_bf16_f32 v{vmf+4*t+2*lo}, v{A0}, v{A0+1}')
                a(f'v_cvt_pk_bf16_f32 v{vmf+4*t+2*lo+1}, v{A0+2}, v{A0+3}')
        a(f"""s_cmp_ge_u32 s{S_STEP}, {NSTEP-1}
        s_cbranch_scc1 {LAST}
        s_cmp_lg_u32 s58, 0
        s_cbranch_scc1 {Lok}""")
        wait_flags(a, 13, S_FC, tmp+3, EXIT)
        for x in VL(SRD): a(x)
        a(f'{Lok}:')
        st.mark(2)
        if stamps >= 3: a('s_waitcnt vmcnt(3)')
        st.mark(3)
        if stamps >= 3: a('s_waitcnt vmcnt(1)')
        st.mark(3)
        if stamps >= 3: a('s_waitcnt vmcnt(0)')
        st.mark(3)
        L = a.label('Lpp'); UA = a.label('LuA'); UB = a.label('LuB'); J = a.label('LuJ')
        OA = lambda t, ab: oa+8*t+4*ab
        pf2 = memA
        def issue(r):
            a(f"""buffer_load_dwordx4 {vr(r,4)}, v8, {SRD}, s{S_PM} offen sc1
            buffer_load_dwordx4 {vr(r+4,4)}, v8, {SRD}, s{S_PM} offen offset:1024 sc1
            buffer_load_dwordx4 {vr(r+8,4)}, v9, {SRD}, s{S_PM} offen sc1""")
        mf = lambda D, A, B, C: f'v_mfma_f32_16x16x32_bf16 {vr(D,4)}, {vr(A,4)}, {vr(B,4)}, {C}'
        def use(p, o=3):
            a(f's_waitcnt vmcnt({o+2})')
            a(mf(OA(0,0), vx, p, 0)); a(f'v_max3_u32 v{tmp}, v{p}, v{p+1}, v{p+2}')
            a(mf(OA(0,1), vx+8, p, 0)); a(mf(OA(1,0), vx+4, p, 0)); a(mf(OA(1,1), vx+12, p, 0))
            a(f's_waitcnt vmcnt({o+1})')
            a(mf(OA(0,1), vx+24, p+4, vr(OA(0,1),4))); a(f'v_max3_u32 v{tmp+1}, v{p+3}, v{p+4}, v{p+5}')
            a(mf(OA(1,1), vx+28, p+4, vr(OA(1,1),4))); a(f'v_max3_u32 v{tmp}, v{tmp}, v{p+6}, v{p+7}')
            a(mf(OA(0,0), vx+16, p+4, vr(OA(0,0),4))); a(mf(OA(1,0), vx+20, p+4, vr(OA(1,0),4)))
            a(f"""s_waitcnt vmcnt({o})
            v_max3_u32 v{tmp+1}, v{tmp+1}, v{p+8}, v{p+9}
            v_max3_u32 v{tmp}, v{tmp}, v{p+10}, v{p+11}
            v_max_u32 v{tmp}, v{tmp}, v{tmp+1}
            v_cmp_eq_u32 vcc, -1, v{tmp}""")
            a(mf(OA(0,0), vmf, p+8, vr(OA(0,0),4))); a(mf(OA(1,0), vmf+4, p+8, vr(OA(1,0),4)))
        if OPT['pcan']:
            C = a.label('Lcan'); CO = a.label('Lcok')
            def cl(r): a(f'buffer_load_dwordx4 {vr(r,4)}, v9, {SRD}, s{S_PM} offen sc1')
            def cc(r): a(f"""s_waitcnt vmcnt(1)
                v_max3_u32 v{tmp}, v{r}, v{r+1}, v{r+2}
                v_max_u32 v{tmp}, v{tmp}, v{r+3}
                v_cmp_eq_u32 vcc, -1, v{tmp}""")
            cl(pf2); a('s_nop 15\ns_nop 15')
            a(f'{C}:'); cl(pf2+4); cc(pf2); a(f's_cbranch_vccz {CO}'); cl(pf2)
            a(f's_sub_u32 s{S_TO}, s{S_TO}, 1\ns_cbranch_scc1 {EXIT}')
            cc(pf2+4); a(f's_cbranch_vccnz {C}\n{CO}:')
        if OPT['pcan'] or not OPT['p2']:
            a(f'{L}:')
            issue(pf)
            a(f's_sub_u32 s{S_TO}, s{S_TO}, 1\ns_cbranch_scc1 {EXIT}')
            use(pf, 0)
            a(f's_cbranch_vccnz {L}')
        else:
            issue(pf)
            a('s_nop 15\n'*OPT['stag'])
            a(f'{L}:')
            issue(pf2)
            use(pf)
            a(f's_cbranch_vccz {J}')
            issue(pf)
            a(f"""s_sub_u32 s{S_TO}, s{S_TO}, 1
            s_cbranch_scc1 {EXIT}""")
            use(pf2)
            a(f's_cbranch_vccnz {L}')
        a(f'{J}:')
        st.mark(2)
        R = acc
        a('s_nop 5')
        for r in range(4):
            a(f'v_add_f32_dpp v{R+4+r}, v{OA(0,1)+r}, v{OA(0,0)+r} row_ror:8 row_mask:0xf bank_mask:0x3')
        for r in range(4):
            a(f'v_add_f32_dpp v{R+4+r}, v{OA(1,0)+r}, v{OA(1,1)+r} row_ror:8 row_mask:0xf bank_mask:0xc')
        a(f'ds_write_b128 v10, {vr(R+4,4)}')
        a(f's_add_u32 s{S_STEP}, s{S_STEP}, 1')
        a('s_waitcnt lgkmcnt(0)\ns_barrier')
        st.mark(2)
        a(f"""ds_read_b128 {vr(R,4)}, v11
        s_waitcnt lgkmcnt(0)
        v_permlane32_swap_b32 v{R}, v{R+2}
        v_permlane32_swap_b32 v{R+1}, v{R+3}
        v_add_f32 v{R}, v{R}, v{R+2}
        v_add_f32 v{R+1}, v{R+1}, v{R+3}
        s_nop 1
        v_permlane16_swap_b32 v{R}, v{R+1}
        v_add_f32 v{R}, v{R}, v{R+1}
        v_mov_b32 v{R+1}, v{R}
        s_nop 1
        v_permlane16_swap_b32 v{R}, v{R+1}
        v_cvt_pk_bf16_f32 v{tmp+2}, v{R}, v{R+1}
        v_min_u32 v{tmp+2}, 0xfffffffe, v{tmp+2}
        buffer_store_dword v{tmp+2}, v12, {SRD}, s{S_MEM} offen {sc1}
        s_mov_b32 s{S_MG}, s{S_MGN}
        s_add_u32 s{S_MGN}, s{S_MGN}, {MEM_SEG}""")
        if OPT['mgearly']: a(f'buffer_store_dword v{tmp+2}, v4, {SRD}, s{S_MG} offen sc1')
        st.mark(2)
        st.flush(tmp, 20)
        ring_off(a, S_PM, 0, PM_SEG, S_PB)
        a(f"""s_branch {LOOP}
        {LAST}:
        buffer_store_dwordx4 {vr(vmf,4)}, v1, {SRD}, s{S_VM} offen sc1
        buffer_store_dwordx4 {vr(vmf+4,4)}, v1, {SRD}, s{S_VM} offen offset:1024 sc1
        s_waitcnt vmcnt(0)
        s_barrier
        buffer_store_dword v15, v14, {SRD}, s{S_FM} offen sc1
        s_branch {DONE}""")
    loop('')
    a(f'{LS}:')
    loop('sc1')
    a(f'{DONE}:')
    if stamps: stamp_dump(a, None)
    if HANDOVER: a(f's_waitcnt vmcnt(0) lgkmcnt(0)\ns_barrier\ns_cmp_eq_u32 s{S_L}, 0\ns_cbranch_scc1 {PV_ENTRY}')
    a(f's_branch {EXIT}')
```

```python
import sys
from asmlib import *
from layout import *
import chain, workers
from chain import SRD, S_W, S_SLOT, S_L, S_P, S_FAST, S_STEP, S_TO

KN = 'interleave_layers__memory_aug_recurrent_mem_tr__glu_gated_glu__prompt'
R_IDLE, R_K, R_V, R_P, R_VX, R_B1, R_B2, R_PV = range(8)

def role_table():
    T = [R_IDLE]*256
    def enc(role, l=0, p=0, u=0): return role | (l << 4) | (p << 8) | (u << 16)
    for l in range(2):
        for r in range(16): T[l*32+r] = enc(R_K, l, r)
        for r in range(14): T[l*32+16+r] = enc(R_V, l, r)
    free = {x: list(range(x*32, x*32+32)) for x in range(2, 8)}
    for h in range(16):
        x = 2 + h % 6
        for u in range(workers.N_P): T[free[x].pop(0)] = enc(R_P, 0, h, u)
        for u in range(3): T[free[x].pop(0)] = enc(R_VX, 0, h, u)
    teams = [(R_B2, u) for u in range(workers.N_B2)] + [(R_PV, u) for u in range(workers.N_PV)]
    for (r, u), x in zip(teams, [2, 3, 4, 5, 6, 6, 7]):
        for c in range(7): T[free[x].pop(0)] = enc(r, 0, c, u)
    slots = free[6] + free[7] + free[2] + free[3] + free[4] + free[5]
    k = 0
    for c in range(14):
        for u in range(workers.N_B1): T[slots[k]] = enc(R_B1, 0, c, u); k += 1
    if workers.N_PV == 4:
        for c, sl in enumerate(slots[k:] + [30, 31, 62, 63]): T[sl] = enc(R_PV, 0, c, 3)
    return T

def kd(name, vgpr=512, sgpr=102, acc=256):
    return f'''.amdhsa_kernel {name}
  .amdhsa_next_free_vgpr {vgpr}
  .amdhsa_next_free_sgpr {sgpr}
  .amdhsa_accum_offset {acc}
  .amdhsa_group_segment_fixed_size 0
  .amdhsa_kernarg_size 112
  .amdhsa_user_sgpr_count 2
  .amdhsa_user_sgpr_kernarg_segment_ptr 1
  .amdhsa_system_sgpr_workgroup_id_x 1
.end_amdhsa_kernel
'''

DS = 's[80:83]'
PSTAMP = 0
def main_kernel(a, name, roles, stamps=False, force_slow=False, with_prep=True):
    EXIT = f'{name}_exit'
    a(f'.globl {name}\n.p2align 8\n.type {name},@function\n{name}:')
    a(f"""s_cmp_ge_u32 s2, 256
    s_cbranch_scc1 {EXIT}
    s_memrealtime s[78:79]
    s_load_dwordx2 s[4:5], s[0:1], 104
    s_load_dwordx2 s[80:81], s[0:1], 96
    s_load_dwordx4 s[40:43], s[0:1], 0
    s_load_dwordx4 s[44:47], s[0:1], 16
    s_load_dwordx4 s[48:51], s[0:1], 32
    s_load_dwordx4 s[52:55], s[0:1], 64
    s_load_dwordx2 s[56:57], s[0:1], 80
    s_getreg_b32 s7, hwreg(HW_REG_XCC_ID)
    s_and_b32 s7, s7, 7
    v_lshrrev_b32 v1, 6, v0
    s_mov_b32 s82, 256
    v_readfirstlane_b32 s{S_W}, v1
    s_mov_b32 s83, 0x20000
    s_mov_b32 s10, 0x10000000
    s_mov_b32 s11, 0x20000
    s_getpc_b64 s[22:23]
    s_waitcnt lgkmcnt(0)
    s_mov_b32 s8, s4
    s_mov_b32 s9, s5
    s_and_b32 s78, s78, 0xfffffff0
    s_lshl_b32 s20, s7, 1
    s_or_b32 s78, s78, s20
    s_or_b32 s78, s78, 1
    {'s_mov_b32 s98, s78' if stamps else ''}""")
    Lw = a.label('Lra'); Lnat = a.label('Lnat'); Lov = a.label('Lov'); Lov2 = a.label('Lov2'); Lov3 = a.label('Lov3')
    TL = a.label('Ltouch'); TJ = a.label('Ltj')
    a(f"""s_cmp_eq_u32 s{S_W}, 0
    s_cbranch_scc1 {TL}
    s_cmp_lg_u32 s{S_W}, 1
    s_cbranch_scc1 {TJ}
    s_bfe_u32 s20, s2, 0x50003
    s_lshl_b32 s20, s20, 11
    v_and_b32 v1, 15, v0
    v_lshlrev_b32 v1, 7, v1
    v_add_u32 v1, s20, v1
    v_min_u32 v2, {name}_tab-{name}-256, v1
    global_load_dword v250, v2, s[22:23]
    s_branch {TJ}
    {TL}:
    s_cmp_lg_u32 s2, 248
    s_cbranch_scc1 {TJ}
    s_mov_b64 exec, 0x1ff
    v_lshlrev_b32 v1, 7, v0
    v_mov_b32 v2, 0
    s_mov_b32 s21, {RANK}
    buffer_store_dword v2, v1, {SRD}, s21 offen sc1
    v_mov_b32 v2, s78
    v_mov_b32 v3, s79
    s_mov_b64 exec, 1
    s_waitcnt vmcnt(0)
    buffer_store_dwordx2 v[2:3], v1, {DS}, 0 offen offset:128 sc1
    s_mov_b64 exec, -1
    {TJ}:
    s_mov_b32 s6, 0""")
    def take_rank(vr_, sn):
        a(f"""s_mov_b64 exec, 1
        s_bfe_u32 s21, s{sn}, 0x30001
        s_sub_u32 s7, s7, s21
        s_and_b32 s7, s7, 7
        s_lshl_b32 s21, s7, 7
        s_add_u32 s21, s21, {RANK}
        v_mov_b32 v{vr_+1}, 0
        v_mov_b32 v{vr_}, 1
        buffer_atomic_add v{vr_}, v{vr_+1}, {SRD}, s21 offen sc0 sc1
        s_mov_b64 exec, -1
        s_mov_b32 s6, 1""")
    def hook(k, vr_=40, vn=42):
        if k == 1: return f'buffer_load_dwordx2 v[42:43], v44, {DS}, 0 offen offset:128 sc1'
        L = a.label('Lhk')
        if k == 3:
            a(f"""s_barrier
            s_cmp_lg_u32 s6, 1
            s_cbranch_scc1 {L}
            s_lshl_b32 s21, s2, 7
            s_add_u32 s21, s21, {DONEF+16}
            s_mov_b64 exec, 1
            buffer_store_dwordx2 v[42:43], v44, {SRD}, s21 offen sc1
            s_mov_b64 exec, -1
            {L}:""")
            return
        a(f"""s_cmp_lg_u32 s{S_W}, 0
        s_cbranch_scc1 {L}
        v_readfirstlane_b32 s88, v{vn}
        v_readfirstlane_b32 s89, v{vn+1}
        s_cmp_eq_u64 s[88:89], 0
        s_cbranch_scc1 {L}""")
        take_rank(vr_, 88)
        a(f'{L}:')
    if with_prep: prep.prep_body(a, a.label('Lprep_end'), hook, PSTAMP or stamps)
    a(f"""s_mov_b32 s{S_TO}, 0x80000
    s_mov_b32 s{S_FAST}, 1
    s_waitcnt vmcnt(0)
    s_barrier
    s_cmp_lg_u32 s{S_W}, 0
    s_cbranch_scc1 {Lw}
    s_mov_b64 s[78:79], s[88:89]
    s_cmp_eq_u32 s6, 1
    s_cbranch_scc1 {Lw}_r
    v_mov_b32 v1, 0
    {Lw}_n:
    buffer_load_dwordx2 v[2:3], v1, {DS}, 0 offen offset:128 sc1
    s_sub_u32 s{S_TO}, s{S_TO}, 1
    s_cbranch_scc1 {EXIT}
    s_waitcnt vmcnt(0)
    v_readfirstlane_b32 s78, v2
    v_readfirstlane_b32 s79, v3
    s_cmp_eq_u64 s[78:79], 0
    s_cbranch_scc1 {Lw}_n""")
    take_rank(40, 78)
    a(f"""{Lw}_r:
    s_mov_b64 exec, 1
    v_mov_b32 v1, 0
    v_mov_b32 v2, s78
    v_mov_b32 v3, s79
    s_lshl_b32 s21, s2, 7
    s_add_u32 s21, s21, {DONEF}
    buffer_store_dwordx2 v[2:3], v1, {SRD}, s21 offen sc1
    buffer_store_dwordx2 v[2:3], v1, {SRD}, s21 offen offset:16 sc1
    s_waitcnt vmcnt(2)
    v_readfirstlane_b32 s6, v40
    s_lshl_b32 s{S_SLOT}, s7, 5
    s_add_u32 s{S_SLOT}, s{S_SLOT}, s6
    s_cmp_lt_u32 s6, 32
    s_cbranch_scc1 {Lnat}
    v_mov_b32 v2, 1
    s_mov_b32 s21, {RANK}
    buffer_atomic_add v2, v1, {SRD}, s21 offen offset:1024 sc0 sc1
    s_waitcnt vmcnt(0)
    v_readfirstlane_b32 s22, v2
    s_mov_b64 exec, 0xff
    v_mbcnt_lo_u32_b32 v1, -1, 0
    v_lshlrev_b32 v1, 7, v1""")
    a(f'''
    {Lov}:
    buffer_load_dword v2, v1, {SRD}, s21 offen sc1
    s_sub_u32 s{S_TO}, s{S_TO}, 1
    s_cbranch_scc1 {EXIT}
    s_waitcnt vmcnt(0)
    s_mov_b32 s23, 0''')
    for x in range(8):
        a(f'v_readlane_b32 s24, v2, {x}\ns_add_u32 s23, s23, s24')
    a(f'''s_cmp_lt_u32 s23, 256
    s_cbranch_scc1 {Lov}
    s_mov_b32 s23, 0
    {Lov2}:
    v_readlane_b32 s24, v2, s23
    s_min_u32 s24, s24, 32
    s_sub_u32 s25, 32, s24
    s_cmp_lt_u32 s22, s25
    s_cbranch_scc1 {Lov3}
    s_sub_u32 s22, s22, s25
    s_add_u32 s23, s23, 1
    s_cmp_lt_u32 s23, 8
    s_cbranch_scc1 {Lov2}
    s_mov_b32 s{S_SLOT}, 30
    s_branch {Lnat}
    {Lov3}:
    s_lshl_b32 s{S_SLOT}, s23, 5
    s_add_u32 s{S_SLOT}, s{S_SLOT}, s24
    s_add_u32 s{S_SLOT}, s{S_SLOT}, s22
    {Lnat}:
    s_mov_b64 exec, -1
    v_mov_b32 v1, 0
    v_mov_b32 v2, s{S_SLOT}
    v_mov_b32 v3, s78
    v_mov_b32 v4, s79
    ds_write_b96 v1, v[2:4]
    s_waitcnt lgkmcnt(0)
    {Lw}:
    s_barrier
    v_mov_b32 v1, 0
    ds_read_b96 v[2:4], v1
    s_getpc_b64 s[20:21]
    {name}_pc:
    s_add_u32 s20, s20, {name}_tab-{name}_pc
    s_addc_u32 s21, s21, 0
    s_waitcnt lgkmcnt(0)
    v_readfirstlane_b32 s{S_SLOT}, v2
    v_readfirstlane_b32 s78, v3
    v_readfirstlane_b32 s79, v4
    s_and_b32 s{S_SLOT}, s{S_SLOT}, 255
    s_lshl_b32 s22, s{S_SLOT}, 2
    s_load_dword s22, s[20:21], s22
    s_barrier
    s_waitcnt lgkmcnt(0)
    s_bfe_u32 s{S_L}, s22, 0x10004
    s_bfe_u32 s{S_P}, s22, 0x80008
    s_bfe_u32 s19, s22, 0x80010
    s_and_b32 s22, s22, 15
    {'s_memrealtime s[100:101]' if stamps else ''}''')
    labels = {r: a.label(f'Lrole{r}') for r in roles}
    Lch = a.label('Lch')
    for r in roles:
        a(f's_cmp_eq_u32 s22, {r}\ns_cbranch_scc1 {labels[r]}')
    a(f'{EXIT}:\ns_endpgm')
    def chain_mode(va, vd, need=30):
        L = a.label('Lcm'); Ld = a.label('Lcmd')
        a(f'''v_and_b32 v{va}, 7, v0
        v_lshlrev_b32 v{va}, 7, v{va}
        s_mov_b32 s21, {RANK}
        {L}:
        buffer_load_dword v{vd}, v{va}, {SRD}, s21 offen sc1
        s_sub_u32 s{S_TO}, s{S_TO}, 1
        s_cbranch_scc1 {EXIT}
        s_waitcnt vmcnt(0)
        s_lshr_b32 s23, s{S_SLOT}, 5
        s_nop 3
        v_readlane_b32 s22, v{vd}, s23
        s_cmp_ge_u32 s22, {need}
        s_cbranch_scc1 {Ld}
        s_mov_b32 s23, 0''')
        for x in range(8):
            a(f'v_readlane_b32 s22, v{vd}, {x}\ns_add_u32 s23, s23, s22')
        a(f'''s_cmp_lt_u32 s23, 256
        s_cbranch_scc1 {L}
        s_mov_b32 s{S_FAST}, 0
        {Ld}:''')
        if force_slow: a(f's_mov_b32 s{S_FAST}, 0')
    for r in roles:
        a(f'{labels[r]}:')
        if r in (R_K, R_V, R_B2): roles[r](a, EXIT, stamps, chain_mode)
        else: roles[r](a, EXIT, stamps)
    a(f'.p2align 2\n.type {name}_tab,@object\n{name}_tab:')
    T = role_table()
    for i in range(0, 256, 8):
        a('.long ' + ', '.join(f'0x{x:x}' for x in T[i:i+8]))

import workers, prep
ALL = {R_K: chain.k_cu, R_V: chain.v_cu, R_P: workers.p_role, R_VX: workers.vx_role, R_B1: workers.b1_role, R_B2: workers.b2_role, R_PV: workers.pv_role}

HEADER = open('cdna_kernels/' + KN + '.s.ref').read().split('; Override launch geometry')[0]

def build(roles=None, stamps=0, force_slow=False, with_prep=True):
    a = Asm()
    a(HEADER)
    name = KN + '_kernel'
    a('; @launch grid=(256,1,1) block=(256,1,1) lds=163840')
    a('.amdgcn_target "amdgcn-amd-amdhsa--gfx950"\n.text')
    chain.HANDOVER = False
    chain.PREP = with_prep
    main_kernel(a, name, {r: ALL[r] for r in (ALL if roles is None else roles)}, stamps, force_slow, with_prep)
    a('.section .rodata,"a"\n.p2align 6')
    a(kd(name))
    return a.text()

def with_timeout_diag(txt):
    lines = txt.split('\n'); out = []; stubs = []; n = 0
    for i, ln in enumerate(lines):
        if ln.strip() == f's_cbranch_scc1 {KN}_kernel_exit' and lines[i-1].strip().startswith('s_sub_u32 s18'):
            n += 1
            out.append(f'    s_cbranch_scc1 Lto_{n}   ; site {n}')
            stubs.append(f'Lto_{n}:\n    s_mov_b32 s99, {n}\n    s_branch Lto_common')
        elif ln.startswith(f'.type {KN}_kernel_tab') :
            out.pop()
            out += stubs
            out.append(f"""Lto_common:
    s_mov_b64 exec, 1
    s_lshl_b32 s20, s13, 2
    s_add_u32 s20, s20, s12
    s_lshl_b32 s20, s20, 4
    s_add_u32 s20, s20, {STAMP+0x900000}
    v_mov_b32 v1, 0
    v_mov_b32 v4, s99
    v_mov_b32 v5, s17
    v_mov_b32 v6, s44
    v_mov_b32 v7, s47
    buffer_store_dwordx4 v[4:7], v1, s[8:11], s20 offen
    s_endpgm
.p2align 2""")
            out.append(ln)
        else: out.append(ln)
    return '\n'.join(out).replace('s_mov_b32 s18, 0x80000', 's_mov_b32 s18, 0x4000')

if __name__ == '__main__':
    E = 'exp/'
    open(E+'chain1.s', 'w').write(build([R_K, R_V], 1, with_prep=False))
    open(E+'chain2.s', 'w').write(build([R_K, R_V], 2, with_prep=False))
    open(E+'prep.s', 'w').write(build([]))
    for nm, r in (('p', R_P), ('vx', R_VX), ('b1', R_B1), ('b2', R_B2), ('pv', R_PV)):
        open(E+f'r_{nm}.s', 'w').write(build([r], 1, with_prep=False))
    open(E+'full.s', 'w').write(build())
    open(E+'full_to.s', 'w').write(with_timeout_diag(build()))
    open(E+'slow_to.s', 'w').write(with_timeout_diag(build(force_slow=True)))
    open(E+'full_cy.s', 'w').write(build(stamps=1))
    chain.STAMP_OP = 's_memrealtime'
    open(E+'chain3.s', 'w').write(build([R_K, R_V], 2, with_prep=False))
    open(E+'full_st.s', 'w').write(build(stamps=1))
    open(E+'prep_st.s', 'w').write(build([], stamps=1))
```

```python
from asmlib import *
from layout import *
from workers import gather_pairs, mf
SRD = 's[8:11]'
SCALE = 0x3db8aa3b
WST = 'sc1'
NT = ''
TOUCH = 11

def prep_body(a, END, hook, stamps=0):
    n_st = [0]
    def mark():
        if stamps:
            a(f's_memrealtime s[{60+2*n_st[0]}:{61+2*n_st[0]}]'); n_st[0] += 1
    def dump():
        if stamps == 9: a('s_memrealtime s[74:75]\ns_waitcnt vmcnt(0)\ns_memrealtime s[76:77]\ns_waitcnt lgkmcnt(0)')
        if not stamps or stamps == 9: return
        a(f'''s_waitcnt vmcnt(0)
        s_memrealtime s[76:77]
        s_waitcnt lgkmcnt(0)
        s_lshl_b32 s20, s2, 2
        s_add_u32 s20, s20, s12
        s_lshl_b32 s20, s20, 6
        s_add_u32 s20, s20, {STAMP+0x800000}
        v_mov_b32 v2, 0''')
        for k in range(9):
            a(f'v_mov_b32 v3, s{60+2*k}\nbuffer_store_dword v3, v2, s[8:11], s20 offen offset:{4*k}')
    EXIT = END
    mark()
    a(f'''v_and_b32 v7, 63, v0
    v_lshlrev_b32 v1, 4, v7
    v_lshlrev_b32 v2, 4, v0
    v_mov_b32 v16, -1
    v_mov_b32 v17, -1
    v_mov_b32 v18, -1
    v_mov_b32 v19, -1
    v_mov_b32 v20, 0
    v_mov_b32 v21, 0
    v_mov_b32 v22, 0
    v_mov_b32 v23, 0''')
    if TOUCH & 2:
        a(f'''s_cmp_lt_u32 s12, 2
        s_cselect_b32 s24, s44, s48
        s_cselect_b32 s25, s45, s49
        s_cselect_b32 s28, s46, s50
        s_cselect_b32 s29, s47, s51
        s_bitcmp1_b32 s12, 0
        s_cselect_b32 s24, s28, s24
        s_cselect_b32 s25, s29, s25
        s_mov_b32 s26, {448*8192}
        s_mov_b32 s27, 0x20000
        s_mul_i32 s20, s2, 14336
        v_lshlrev_b32 v8, 7, v7
        v_min_u32 v9, 47, v7
        v_lshlrev_b32 v9, 7, v9
        s_add_u32 s21, s20, 8192
        buffer_load_dword v251, v8, s[24:27], s20 offen
        buffer_load_dword v251, v9, s[24:27], s21 offen''')
        if TOUCH & 4: a('s_waitcnt vmcnt(0)\ns_barrier')
    LN = a.label('Lln')
    def touch_b():
        if not TOUCH & 8: return
        a(f'''s_cmp_eq_u32 s12, 1
        s_cselect_b64 s[20:21], s[54:55], s[52:53]
        s_cmp_ge_u32 s12, 2
        s_cselect_b64 s[20:21], s[56:57], s[20:21]
        s_mul_i32 s22, s2, 6272
        v_min_u32 v45, 48, v7
        v_lshlrev_b32 v45, 7, v45
        v_add_u32 v45, s22, v45
        global_load_dword v46, v45, s[20:21]''')
    def fills():
        nb = (SENT1-SENT0)//8192
        skip = [0, 4, (MEMG-SENT0)//8192, (MEMG-SENT0)//8192+64]
        OOBS = 0x70000000
        for rnd in range(2):
            a(f's_lshl_b32 s20, s2, 13\ns_add_u32 s20, s20, {SENT0 + 256*8192*rnd}')
            if rnd == 0:
                for b in skip: a(f's_cmp_eq_u32 s2, {b}\ns_cselect_b32 s20, {OOBS}, s20')
            else:
                a(f's_cmp_ge_u32 s2, {nb-256}\ns_cselect_b32 s20, {OOBS}, s20')
            a(f'''s_add_u32 s21, s20, 4096
            buffer_store_dwordx4 v[16:19], v2, {SRD}, s20 offen {WST}
            buffer_store_dwordx4 v[16:19], v2, {SRD}, s21 offen {WST}''')
        a(f's_mul_i32 s20, s2, 20480\ns_add_u32 s20, s20, {PF}')
        for k in range(5): a(f'buffer_store_dwordx4 v[16:19], v2, {SRD}, s20 offen {WST}\ns_add_u32 s20, s20, 4096')
        nz = (ZERO1-ZERO0)//4096
        assert (ZERO1-ZERO0) % 4096 == 0 and 256 <= nz <= 512
        for rnd in range(2):
            a(f's_lshl_b32 s20, s2, 12\ns_add_u32 s20, s20, {ZERO0 + 256*4096*rnd}')
            if rnd: a(f's_cmp_ge_u32 s2, {nz-256}\ns_cselect_b32 s20, {OOBS}, s20')
            a(f'buffer_store_dwordx4 v[20:23], v2, {SRD}, s20 offen {WST}')
    a(f's_and_b32 s22, s2, 7\ns_cmp_eq_u32 s22, 0\ns_cbranch_scc1 {LN}')
    LV = a.label('Lfv'); LJ = a.label('Lfj')
    a(f'''s_sub_u32 s22, s22, 1
    s_lshl_b32 s22, s22, 5
    s_lshr_b32 s20, s2, 3
    s_add_u32 s20, s20, s22
    s_mul_i32 s13, s20, 9363
    s_lshr_b32 s13, s13, 16
    s_mul_i32 s22, s13, 7
    s_sub_u32 s14, s20, s22
    s_and_b32 s15, s13, 15
    s_lshl_b32 s16, s14, 2
    s_add_u32 s16, s16, s12
    v_and_b32 v3, 15, v7
    v_lshrrev_b32 v4, 4, v7
    v_lshrrev_b32 v5, 2, v3
    v_and_b32 v6, 3, v3
    v_lshl_add_u32 v5, v5, 3, v6
    v_lshlrev_b32 v5, 13, v5
    v_lshl_add_u32 v5, v4, 4, v5
    s_lshl_b32 s17, s15, 9
    s_lshl_b32 s37, s12, 13
    s_mov_b32 s26, {448*8192}
    s_mov_b32 s27, 0x20000
    s_mov_b32 s30, {448*8192}
    s_mov_b32 s31, 0x20000
    s_cmp_ge_u32 s13, 16
    s_cbranch_scc1 {LV}
    s_mov_b32 s24, s44
    s_mov_b32 s25, s45
    s_mov_b32 s28, s46
    s_mov_b32 s29, s47
    v_lshrrev_b32 v24, 2, v7
    v_lshlrev_b32 v24, 13, v24
    v_and_b32 v25, 3, v7
    v_lshl_add_u32 v24, v25, 7, v24
    s_lshl_b32 s21, s16, 17
    s_add_u32 s21, s21, s17
    {'buffer_load_dword v251, v24, s[24:27], s21 offen' if TOUCH & 1 else ''}
    s_mov_b32 s32, {SCALE}
    s_mov_b32 s33, {WA}
    s_lshr_b32 s20, s16, 1
    s_lshl_b32 s20, s20, 5
    s_and_b32 s21, s16, 1
    s_lshl_b32 s21, s21, 2
    s_add_u32 s20, s20, s21
    s_lshl_b32 s20, s20, 13
    s_add_u32 s20, s20, s17''')
    for kd in range(8):
        a(f's_add_u32 m0, s37, {kd*1024 - kd*64}\ns_nop 0\nbuffer_load_dwordx4 v5, s[28:31], s20 offen offset:{kd*64} {NT} lds')
    a(f"""s_branch {LJ}
    {LV}:
    s_mov_b32 s24, s48
    s_mov_b32 s25, s49
    s_mov_b32 s28, s50
    s_mov_b32 s29, s51
    v_lshrrev_b32 v24, 2, v7
    v_lshlrev_b32 v24, 13, v24
    v_and_b32 v25, 3, v7
    v_lshl_add_u32 v24, v25, 7, v24
    s_lshl_b32 s21, s16, 17
    s_add_u32 s21, s21, s17
    {'buffer_load_dword v251, v24, s[24:27], s21 offen' if TOUCH & 1 else ''}
    s_mov_b32 s32, 1.0
    s_mov_b32 s33, {WV}
    v_lshrrev_b32 v8, 1, v7
    v_mul_u32_u24 v8, 896, v8
    v_and_b32 v9, 1, v7
    v_lshl_add_u32 v8, v9, 4, v8
    s_mul_i32 s21, s15, {256*896}
    s_lshl_b32 s20, s16, 5
    s_add_u32 s21, s21, s20""")
    for kd in range(8):
        a(f's_add_u32 m0, s37, {kd*1024}\ns_add_u32 s20, s21, {kd*32*896}\nbuffer_load_dwordx4 v8, s[28:31], s20 offen {NT} lds')
    a(f'{LJ}:')
    mark()
    AF = lambda n, ab, kd: 64*(n & 1) + 32*ab + 4*kd
    a(f"""v_lshrrev_b32 v24, 3, v7
    v_and_b32 v25, 7, v7
    v_bfe_u32 v26, v7, 4, 1
    v_xor_b32 v25, v25, v26
    v_lshlrev_b32 v24, 13, v24""")
    for rg in range(4):
        a(f"""v_xor_b32 v26, {2*rg}, v25
        v_lshl_add_u32 v{10+rg}, v26, 4, v24
        v_add_u32 v{10+rg}, {rg*8*8192}, v{10+rg}""")
    a(f"""s_lshl_b32 s38, s12, 15
    s_add_u32 s38, s38, 32768
    v_lshrrev_b32 v24, 2, v3
    v_lshlrev_b32 v14, 10, v24
    v_lshl_add_u32 v14, v6, 7, v14
    v_lshlrev_b32 v24, 1, v24
    v_lshrrev_b32 v25, 1, v6
    v_or_b32 v24, v24, v25
    v_xor_b32 v24, v24, v4
    v_lshl_add_u32 v14, v24, 4, v14
    v_add_u32 v14, s38, v14
    v_xor_b32 v15, 64, v14""")
    def adma(n):
        a(f"""s_add_u32 s34, s12, {4*n}
        s_lshl_b32 s34, s34, 18
        s_add_u32 s34, s34, s17""")
        for cg in range(4):
            for rg in range(4):
                a(f's_add_u32 m0, s38, {(n&1)*16384 + (cg*4+rg)*1024 - cg*128}\ns_nop 0\nbuffer_load_dwordx4 v{10+rg}, s[24:27], s34 offen offset:{cg*128} {NT} lds')
    def aread(n):
        for ab in range(2):
            for kd in range(8):
                a(f'ds_read_b128 {ar(AF(n,ab,kd),4)}, v{14+(kd&1)} offset:{(n&1)*16384 + (kd>>1)*4096 + ab*512}')
    adma(0); adma(1)
    fills()
    a('v_mov_b32 v44, 0\ns_waitcnt vmcnt(43)')
    a('s_barrier')
    mark()
    LB = a.label('Lfb'); LC = a.label('Lfc')
    a(f's_cmp_ge_u32 s13, 16\ns_cbranch_scc1 {LB}')
    for i in range(32): a(f'ds_read_b128 {vr(128+4*i,4)}, v1 offset:{i*1024}')
    a(f"""s_branch {LC}
    {LB}:
    v_lshlrev_b32 v9, 8, v4
    v_lshl_add_u32 v9, v3, 3, v9""")
    for i in range(32):
        for jh in range(2): a(f'ds_read_b64_tr_b16 {vr(128+4*i+2*jh,2)}, v9 offset:{i*1024+jh*128}')
        if i % 4 == 3: a('s_waitcnt lgkmcnt(4)')
    a(f"""{LC}:
    s_mul_i32 s36, s15, 28
    s_lshl_b32 s20, s14, 2
    s_add_u32 s36, s36, s20
    s_mul_i32 s36, s36, 14336
    s_add_u32 s36, s36, s33
    s_lshl_b32 s20, s12, 10
    s_add_u32 s36, s36, s20""")
    AC = 64
    def adma_list(n):
        out = [f's_add_u32 s34, s12, {4*n}', 's_lshl_b32 s34, s34, 18', 's_add_u32 s34, s34, s17']
        for cg in range(4):
            for rg in range(4):
                out += [f's_add_u32 m0, s38, {(n&1)*16384 + (cg*4+rg)*1024 - cg*128}', f'buffer_load_dwordx4 v{10+rg}, s[24:27], s34 offen offset:{cg*128} {NT} lds', '']
        return out
    def epi(n):
        A0 = AC + 32*(n & 1); out = []
        for tt in range(4):
            O = 24+4*tt
            for ab in range(2):
                A = A0+16*ab+4*tt
                out += [f'v_mul_f32 v{A+r}, s32, v{A+r}' for r in range(4)]
                out += [f'v_cvt_pk_bf16_f32 v{O+2*ab}, v{A}, v{A+1}', f'v_cvt_pk_bf16_f32 v{O+2*ab+1}, v{A+2}, v{A+3}']
            out += [f's_add_u32 s20, s36, {tt*14336 + n*4096}\nbuffer_store_dwordx4 {vr(O,4)}, v1, {SRD}, s20 offen {WST}']
        return out
    a('s_waitcnt vmcnt(27)')
    touch_b()
    aread(0)
    for n in range(4):
        if n == 3: a(f's_cmp_ge_u32 s12, 2\ns_cbranch_scc1 {EXIT}_e2')
        a('s_waitcnt lgkmcnt(0)')
        if n == 2: hook(2)
        mark()
        main = [mf(vr(AC+32*(n&1)+16*ab+4*tt,4), ar(AF(n,ab,kd),4), vr(128+4*(tt*8+kd),4), 0 if kd == 0 else None)
                for kd in range(8) for ab in range(2) for tt in range(4)]
        F = {}
        if n < 2:
            for k, x in enumerate(adma_list(n+2)): F.setdefault(k, []).append(x)
        if n >= 1:
            for k, x in enumerate(epi(n-1)): F.setdefault(8+k, []).append(x)
        if n == 0: F.setdefault(60, []).append(hook(1))
        for x in interleave(main, F): a(x)
        if n < 3:
            a(f's_waitcnt vmcnt({(29 if TOUCH & 8 else 28, 20, 4)[n]})')
            aread(n+1)
            if n == 2: hook(3)
    a('s_nop 7')
    for x in epi(3): a(x)
    a(f's_branch {EXIT}_f\n{EXIT}_e2:\ns_nop 7')
    for x in epi(2): a(x)
    a(f'{EXIT}_f:')
    a(f'{EXIT}_d:')
    dump()
    a(f's_branch {END}')
    n_st[0] = 1
    X = 24
    a(f'''{LN}:
    s_lshr_b32 s13, s2, 3
    s_lshl_b32 s14, s13, 2
    s_add_u32 s14, s14, s12
    s_mov_b32 s24, s40
    s_mov_b32 s25, s41
    s_mov_b32 s26, {2048*896}
    s_mov_b32 s27, 0x20000
    v_and_b32 v3, 15, v7
    v_lshrrev_b32 v4, 4, v7
    v_mul_u32_u24 v5, 896, v3
    v_lshl_add_u32 v5, v4, 4, v5
    s_mul_i32 s16, s14, 14336''')
    for ks in range(14): a(f'buffer_load_dwordx4 {vr(X+4*ks,4)}, v5, s[24:27], s16 offen offset:{ks*64} {NT}')
    fills()
    LM = a.label('Lm0')
    a(f'''s_cmp_ge_u32 s13, 2
    s_cbranch_scc1 {LM}
    s_mov_b32 s28, s42
    s_mov_b32 s29, s43
    s_mov_b32 s30, 7168
    s_mov_b32 s31, 0x20000
    s_lshl_b32 s21, s13, 15
    s_add_u32 s21, s21, {MEMF}
    s_lshl_b32 s22, s13, 19
    s_add_u32 s22, s22, {MEMG}''')
    for rnd in range(2):
        a(f'''v_add_u32 v8, {256*rnd}, v0
        v_min_u32 v8, 447, v8
        v_and_b32 v9, 7, v8
        v_mul_u32_u24 v10, 896, v9
        v_lshrrev_b32 v11, 3, v8
        v_lshl_add_u32 v10, v11, 4, v10
        buffer_load_dwordx4 v[12:15], v10, s[28:31], 0 offen
        v_lshlrev_b32 v10, 4, v8
        v_lshrrev_b32 v11, 4, v8
        v_lshlrev_b32 v11, 8, v11
        v_lshl_add_u32 v11, v9, 4, v11
        v_bfe_u32 v9, v8, 3, 1
        v_lshl_add_u32 v11, v9, 3, v11
        s_waitcnt vmcnt(0)''')
        for r in range(4): a(f'v_min_u32 v{12+r}, 0xfffffffe, v{12+r}')
        a(f'''buffer_store_dwordx4 v[12:15], v10, {SRD}, s22 offen sc1
        buffer_store_dword v12, v11, {SRD}, s21 offen sc1
        buffer_store_dword v13, v11, {SRD}, s21 offen offset:128 sc1
        buffer_store_dword v14, v11, {SRD}, s21 offen offset:4 sc1
        buffer_store_dword v15, v11, {SRD}, s21 offen offset:132 sc1
        s_nop 1''')
    a(f'{LM}:\ns_waitcnt vmcnt(0)')
    LNT = 1
    mark()
    U = 96
    for i in range(56):
        a(f'v_lshlrev_b32 v{U+2*i}, 16, v{X+i}\nv_and_b32 v{U+2*i+1}, 0xffff0000, v{X+i}')
    a('v_mov_b32 v8, 0\nv_mov_b32 v9, 0\nv_mov_b32 v10, 0\nv_mov_b32 v11, 0')
    for i in range(56):
        a(f'v_pk_add_f32 v[8:9], v[8:9], {vr(U+2*i,2)}\nv_pk_fma_f32 v[10:11], {vr(U+2*i,2)}, {vr(U+2*i,2)}, v[10:11]')
    a('v_add_f32 v8, v8, v9\nv_add_f32 v9, v10, v11')
    for sw in ('16', '32'):
        a(f'''v_mov_b32 v10, v8
        v_mov_b32 v11, v9
        s_nop 1
        v_permlane{sw}_swap_b32 v8, v10
        v_permlane{sw}_swap_b32 v9, v11
        v_add_f32 v8, v8, v10
        v_add_f32 v9, v9, v11''')
    a(f'''s_mov_b32 s22, 0x3b124925
    s_mov_b32 s23, 0x3727c5ac
    v_mul_f32 v8, s22, v8
    v_mul_f32 v9, s22, v9
    v_fma_f32 v9, -v8, v8, v9
    v_max_f32 v9, 0, v9
    v_add_f32 v9, s23, v9
    v_rsq_f32 v10, v9
    s_add_u32 s20, s16, {XN}
    v_mul_f32 v8, v8, v10
    v_mov_b32 v11, v10
    v_sub_f32 v8, 0, v8
    v_mov_b32 v9, v8''')
    for ks in range(14):
        for d in range(4):
            i = 4*ks+d
            a(f'v_pk_fma_f32 {vr(U+2*i,2)}, {vr(U+2*i,2)}, v[10:11], v[8:9]\nv_cvt_pk_bf16_f32 v{X+i}, v{U+2*i}, v{U+2*i+1}\nv_min_u32 v{X+i}, 0xfffffffe, v{X+i}')
        a(f'buffer_store_dwordx4 {vr(X+4*ks,4)}, v1, {SRD}, s20 offen offset:{(ks&3)*1024} {WST}')
        if (ks & 3) == 3: a('s_add_u32 s20, s20, 4096')
    dump()
    a(f'{END}:')
```

```python
from asmlib import *
from layout import *
from chain import SRD, S_W, S_SLOT, S_L, S_P, S_TO, S_U, wait_flags, need_head, all_done, hold_back, Stamps, stamp_dump, DPP
import chain

S_K, S_S, S_LS = 42, 43, 44
OOB = 0x7f000000
D_V, D_PV, D_B2, D_B1, D_P = 17, 15, 15, 15, 15
N_PV, N_B2, N_B1, N_P = 3, 4, 2, 4
DEC = 147392
ONES = ST + 7168
ZEROS = CNT + 1152
S_NL, S_NS, S_NLS, S_HAVE, S_PEND, S_BUF = 45, 46, 47, 52, 53, 54
SRD2 = 's[56:59]'
S_FAST = chain.S_FAST

def w4(i, nA=64, vb=120):
    return ar(4*i, 4) if i < nA else vr(vb + 4*(i-nA), 4)

def load_frags(a, n, sreg, dst, voff=1, start=0):
    for i in range(n):
        a(f'buffer_load_dwordx4 {dst(i)}, v{voff}, {SRD}, s{sreg} offen offset:{(i & 3)*1024} sc1')
        if (i & 3) == 3: a(f's_add_u32 s{sreg}, s{sreg}, 4096')
        if start+i >= 47 and (start+i) % 8 == 7: a('s_waitcnt vmcnt(40)')

S_SCH = 70
S0_P, S0_PV, S0_B1, S0_B2, S1_V = 38, 37, 36, 56, 21
MERGE = {'PV': 10}
def sched_table(role):
    if role == 'VX': return [(S1_V//3, 0, 3, 0, 1, 2, 0), (S1_V//3, 0, 3, 1, 1, 2, 1), (S1_V//3, 0, 3, 2, 0, 1, S1_V)]
    if role == 'B2': return [(32, 0, 2, 0, 1, 4, S0_B2), (32, 0, 2, 1, 1, 4, S0_B2+1), (S0_B2//2, 1, 2, 0, 1, 4, S0_B2+2), (S0_B2//2, 1, 2, 1, 1, 4, S0_B2+3)]
    if role == 'P': return [(32, 0, 2, 0, 1, 4, 64), (32, 0, 2, 1, 1, 4, 64), (32, 1, 2, 0, 1, 4, 64), (32, 1, 2, 1, 1, 4, 64)]
    if role == 'PV' and N_PV == 4: return [(32, 0, 2, 0, 1, 4, 64), (32, 0, 2, 1, 1, 4, 64), (32, 1, 2, 0, 1, 4, 64), (32, 1, 2, 1, 1, 4, 64)]
    if role == 'B1': return [(64, 0, 1, 0, 1, 1, 64), (64, 1, 1, 0, 1, 1, 64)]
    S0, N = {'P': (S0_P, 4), 'PV': (S0_PV, 5), 'B1': (S0_B1, 3)}[role]
    return [(32, 0, 2, 0, 1, N, S0+1), (32, 0, 2, 1, 1, N, S0+2), (S0, 1, 1, 0, 1, N, S0)] + [(0, 1, 1, 0, 1, N, S0+u) for u in range(3, N)]
def task_list(role, u):
    if role in MERGE:
        D = MERGE[role]; out = []
        for k in range(u, 128, 3):
            if k < D: out.append(k)
            elif k >= 128-D: out.append(k)
            else:
                kk = k-D; l = kk & 1; out.append(64*l + (kk >> 1) + (1-l)*D)
        return out
    c1, l1, t1, b1, l2, t2, b2 = sched_table(role)[u]
    out = []; k = 0
    while True:
        l, s = (l1, b1+t1*k) if k < c1 else (l2, b2+t2*(k-c1))
        if s >= 64: return out
        out.append(64*l+s); k += 1
CUR_ROLE = [None]
def sched_setup(a, role):
    CUR_ROLE[0] = role
    if role in MERGE: return
    T = sched_table(role)
    J = a.label('Lsj')
    for u, row in enumerate(T):
        N = a.label('Lsn')
        if u < len(T)-1: a(f's_cmp_eq_u32 s{S_U}, {u}\ns_cbranch_scc0 {N}')
        for i, v in enumerate(row): a(f's_mov_b32 s{S_SCH+i}, {v}')
        if u < len(T)-1: a(f's_branch {J}\n{N}:')
    a(f'{J}:')

def task_calc(S_L, S_S, S_LS):
    return [f's_sub_u32 s20, s{S_K}, s{S_SCH}\ns_cselect_b32 s20, s{S_K}, s20\ns_cselect_b32 s{S_L}, s{S_SCH+1}, s{S_SCH+4}\n'
            f's_cselect_b32 s21, s{S_SCH+2}, s{S_SCH+5}\ns_cselect_b32 s{S_S}, s{S_SCH+3}, s{S_SCH+6}',
            's_mul_i32 s20, s20, s21', f's_add_u32 s{S_S}, s{S_S}, s20', f's_lshl_b32 s{S_LS}, s{S_L}, 6', f's_add_u32 s{S_LS}, s{S_LS}, s{S_S}']

def merged_task(a, D, DONE, S_L=S_L, S_S=S_S, S_LS=S_LS):
    if CUR_ROLE[0] in MERGE:
        D = MERGE[CUR_ROLE[0]]
        L2 = a.label('Lm2'); LD = a.label('Lmd')
        a(f'''s_mul_i32 s21, s{S_K}, 3
        s_add_u32 s21, s21, s{S_U}
        s_mov_b32 s{S_L}, 0
        s_mov_b32 s{S_S}, s21
        s_cmp_lt_u32 s21, {D}
        s_cbranch_scc1 {LD}
        s_cmp_ge_u32 s21, {128-D}
        s_cbranch_scc1 {L2}
        s_sub_u32 s20, s21, {D}
        s_and_b32 s{S_L}, s20, 1
        s_lshr_b32 s{S_S}, s20, 1
        s_xor_b32 s20, s{S_L}, 1
        s_mul_i32 s20, s20, {D}
        s_add_u32 s{S_S}, s{S_S}, s20
        s_branch {LD}
        {L2}:
        s_mov_b32 s{S_L}, 1
        s_sub_u32 s{S_S}, s21, 64
        {LD}:
        s_lshl_b32 s{S_LS}, s{S_L}, 6
        s_add_u32 s{S_LS}, s{S_LS}, s{S_S}
        s_cmp_ge_u32 s{S_S}, 64
        s_cbranch_scc1 {DONE}''')
        return
    a(f'''s_sub_u32 s20, s{S_K}, s{S_SCH}
    s_cselect_b32 s20, s{S_K}, s20
    s_cselect_b32 s{S_L}, s{S_SCH+1}, s{S_SCH+4}
    s_cselect_b32 s21, s{S_SCH+2}, s{S_SCH+5}
    s_cselect_b32 s{S_S}, s{S_SCH+3}, s{S_SCH+6}
    s_mul_i32 s20, s20, s21
    s_add_u32 s{S_S}, s{S_S}, s20
    s_lshl_b32 s{S_LS}, s{S_L}, 6
    s_add_u32 s{S_LS}, s{S_LS}, s{S_S}
    s_cmp_ge_u32 s{S_S}, 64
    s_cbranch_scc1 {DONE}''')

def flag_off(a, dst, kind, ls=S_LS):
    a(f's_mul_i32 s{dst}, s{ls}, {flag_seg(kind)}\ns_add_u32 s{dst}, s{dst}, {flag_base(kind)}')

def pend_flag(a, kind, sidx, ls=S_LS, add=0):
    a(f"""s_mul_i32 s{S_PEND}, s{ls}, {flag_seg(kind)}
    s_lshl_b32 s20, s{sidx}, 7
    s_add_u32 s{S_PEND}, s{S_PEND}, s20
    s_add_u32 s{S_PEND}, s{S_PEND}, {flag_base(kind) + add*flag_seg(kind)}""")

def flush(a, cnt=0):
    a(f"""s_waitcnt vmcnt({cnt})
    s_barrier
    buffer_store_dword v15, v14, {SRD}, s{S_PEND} offen sc1
    s_mov_b32 s{S_PEND}, {DUMMY}""")

def pipe_setup(a, vdw, vdr):
    a(f"""s_lshl_b32 s20, s{S_W}, 2
    s_add_u32 s20, s20, {DEC}
    v_mov_b32 v{vdw}, s20
    v_mov_b32 v{vdr}, {DEC}
    s_mov_b32 s56, s4
    s_mov_b32 s57, s5
    s_mov_b32 s58, 0
    s_mov_b32 s59, 0x20000
    s_mov_b32 s{S_HAVE}, 0
    s_mov_b32 s{S_PEND}, {DUMMY}
    s_mov_b32 s{S_BUF}, 0""")

def mid_sync(a, vfl, vdw, vdr, vt):
    a(f"""s_waitcnt vmcnt(0)
    v_cmp_eq_u32 vcc, 0, v{vfl}
    s_nop 1
    v_mov_b32 v{vt}, vcc_lo
    v_or_b32 v{vt}, vcc_hi, v{vt}
    ds_write_b32 v{vdw}, v{vt}
    s_waitcnt lgkmcnt(0)
    s_barrier
    ds_read_b32 v{vt}, v{vdr}
    buffer_store_dword v15, v14, {SRD}, s{S_PEND} offen sc1
    s_mov_b32 s{S_PEND}, {DUMMY}
    s_waitcnt lgkmcnt(0)
    v_readfirstlane_b32 s20, v{vt}
    s_cmp_eq_u32 s20, 0
    s_cselect_b32 s{S_HAVE}, 1, 0
    s_cselect_b32 s58, 0x10000000, 0""")

def dma_list(n, s_src, s_lds, srd=SRD, flags='sc1'):
    out = []
    for i in range(n):
        pre = []
        if (i & 3) == 0:
            if i: pre.append(f's_add_u32 s{s_src}, s{s_src}, 4096')
            pre.append(f's_mov_b32 m0, s{s_lds}')
            pre.append(f's_add_u32 s{s_lds}, s{s_lds}, 4096')
        out.append((pre, f'buffer_load_dwordx4 v1, {srd}, s{s_src} offen offset:{(i&3)*1024} {flags} lds'))
    return out

def set_flag(a, kind, sidx, vz=14, v1_=15, st=20):
    a(f'''s_mul_i32 s{st}, s{S_LS}, {flag_seg(kind)}
    s_lshl_b32 s{st+1}, s{sidx}, 7
    s_add_u32 s{st}, s{st}, s{st+1}
    s_add_u32 s{st}, s{st}, {flag_base(kind)}
    s_waitcnt vmcnt(0)
    s_barrier
    buffer_store_dword v{v1_}, v{vz}, {SRD}, s{st} offen sc1''')

def common_setup(a):
    a(f'''v_and_b32 v7, 63, v0
    v_lshlrev_b32 v1, 4, v7
    v_cmp_eq_u32 vcc, 0, v0
    v_mov_b32 v14, {OOB}
    v_mov_b32 v15, 1
    v_cndmask_b32 v14, v14, 0, vcc''')

def dma_frags(a, n, s_src, lds_base_s, flags='sc1'):
    for i in range(n):
        if (i & 3) == 0:
            a(f's_mov_b32 m0, s{lds_base_s}\ns_add_u32 s{lds_base_s}, s{lds_base_s}, 4096')
        a(f'buffer_load_dwordx4 v1, {SRD}, s{s_src} offen offset:{(i&3)*1024} {flags} lds')
        if (i & 3) == 3: a(f's_add_u32 s{s_src}, s{s_src}, 4096')

def gather_pairs(a, batches, T0=64, dst='a'):
    P = [[e for e in b if not isinstance(e, str)] for b in batches]
    def issue(b):
        k = 0
        for e in batches[b]:
            if isinstance(e, str): a(e); continue
            a(e[0].format(T0+32*(b % 2)+2*k)); a(e[1].format(T0+32*(b % 2)+2*k+1)); k += 1
    def fin(b):
        for k, (lo, hi, d) in enumerate(P[b]):
            t = T0+32*(b % 2)+2*k
            if dst == 'a': a(f'v_lshl_or_b32 v{t}, v{t+1}, 16, v{t}\nv_accvgpr_write_b32 a{d}, v{t}')
            else: a(f'v_lshl_or_b32 v{d}, v{t+1}, 16, v{t}')
    n = len(batches)
    for b in range(n+1):
        if b < n: issue(b)
        if b >= 1:
            a(f's_waitcnt vmcnt({2*len(P[b]) if b < n else 0})')
            fin(b-1)

def mf(D, A, B, C=None):
    return f'v_mfma_f32_16x16x32_bf16 {D}, {A}, {B}, {D if C is None else C}'


def hint(a, kind, sidx, add=0):
    a(f"""s_mul_i32 s21, s{S_LS}, {flag_seg(kind)}
    s_lshl_b32 s20, s{sidx}, 7
    s_add_u32 s21, s21, s20
    s_add_u32 s21, s21, {flag_base(kind) + add*flag_seg(kind)}
    s_barrier
    buffer_store_dword v15, v14, {SRD}, s21 offen sc1""")

def guard(a, r, n):
    for i in range(n): a(f'v_min_u32 v{r+i}, 0xfffffffe, v{r+i}')

def vote(a, vfl, vdw, vdr, vt, cnt):
    a(f"""s_waitcnt vmcnt({cnt})
    v_cmp_eq_u32 vcc, 0, v{vfl}
    s_nop 1
    v_mov_b32 v{vt}, vcc_lo
    v_or_b32 v{vt}, vcc_hi, v{vt}
    ds_write_b32 v{vdw}, v{vt}
    s_waitcnt lgkmcnt(0)
    s_barrier
    ds_read_b32 v{vt}, v{vdr}
    s_waitcnt lgkmcnt(0)
    v_readfirstlane_b32 s20, v{vt}
    s_cmp_eq_u32 s20, 0
    s_cselect_b32 s{S_HAVE}, 1, 0
    s_cselect_b32 s58, 0x10000000, 0""")

def chk4(m, r, first=False):
    if first: return [f'v_max3_u32 v{m}, v{r}, v{r+1}, v{r+2}', f'v_max_u32 v{m}, v{m}, v{r+3}']
    return [f'v_max3_u32 v{m}, v{m}, v{r}, v{r+1}', f'v_max3_u32 v{m}, v{m}, v{r+2}, v{r+3}']

def redo_if_bad(a, m, REDO, EXIT):
    a(f"""v_cmp_eq_u32 vcc, -1, v{m}
    s_cbranch_vccnz {REDO}""")

def vote_pre(a, vfl, vdw, vt):
    a(f"""v_cmp_eq_u32 vcc, 0, v{vfl}
    s_nop 1
    v_mov_b32 v{vt}, vcc_lo
    v_or_b32 v{vt}, vcc_hi, v{vt}
    ds_write_b32 v{vdw}, v{vt}
    s_waitcnt lgkmcnt(0)""")

def vote_post(a, vdr, vt, between=()):
    a(f'ds_read_b32 v{vt}, v{vdr}')
    for x in between: a(x)
    a(f"""s_waitcnt lgkmcnt({len([x for x in between if x.startswith('ds_')])})
    v_readfirstlane_b32 s20, v{vt}
    s_cmp_eq_u32 s20, 0
    s_cselect_b32 s{S_HAVE}, 1, 0
    s_cselect_b32 s58, 0x10000000, 0""")

def chk2(m, r0, r1, first=False):
    return f'v_max_u32 v{m}, v{r0}, v{r1}' if first else f'v_max3_u32 v{m}, v{m}, v{r0}, v{r1}'

def sched(a, main, lanes):
    F = {}
    for start, step, ins in lanes:
        for k, x in enumerate(ins): F.setdefault(start+k*step, []).append(x)
    for x in interleave(main, F): a(x)

SPEC = 1
def wait_spec(a, voff, soff, vd, EXIT, setup, loads, n):
    L = a.label('Lws')
    a(f'{L}:')
    setup()
    a(f'buffer_load_dword v{vd}, v{voff}, {SRD}, s{soff} offen sc1')
    loads()
    a(f"""s_sub_u32 s{S_TO}, s{S_TO}, 1
    s_cbranch_scc1 {EXIT}
    s_waitcnt vmcnt({n})
    v_cmp_eq_u32 vcc, 0, v{vd}
    s_cbranch_vccnz {L}""")

HOLD = 0
def vx_role(a, EXIT, stamps=0):
    a('; ================= VX role =================')
    acc, xr, o, m = 16, 72, 96, 106
    common_setup(a)
    sched_setup(a, 'VX')
    need_head(a, 1, EXIT)
    a(f'''s_mul_i32 s20, s{S_P}, 28
    s_mul_i32 s21, s{S_W}, 7
    s_add_u32 s30, s20, s21
    s_mul_i32 s20, s30, 14336
    s_add_u32 s20, s20, {WV}''')
    load_frags(a, 98, 20, w4)
    a(f'''s_lshl_b32 s30, s30, 10
    s_mul_i32 s31, s{S_W}, 7168
    v_and_b32 v8, 7, v7
    v_min_u32 v8, 6, v8
    v_lshlrev_b32 v8, 7, v8
    s_mov_b32 s{S_K}, 0''')
    all_done(a, EXIT)
    pipe_setup(a, 10, 11)
    merged_task(a, D_V, EXIT)
    st = Stamps(a, stamps)
    LOOP = a.label('Lvx'); NW = a.label('Lnw'); HV = a.label('Lhv'); GO = a.label('Lgo'); REDO = a.label('Lredo'); RUN = a.label('Lrun')
    def src(ls, buf_expr):
        a(f'''s_mul_i32 s22, s{ls}, {XN_SEG}
        s_add_u32 s22, s22, s31
        s_add_u32 s22, s22, {XN}
        {buf_expr}
        s_add_u32 s23, s23, s31''')
    def lookahead():
        NJ = a.label('Lnj')
        a(f's_add_u32 s{S_K}, s{S_K}, 1\ns_mov_b32 s25, {ZEROS}')
        merged_task(a, D_V, NJ, S_NL, S_NS, S_NLS)
        flag_off(a, 25, F_XN, S_NLS)
        a(f'''s_cmp_eq_u32 s{S_NL}, 0
        s_cselect_b32 s25, {ONES}, s25
        {NJ}:
        buffer_load_dword v9, v8, {SRD}, s25 offen sc1''')
    lookahead()
    a(f'{LOOP}:')
    st.mark()
    a(f's_cmp_eq_u32 s{S_HAVE}, 1\ns_cbranch_scc1 {HV}')
    flush(a)
    a(f's_cmp_eq_u32 s{S_L}, 0\ns_cbranch_scc1 {NW}')
    if SPEC & 2:
        flag_off(a, 26, F_XN)
        wait_spec(a, 8, 26, 12, EXIT, lambda: src(S_LS, f's_mov_b32 s23, s{S_BUF}'), lambda: dma_frags(a, 7, 22, 23), 7)
        a(f's_branch {NW}_j')
    else:
        flag_off(a, 22, F_XN)
        wait_flags(a, 8, 22, 12, EXIT)
    a(f'{NW}:')
    src(S_LS, f's_mov_b32 s23, s{S_BUF}')
    dma_frags(a, 7, 22, 23)
    a(f'{NW}_j:\nbuffer_load_dword v9, v8, {SRD}, s25 offen sc1')
    a(f's_waitcnt vmcnt(0)\ns_branch {GO}\n{HV}:\ns_waitcnt vmcnt(7)\n{GO}:')
    st.mark()
    a(f'''v_add_u32 v2, s{S_BUF}, v1
    s_mul_i32 s24, s{S_LS}, {VX_SEG}
    s_add_u32 s24, s24, s30
    s_add_u32 s24, s24, {VX}
    {RUN}:''')
    src(S_NLS, f's_xor_b32 s23, s{S_BUF}, 28672')
    vote_pre(a, 9, 10, 12)
    a('s_barrier')
    st.mark()
    def rd(ks): return [f'ds_read_b128 {vr(xr+8*(ks%3)+4*rt,4)}, v2 offset:{(rt*14+ks)*1024}' for rt in range(2)]
    vote_post(a, 11, 12, rd(0) + rd(1))
    main = []; lanes = []
    dl = dma_list(7, 22, 23, SRD2)
    for ks in range(14):
        b = 14*ks
        for t in range(7):
            for rt in range(2):
                main.append(mf(vr(acc+28*rt+4*t,4), vr(xr+8*(ks%3)+4*rt,4), w4(t*14+ks), 0 if ks == 0 else None))
        lanes.append((b-1, 1, [f's_waitcnt lgkmcnt({2 if ks < 13 else 0})']))
        if ks+2 < 14: lanes.append((b, 3, rd(ks+2)))
        lanes.append((b+1, 1, [chk2(m, xr+8*(ks%3), xr+8*(ks%3)+4, ks == 0)]))
        if ks < 7: lanes.append((b+6, 1, dl[ks][0] + [dl[ks][1]]))
    lanes.append((14*5+4, 1, ['s_waitcnt vmcnt(5)\ns_barrier', f'buffer_store_dword v15, v14, {SRD}, s{S_PEND} offen sc1', f's_mov_b32 s{S_PEND}, {DUMMY}']))
    sched(a, main, lanes)
    st.mark()
    redo_if_bad(a, m, REDO, EXIT)
    pend_flag(a, F_VX, S_P)
    st.flush(104, 20, S_LS); st.n = 0
    a(f'''s_mov_b32 s{S_L}, s{S_NL}
    s_mov_b32 s{S_S}, s{S_NS}
    s_mov_b32 s{S_LS}, s{S_NLS}
    s_xor_b32 s{S_BUF}, s{S_BUF}, 28672
    s_mov_b32 s35, s{S_NS}''')
    lookahead()
    for t in range(7):
        O = o+4*(t & 1)
        for rt in range(2):
            A = acc+28*rt+4*t
            a(f'v_cvt_pk_bf16_f32 v{O+2*rt}, v{A}, v{A+1}\nv_cvt_pk_bf16_f32 v{O+2*rt+1}, v{A+2}, v{A+3}')
        a(f'buffer_store_dwordx4 {vr(O,4)}, v1, {SRD}, s24 offen offset:{(t&3)*1024} sc1')
        if t == 3: a('s_add_u32 s24, s24, 4096')
    st.mark()
    a(f's_cmp_lt_u32 s35, 64\ns_cbranch_scc1 {LOOP}')
    flush(a)
    if stamps: stamp_dump(a, EXIT)
    else: a(f's_branch {EXIT}')
    a(f'{REDO}:\ns_sub_u32 s{S_TO}, s{S_TO}, 64\ns_cbranch_scc1 {EXIT}\ns_barrier')
    src(S_LS, f's_mov_b32 s23, s{S_BUF}')
    dma_frags(a, 7, 22, 23)
    a(f's_waitcnt vmcnt(0)\ns_branch {RUN}')
    st.n = 0

def p_role(a, EXIT, stamps=0):
    a('; ================= P role =================')
    PART = 65536
    SW = 4096
    acc, qr, xk, s4, m, ninf = 16, 44, 84, 112, 116, 117
    TB = lambda rt, u: 56 + 14*rt + 2*u - (0 if u == 0 else 0)
    TBP = lambda rt, p: 56 + 14*rt + 2 + 4*p
    S_XP, S_XS, S_MP, S_MS = 30, 31, 32, 33
    CM = 82
    WD = a.label('Lpwd')
    a(f's_mov_b32 s23, 0\ns_branch {WD}\n{chain.P_ENTRY}:\ns_mov_b32 s{S_U}, 3\ns_mov_b32 s23, 1\n{WD}:')
    common_setup(a)
    sched_setup(a, 'P')
    a(f"""s_cmp_eq_u32 s23, 1
    s_cbranch_scc1 {WD}_skip""")
    if HOLD: hold_back(a, EXIT, skip=f's_cmp_lt_u32 s{S_U}, 2')
    need_head(a, 0, EXIT)
    a(f"""s_mul_i32 s20, s{S_P}, 28
    s_mul_i32 s21, s{S_W}, 7
    s_add_u32 s20, s20, s21
    s_and_b32 s22, s{S_W}, 1
    s_add_u32 s21, s20, s22
    s_mul_i32 s21, s21, 14336
    s_add_u32 s21, s21, {WA}
    s_xor_b32 s22, s22, 1
    s_mul_i32 s22, s22, 6
    s_add_u32 s20, s20, s22
    s_mul_i32 s20, s20, 14336
    s_add_u32 s20, s20, {WA}""")
    load_frags(a, 14, 20, w4)
    load_frags(a, 84, 21, lambda i: w4(14+i), start=14)
    a(f"""{WD}_skip:
    s_mul_i32 s20, s{S_W}, 7
    s_add_u32 s20, s20, 1
    s_lshr_b32 s20, s20, 1
    s_lshr_b32 s21, s{S_W}, 1
    s_mul_i32 s21, s21, 7
    s_add_u32 s21, s21, 3
    s_lshl_b32 s{S_XP}, s20, 10
    s_lshl_b32 s{S_XS}, s21, 10
    s_lshl_b32 s{S_MP}, s20, 9
    s_lshl_b32 s{S_MS}, s21, 9
    s_and_b32 s22, s{S_W}, 1
    s_lshl_b32 s34, s22, 3
    v_lshrrev_b32 v10, 4, v7
    v_and_b32 v11, 15, v7
    v_and_b32 v3, 7, v7
    v_min_u32 v8, 6, v3
    v_lshlrev_b32 v8, 7, v8
    v_lshlrev_b32 v3, 4, v3
    v_lshl_add_u32 v3, v10, 7, v3
    v_add_u32 v4, s34, v3
    v_mul_u32_u24 v5, 272, v10
    v_lshl_add_u32 v5, v11, 4, v5
    s_lshl_b32 s20, s{S_W}, 12
    s_add_u32 s20, s20, {PART}
    v_add_u32 v5, s20, v5
    s_lshl_b32 s20, s{S_W}, 2
    v_add_u32 v12, s20, v10
    v_min_u32 v6, 11, v11
    v_mul_u32_u24 v6, 272, v6
    v_lshl_add_u32 v6, v12, 4, v6
    v_add_u32 v6, {PART}, v6
    s_lshl_b32 s20, s{S_P}, 11
    v_and_b32 v13, 3, v11
    v_lshlrev_b32 v13, 8, v13
    v_lshl_add_u32 v13, v12, 4, v13
    v_lshrrev_b32 v9, 2, v11
    v_lshl_add_u32 v9, v9, 3, v13
    v_add_u32 v9, s20, v9
    s_lshr_b32 s20, s{S_P}, 2
    s_lshl_b32 s20, s20, 11
    s_add_u32 s20, s20, 32768
    s_and_b32 s21, s{S_P}, 2
    s_lshl_b32 s21, s21, 8
    s_add_u32 s20, s20, s21
    s_and_b32 s21, s{S_P}, 1
    s_lshl_b32 s21, s21, 3
    s_add_u32 s20, s20, s21
    v_add_u32 v13, s20, v13
    v_cmp_gt_u32 vcc, 8, v11
    v_cmp_gt_u32 s[22:23], 10, v11
    v_lshlrev_b32 v10, 2, v11
    v_cndmask_b32 v9, v13, v9, vcc
    v_mov_b32 v13, {OOB}
    v_cndmask_b32 v9, v13, v9, s[22:23]
    v_mov_b32 v13, 64
    v_cndmask_b32 v13, v13, 0, s[22:23]
    v_cndmask_b32 v10, v13, v10, vcc
    v_mov_b32 v{ninf}, 0xff800000""")
    for rt in range(2):
        for r in range(4):
            c = CM + 2*(4*rt+r)
            a(f"""v_add_u32 v13, {r}, v10
            v_cndmask_b32 v13, v10, v13, vcc
            v_add_u32 v2, {16*rt}, v12
            v_cmp_le_u32 s[{c}:{c+1}], v13, v2""")
    pipe_setup(a, 10, 11)
    a(f's_mul_i32 s29, s{S_W}, 7168\ns_mov_b32 s{S_K}, 0')
    all_done(a, EXIT)
    merged_task(a, D_P, EXIT)
    XK = lambda u, kt: xk + (2*kt if u == 0 else 4 + 8*(u-1) + 4*kt)
    def src(ls, buf_expr):
        a(f"""s_mul_i32 s22, s{ls}, {XN_SEG}
        s_add_u32 s22, s22, s29
        s_add_u32 s22, s22, {XN}
        {buf_expr}
        s_add_u32 s23, s23, s29""")
    def lookahead():
        NJ = a.label('Lnj')
        a(f's_add_u32 s{S_K}, s{S_K}, 1\ns_mov_b32 s36, {ZEROS}')
        merged_task(a, D_P, NJ, S_NL, S_NS, S_NLS)
        flag_off(a, 36, F_XN, S_NLS)
        a(f"""s_cmp_eq_u32 s{S_NL}, 0
        s_cselect_b32 s36, {ONES}, s36
        {NJ}:
        buffer_load_dword v12, v8, {SRD}, s36 offen sc1""")
    st = Stamps(a, stamps)
    LOOP = a.label('Lp'); NW = a.label('Lnw'); HV = a.label('Lhv'); REDO = a.label('Lredo')
    lookahead()
    a(f'{LOOP}:')
    st.mark()
    a(f's_cmp_eq_u32 s{S_HAVE}, 1\ns_cbranch_scc1 {HV}')
    a(f's_cmp_eq_u32 s{S_L}, 0\ns_cbranch_scc1 {NW}')
    flag_off(a, 22, F_XN)
    wait_flags(a, 8, 22, 118, EXIT)
    a(f'{NW}:')
    src(S_LS, f's_mov_b32 s23, s{S_BUF}')
    dma_frags(a, 7, 22, 23)
    a(f'buffer_load_dword v12, v8, {SRD}, s36 offen sc1\ns_waitcnt vmcnt(0)\n{HV}:')
    a(f"""v_add_u32 v13, s{S_BUF}, v1
    s_lshl_b32 s27, s{S_LS}, 13
    s_add_u32 s27, s27, {MEMG}
    s_add_u32 s28, s27, s{S_MS}
    s_add_u32 s27, s27, s{S_MP}
    s_mul_i32 s24, s{S_LS}, {PF_SEG}
    s_add_u32 s24, s24, {PF}
    v_add_u32 v2, s{S_XP}, v13
    v_add_u32 v7, s{S_XS}, v13
    v_add_u32 v7, s34, v7""")
    src(S_NLS, f's_xor_b32 s23, s{S_BUF}, 32768')
    a('s_waitcnt vmcnt(3)')
    vote_pre(a, 12, 10, 118)
    a('s_barrier')
    st.mark()
    def rd(i): return f'ds_read_b128 {vr(qr+4*(i%3),4)}, v13 offset:{i*1024}'
    vote_post(a, 11, 118, [rd(0), rd(1)])
    kl = []
    for kt in range(2):
        kl.append(f'ds_read_b64 {vr(XK(0,kt),2)}, v7 offset:{kt*14336}')
        kl += [f'ds_read_b128 {vr(XK(u,kt),4)}, v2 offset:{kt*14336+(u-1)*1024}' for u in range(1, 4)]
    MK = lambda u: (118, qr+8, qr, qr+4)[u]
    mkl = [f'buffer_load_dwordx2 {vr(MK(0),2)}, v4, {SRD}, s28 offen sc1'] + [f'buffer_load_dwordx4 {vr(MK(u),4)}, v3, {SRD}, s27 offen offset:{(u-1)*512} sc1' for u in range(1, 4)]
    def cvts(rt): return [x for u in range(7) for x in (f'v_cvt_pk_bf16_f32 v{TB(rt,u)}, v{acc+4*u}, v{acc+4*u+1}', f'v_cvt_pk_bf16_f32 v{TB(rt,u)+1}, v{acc+4*u+2}, v{acc+4*u+3}')]
    def score(D, D2, K, rt):
        return [mf(vr(D,4), vr(K(1),4), vr(TBP(rt,0),4), 0), f'v_mfma_f32_16x16x16_bf16 {vr(D2,4)}, {vr(K(0),2)}, {vr(TB(rt,0),2)}, 0',
                mf(vr(D,4), vr(K(2),4), vr(TBP(rt,1),4)), mf(vr(D,4), vr(K(3),4), vr(TBP(rt,2),4))]
    def stream(rt, extra):
        main = []; lanes = list(extra)
        for ks in range(14):
            i = 14*rt+ks; b = 7*ks
            main += [mf(vr(acc+4*u,4), w4(u*14+ks), vr(qr+4*(i%3),4), 0 if ks == 0 else None) for u in range(7)]
            lanes.append((b-1, 1, [f's_waitcnt lgkmcnt({0 if i == 27 else 1})']))
            if i+2 < 28: lanes.append((b+5, 1, [rd(i+2)]))
            lanes.append((b+1, 1, [f'v_mov_b32 v{m}, v{qr}' if i == 0 else f'v_max_u32 v{m}, v{m}, v{qr+4*(i%3)}']))
        sched(a, main, lanes)
    dl = dma_list(7, 22, 23, SRD2)
    ex = [(7*k+2, 1, [kl[k]]) for k in range(8)]
    for k in range(4): ex.append((7*(3*k+1)+3, 7, ['\n'.join(dl[k][0]) or 's_nop 0', dl[k][1]]))
    stream(0, ex)
    st.mark(2)
    a('s_nop 0')
    for x in cvts(0): a(x)
    s0 = [f'v_mfma_f32_16x16x16_bf16 {vr(s4,4)}, {vr(XK(0,0),2)}, {vr(TB(0,0),2)}, 0'] + [mf(vr(s4,4), vr(XK(u,0),4), vr(TBP(0,u-1),4)) for u in range(1, 4)]
    ex = [(2, 1, [s0[0]]), (16, 1, s0[1:]), (30, 1, [f'ds_write_b128 v5, {vr(s4,4)}'])]
    for k in range(4, 7): ex.append((7*(3*(k-4)+1)+3, 7, ['\n'.join(dl[k][0]) or 's_nop 0', dl[k][1]]))
    MK = lambda u: (118, qr+4, qr+8, qr)[u]
    mkl = [f'buffer_load_dwordx2 {vr(MK(0),2)}, v4, {SRD}, s28 offen sc1'] + [f'buffer_load_dwordx4 {vr(MK(u),4)}, v3, {SRD}, s27 offen offset:{(u-1)*512} sc1' for u in range(1, 4)]
    ex += [(7*12+2, 1, [mkl[0]]), (7*12+4, 1, [mkl[1]]), (7*13+2, 1, [mkl[2]]), (7*13+6, 1, [mkl[3]])]
    stream(1, ex)
    redo_if_bad(a, m, REDO, EXIT)
    for x in cvts(1): a(x)
    st.mark()
    d0, d1, e0, e1, t = acc, acc+4, acc+8, acc+12, s4
    sa = score(d0, e0, lambda u: XK(u, 0), 1); sb = score(d1, e1, lambda u: XK(u, 1), 1)
    for x, y in zip(sa, sb): a(x); a(y)
    a(f"""s_mov_b32 s37, s{S_LS}
    s_mov_b32 s{S_L}, s{S_NL}
    s_mov_b32 s{S_LS}, s{S_NLS}
    s_xor_b32 s{S_BUF}, s{S_BUF}, 32768
    s_mov_b32 s35, s{S_NS}""")
    lookahead()
    for r in range(4): a(f'v_add_f32 v{d0+r}, v{d0+r}, v{e0+r}')
    a(f'ds_write_b128 v5, {vr(d0,4)} offset:16384')
    for r in range(4): a(f'v_add_f32 v{d1+r}, v{d1+r}, v{e1+r}')
    a(f'ds_write_b128 v5, {vr(d1,4)} offset:{16384+1088}')
    L = a.label('Lpmk'); LC = a.label('Lpc')
    def check():
        a(f"""v_max3_u32 v{t}, v118, v119, v{qr}
        v_max3_u32 v{t+1}, v{qr+1}, v{qr+2}, v{qr+3}
        v_max3_u32 v{t}, v{t}, v{qr+4}, v{qr+5}
        v_max3_u32 v{t+1}, v{t+1}, v{qr+6}, v{qr+7}
        v_max3_u32 v{t}, v{t}, v{qr+8}, v{qr+9}
        v_max3_u32 v{t+1}, v{t+1}, v{qr+10}, v{qr+11}
        v_max_u32 v{t}, v{t}, v{t+1}
        v_cmp_eq_u32 vcc, -1, v{t}""")
    st.mark(2)
    a('s_waitcnt vmcnt(1)')
    check()
    a(f's_cbranch_vccz {LC}\n{L}:')
    for x in mkl: a(x)
    a(f"""s_sub_u32 s{S_TO}, s{S_TO}, 1
    s_cbranch_scc1 {EXIT}
    s_waitcnt vmcnt(0)""")
    check()
    a(f's_cbranch_vccnz {L}\n{LC}:')
    st.mark()
    d0, d1, e0, e1 = acc+16, acc+20, acc+8, acc+12
    sa = score(d0, e0, MK, 0); sb = score(d1, e1, MK, 1)
    for x, y in zip(sa, sb): a(x); a(y)
    a(f"""s_mul_i32 s21, s37, {flag_seg(F_P)}
    s_lshl_b32 s20, s{S_P}, 7
    s_add_u32 s21, s21, s20
    s_add_u32 s21, s21, {flag_base(F_P)}
    s_nop 2""")
    for r in range(4): a(f'v_add_f32 v{d0+r}, v{d0+r}, v{e0+r}')
    a(f'ds_write_b128 v5, {vr(d0,4)} offset:2176')
    for r in range(4): a(f'v_add_f32 v{d1+r}, v{d1+r}, v{e1+r}')
    a(f'ds_write_b128 v5, {vr(d1,4)} offset:{16384+2176}')
    st.mark(2)
    a('s_waitcnt lgkmcnt(0)\ns_barrier')
    st.mark(2)
    RR = [56, 84]
    for rt in range(2):
        for w in range(4): a(f'ds_read_b128 {vr(RR[rt]+4*w,4)}, v6 offset:{rt*16384+w*SW}')
    for rt in range(2):
        R = RR[rt]
        a(f"""s_waitcnt lgkmcnt({4-4*rt})
        v_pk_add_f32 {vr(R,2)}, {vr(R,2)}, {vr(R+4,2)}
        v_pk_add_f32 {vr(R+2,2)}, {vr(R+2,2)}, {vr(R+6,2)}
        v_pk_add_f32 {vr(R+8,2)}, {vr(R+8,2)}, {vr(R+12,2)}
        v_pk_add_f32 {vr(R+10,2)}, {vr(R+10,2)}, {vr(R+14,2)}
        v_pk_add_f32 {vr(R,2)}, {vr(R,2)}, {vr(R+8,2)}
        v_pk_add_f32 {vr(R+2,2)}, {vr(R+2,2)}, {vr(R+10,2)}""")
        for r in range(4): a(f'v_cndmask_b32 v{R+r}, v{ninf}, v{R+r}, s[{CM+2*(4*rt+r)}:{CM+2*(4*rt+r)+1}]')
    st.mark(2)
    def both(f):
        for R in RR: a(f(R))
    both(lambda R: f'v_max3_f32 v{R+4}, v{R}, v{R+1}, v{R+2}')
    both(lambda R: f'v_max_f32 v{R+4}, v{R+4}, v{R+3}')
    for k in (8, 4, 2, 1):
        a('s_nop 0'); both(lambda R: f'v_max_f32_dpp v{R+4}, v{R+4}, v{R+4} row_ror:{k} {DPP}')
    for r in range(4): both(lambda R: f'v_sub_f32 v{R+r}, v{R+r}, v{R+4}')
    for r in range(4): both(lambda R: f'v_exp_f32 v{R+r}, v{R+r}')
    both(lambda R: f'v_add_f32 v{R+4}, v{R}, v{R+1}')
    both(lambda R: f'v_add_f32 v{R+5}, v{R+2}, v{R+3}')
    both(lambda R: f'v_add_f32 v{R+4}, v{R+4}, v{R+5}')
    for k in (8, 4, 2, 1):
        a('s_nop 0'); both(lambda R: f'v_add_f32_dpp v{R+4}, v{R+4}, v{R+4} row_ror:{k} {DPP}')
    both(lambda R: f'v_rcp_f32 v{R+4}, v{R+4}')
    a('s_nop 0')
    for rt, R in enumerate(RR):
        a(f"""v_pk_mul_f32 {vr(R,2)}, {vr(R+4,2)}, {vr(R,2)} op_sel_hi:[0,1]
        v_pk_mul_f32 {vr(R+2,2)}, {vr(R+4,2)}, {vr(R+2,2)} op_sel_hi:[0,1]
        v_cvt_pk_bf16_f32 v{s4+2*rt}, v{R}, v{R+1}
        v_cvt_pk_bf16_f32 v{s4+2*rt+1}, v{R+2}, v{R+3}
        v_min_u32 v{s4+2*rt}, 0xfffffffe, v{s4+2*rt}
        buffer_store_dwordx2 {vr(s4+2*rt,2)}, v9, {SRD}, s24 offen offset:{1024*rt} sc1""")
    a(f's_barrier\nbuffer_store_dword v15, v14, {SRD}, s21 offen sc1')
    st.mark()
    st.flush(118, 20, 37)
    a(f's_cmp_lt_u32 s35, 64\ns_cbranch_scc1 {LOOP}')
    if stamps: stamp_dump(a, EXIT)
    else: a(f's_branch {EXIT}')
    a(f'{REDO}:\ns_sub_u32 s{S_TO}, s{S_TO}, 64\ns_cbranch_scc1 {EXIT}\ns_waitcnt lgkmcnt(0)\ns_barrier\ns_branch {NW}')

def rscatter(a, q):
    a(f'''s_nop 1
    v_permlane32_swap_b32 v{q}, v{q+2}
    v_permlane32_swap_b32 v{q+1}, v{q+3}
    v_add_f32 v{q}, v{q}, v{q+2}
    v_add_f32 v{q+1}, v{q+1}, v{q+3}
    s_nop 1
    v_permlane16_swap_b32 v{q}, v{q+1}
    v_add_f32 v{q}, v{q}, v{q+1}''')

def stats_partial(a, A, q):
    for rt in range(2):
        x = A+4*rt
        a(f'''v_add_f32 v{q+2*rt}, v{x}, v{x+1}
        v_mul_f32 v{q+2*rt+1}, v{x}, v{x}
        v_add_f32 v{q+2*rt}, v{q+2*rt}, v{x+2}
        v_fmac_f32 v{q+2*rt+1}, v{x+1}, v{x+1}
        v_add_f32 v{q+2*rt}, v{q+2*rt}, v{x+3}
        v_fmac_f32 v{q+2*rt+1}, v{x+2}, v{x+2}
        v_fmac_f32 v{q+2*rt+1}, v{x+3}, v{x+3}''')
    rscatter(a, q)

def stats_loads(G, vg, s_st, srd=SRD):
    return [f'buffer_load_dwordx4 {vr(G+4*i,4)}, v{vg}, {srd}, s{s_st} offen offset:{256*i} sc1' for i in range(7)]

def stats_check(a, G, t):
    a(f'''v_max3_u32 v{t}, v{G}, v{G+4}, v{G+8}
    v_max3_u32 v{t+1}, v{G+12}, v{G+16}, v{G+20}
    v_max3_u32 v{t}, v{t}, v{t+1}, v{G+24}
    v_cmp_eq_u32 vcc, -1, v{t}''')

def stats_finish(a, G, keep=None, pairs=((0, 1), (2, 3), (4, 5), (0, 2), (4, 6), (0, 4))):
    for (i, j) in pairs:
        a(f'v_pk_add_f32 {vr(G+4*i,2)}, {vr(G+4*i,2)}, {vr(G+4*j,2)}\nv_pk_add_f32 {vr(G+4*i+2,2)}, {vr(G+4*i+2,2)}, {vr(G+4*j+2,2)}')
    rscatter(a, G)
    a(f'''v_mov_b32 v{G+1}, v{G}
    s_nop 1
    v_permlane16_swap_b32 v{G}, v{G+1}
    v_mov_b32 v{G+2}, v{G}
    v_mov_b32 v{G+3}, v{G+1}
    s_mov_b32 s20, 0x3b124925
    s_mov_b32 s21, 0x3727c5ac
    v_permlane32_swap_b32 v{G}, v{G+2}
    v_permlane32_swap_b32 v{G+1}, v{G+3}''')
    for rt in range(2):
        m = G+2*rt; v = m+1
        a(f'''v_mul_f32 v{m}, s20, v{m}
        v_mul_f32 v{v}, s20, v{v}
        v_fma_f32 v{v}, -v{m}, v{m}, v{v}
        v_max_f32 v{v}, 0, v{v}
        v_add_f32 v{v}, s21, v{v}''')
        if keep is not None: a(f'v_sqrt_f32 v{keep+rt}, v{v}')
        a(f'v_rsq_f32 v{v}, v{v}')
    a('s_nop 0')

def sent4(a, r):
    for i in range(4): a(f'v_mov_b32 v{r+i}, -1')

def b1_role(a, EXIT, stamps=0):
    a('; ================= B1 role =================')
    W = lambda tt, ks: ar(4*(tt*14+ks), 4)
    ACC = lambda rt, tt: 48+16*rt+4*tt
    yr, o, cs, GS, MS, m, PK, SN = 16, 40, 80, 96, 152, 158, 160, 176
    common_setup(a)
    sched_setup(a, 'B1')
    if HOLD: hold_back(a, EXIT, skip=f's_cmp_eq_u32 s{S_U}, 0')
    a(f'''s_load_dwordx4 s[24:27], s[0:1], 64
    s_lshl_b32 s20, s{S_P}, 2
    s_add_u32 s30, s20, s{S_W}
    v_lshrrev_b32 v2, 2, v7
    v_mul_u32_u24 v2, 3584, v2
    v_and_b32 v3, 3, v7
    v_lshl_add_u32 v2, v3, 4, v2
    v_lshrrev_b32 v4, 4, v7
    v_lshlrev_b32 v5, 9, v4
    v_bfe_u32 v6, v7, 2, 2
    v_lshl_add_u32 v5, v6, 6, v5
    v_lshl_add_u32 v5, v3, 4, v5
    s_mul_i32 s31, s{S_W}, 28672
    v_add_u32 v5, s31, v5
    v_and_b32 v6, 15, v7
    v_lshlrev_b32 v13, 4, v6
    v_lshl_add_u32 v13, v4, 9, v13
    v_add_u32 v6, 256, v13
    v_cmp_gt_u32 vcc, 3, v4
    v_mov_b32 v4, {OOB}
    v_mov_b32 v3, v6
    v_cndmask_b32 v6, v4, v3, vcc
    s_waitcnt lgkmcnt(0)
    s_mov_b32 s36, s24
    s_mov_b32 s37, s25
    s_mov_b32 s38, {448*3584}
    s_mov_b32 s39, 0x20000
    s_mov_b32 s48, s26
    s_mov_b32 s49, s27
    s_mov_b32 s50, {448*3584}
    s_mov_b32 s51, 0x20000
    s_lshl_b32 s22, s30, 6''')
    for rr in range(2):
        a(f's_mov_b32 s23, s31')
        for k in range(7):
            for mat in range(2):
                for hf in range(2):
                    a(f'''s_mov_b32 m0, s23
                    s_add_u32 s21, s22, {(32*(7*rr+k)+16*hf)*3584}
                    buffer_load_dwordx4 v2, s[{36+12*mat}:{39+12*mat}], s21 offen lds
                    s_add_u32 s23, s23, 1024''')
        for k in range(7):
            a(f's_waitcnt vmcnt({4*(6-k)})')
            for mat in range(2):
                for t2 in range(2):
                    for jh in range(2):
                        b = 4*((2*mat+t2)*14+7*rr+k)+2*jh
                        a(f'ds_read_b64_tr_b16 {ar(b,2)}, v5 offset:{k*4096+mat*2048+jh*256+t2*8}')
            a('s_waitcnt lgkmcnt(0)')
    a('s_barrier')
    for r in range(4): a(f'v_mov_b32 v{yr+r}, 0x3f803f80')
    sent4(a, SN)
    for ks in range(14):
        for tt in range(4): a(mf(vr(cs+4*tt,4), W(tt,ks), vr(yr,4), 0 if ks == 0 else None))
    LF = a.label('Lpf'); LFD = a.label('Lpfd'); DONE = a.label('Ldone')
    a(f'''s_lshl_b32 s30, s30, 10
    s_mul_i32 s31, s{S_W}, 7168
    s_mov_b32 s33, 0xbfb8aa3b
    s_mov_b32 s34, 0x3b124925
    s_mov_b32 s35, 0x3727c5ac
    s_mov_b32 s{S_K}, 0
    {LF}:''')
    merged_task(a, D_B1, LFD)
    a(f'''s_add_u32 s{S_K}, s{S_K}, 1
    s_mul_i32 s24, s{S_LS}, {HF_SEG}
    s_add_u32 s24, s24, s30
    s_add_u32 s24, s24, {HF}
    s_add_u32 s25, s24, {56*1024}
    buffer_store_dwordx4 {vr(SN,4)}, v1, {SRD}, s24 offen sc1
    buffer_store_dwordx4 {vr(SN,4)}, v1, {SRD}, s25 offen sc1
    s_cmp_lt_u32 s{S_K}, 4
    s_cbranch_scc1 {LF}
    {LFD}:
    s_mov_b32 s{S_K}, 0''')
    st = Stamps(a, stamps)
    G = GS; G2 = GS+8
    LOOP = a.label('Lb1'); LD = a.label('Lld'); SP = a.label('Lsp'); SOK = a.label('Lsok'); REDO = a.label('Lredo'); HV = a.label('Lhv'); GO = a.label('Lgo')
    pipe_setup(a, 10, 11)
    def nxt_calc():
        return task_calc(S_NL, S_NS, S_NLS) + [f's_lshl_b32 s27, s{S_NL}, 6', f's_add_u32 s27, s27, s{S_NLS}', 's_lshl_b32 s27, s27, 13', f's_add_u32 s27, s27, {ST}',
                f's_mul_i32 s28, s{S_NLS}, {XN_SEG}', 's_add_u32 s28, s28, s31', f's_add_u32 s28, s28, {YN}', f's_xor_b32 s29, s{S_BUF}, 32768', 's_add_u32 s29, s29, s31',
                f's_cmp_lt_u32 s{S_NS}, 64\ns_cselect_b32 s58, 0x10000000, 0']
    def sl(G, s, srd): return [f'buffer_load_dwordx4 {vr(G,4)}, v13, {srd}, s{s} offen sc1', f'buffer_load_dwordx4 {vr(G+4,4)}, v6, {srd}, s{s} offen sc1']
    all_done(a, EXIT)
    a(f's_mov_b32 s{S_BUF}, 32768')
    for x in nxt_calc(): a(x)
    a(f'{LOOP}:')
    st.mark()
    a(f"""s_mov_b32 s{S_LS}, s{S_NLS}
    s_mov_b32 s26, s27
    s_xor_b32 s{S_BUF}, s{S_BUF}, 32768
    s_mul_i32 s24, s{S_LS}, {HF_SEG}
    s_add_u32 s24, s24, s30
    s_add_u32 s24, s24, {HF}
    s_add_u32 s25, s24, {56*1024}
    v_add_u32 v5, s{S_BUF}, v1
    s_add_u32 s{S_K}, s{S_K}, 1
    s_cmp_eq_u32 s{S_HAVE}, 1
    s_cbranch_scc1 {HV}
    {LD}:
    s_mul_i32 s22, s{S_LS}, {XN_SEG}
    s_add_u32 s22, s22, s31
    s_add_u32 s22, s22, {YN}
    s_add_u32 s23, s31, s{S_BUF}
    {SP}:""")
    for x in sl(G2, 26, SRD): a(x)
    if SPEC & 1:
        dma_frags(a, 7, 22, 23)
        a(f"""s_sub_u32 s{S_TO}, s{S_TO}, 1
        s_cbranch_scc1 {EXIT}
        s_waitcnt vmcnt(7)
        v_max_u32 v2, v{G2}, v{G2+4}
        v_cmp_eq_u32 vcc, -1, v2
        s_cbranch_vccnz {LD}""")
    else:
        a(f"""s_sub_u32 s{S_TO}, s{S_TO}, 1
        s_cbranch_scc1 {EXIT}
        s_waitcnt vmcnt(0)
        v_max_u32 v2, v{G2}, v{G2+4}
        v_cmp_eq_u32 vcc, -1, v2
        s_cbranch_vccz {SOK}
        s_sleep 1
        s_branch {SP}
        {SOK}:""")
        dma_frags(a, 7, 22, 23)
    a(f's_mov_b32 s{S_HAVE}, 0\n{HV}:')
    a(f'v_pk_add_f32 {vr(G,2)}, {vr(G2,2)}, {vr(G2+4,2)}\nv_pk_add_f32 {vr(G+2,2)}, {vr(G2+2,2)}, {vr(G2+6,2)}')
    sf = Asm(); stats_finish(sf, G, MS+4, ())
    for x in sf.lines:
        if 's_mov' not in x: a(x.replace('s20', 's34').replace('s21', 's35'))
    for rt in range(2):
        P = PK+6*rt
        a(f"""v_sub_f32 v{P}, 0, v{G+2*rt}
        v_mul_f32 v{P+2}, s33, v{G+2*rt+1}
        v_mov_b32 v{P+4}, v{MS+4+rt}""")
        for k in range(8): a(f'v_pk_mul_f32 {vr(ACC(rt,0)+2*k,2)}, {vr(P,2)}, {vr(cs+2*k,2)} op_sel_hi:[0,1]')
    a(f"""s_cmp_eq_u32 s{S_HAVE}, 1
    s_cbranch_scc1 {GO}
    s_waitcnt vmcnt(0)
    {GO}:
    s_waitcnt vmcnt(3)
    s_barrier""")
    st.mark()
    def rd(i): return f'ds_read_b128 {vr(yr+4*(i%6),4)}, v5 offset:{i*1024}'
    for i in range(4): a(rd(i))
    def epi(rt, pk):
        P = PK+6*rt; A = ACC(rt, 0); out = []
        if pk: out += [f'v_pk_mul_f32 {vr(A+2*k,2)}, {vr(P+2,2)}, {vr(A+2*k,2)} op_sel_hi:[0,1]' for k in range(4)]
        else: out += [f'v_mul_f32 v{A+k}, v{P+2}, v{A+k}' for k in range(8)]
        out += [f'v_exp_f32 v{A+k}, v{A+k}' for k in range(8)]
        if pk: out += [f'v_pk_fma_f32 {vr(A+2*k,2)}, {vr(A+2*k,2)}, {vr(P+4,2)}, {vr(P+4,2)} op_sel_hi:[1,0,0]' for k in range(4)]
        else: out += [f'v_fma_f32 v{A+k}, v{A+k}, v{P+4}, v{P+4}' for k in range(8)]
        out += [f'v_rcp_f32 v{A+k}, v{A+k}' for k in range(8)]
        if pk: out += [f'v_pk_mul_f32 {vr(A+2*k,2)}, {vr(A+2*k,2)}, {vr(A+8+2*k,2)}' for k in range(4)]
        else: out += [f'v_mul_f32 v{A+k}, v{A+k}, v{A+8+k}' for k in range(8)]
        out += [f'v_cvt_pk_bf16_f32 v{o+4*rt+d}, v{A+2*d}, v{A+2*d+1}' for d in range(4)]
        out.append(f'v_min_u32 v{o+4*rt}, 0xfffffffe, v{o+4*rt}')
        return out
    main = []; lanes = []
    for i in range(28):
        rt, ks = divmod(i, 14); b = 4*i
        main += [mf(vr(ACC(rt,tt),4), W(tt,ks), vr(yr+4*(i%6),4)) for tt in range(4)]
        if i % 2 == 0: lanes.append((b-1, 1, [f's_waitcnt lgkmcnt({max(0, min(2, 26-i))})']))
        if i+4 < 28: lanes.append((b, 1, [rd(i+4)]))
        if i & 1: lanes.append((b-1, 1, [chk2(m, yr+4*((i-1)%6), yr+4*(i%6), i == 1)]))
    free = [p for p in range(1, 62) if p % 4 in (1, 2)]
    nc = nxt_calc(); nc = nc[:9] + nc[-1:] + sl(G2, 27, SRD2) + nc[9:-1]
    nc += [f's_and_b32 s36, s{S_LS}, 63', f's_add_u32 s37, s24, {4*HF_SEG}', f's_cmp_lt_u32 s36, 60\ns_cselect_b32 s37, s37, {DUMMY}',
           f'buffer_store_dwordx4 {vr(SN,4)}, v1, {SRD}, s37 offen sc1', f's_add_u32 s37, s37, {56*1024}', f'buffer_store_dwordx4 {vr(SN,4)}, v1, {SRD}, s37 offen sc1']
    assert len(nc) <= len(free)-5
    for p, x in zip(free, nc): lanes.append((p, 1, [x]))
    lanes.append((free[-5], 1, [f's_waitcnt vmcnt(2)\nv_max_u32 v2, v{G2}, v{G2+4}']))
    lanes.append((free[-4], 1, ['v_cmp_eq_u32 vcc, -1, v2']))
    lanes.append((free[-2], 1, [f's_cmp_eq_u64 vcc, 0\ns_cselect_b32 s58, s58, 0\ns_cmp_lg_u32 s58, 0\ns_cselect_b32 s{S_HAVE}, 1, 0']))
    dl = dma_list(7, 28, 29, SRD2)
    for k in range(7): lanes.append((63+7*k, 1, ['\n'.join(dl[k][0] + [dl[k][1]])]))
    e0 = epi(0, False)
    pos = [p for p in range(62, 112) if (p % 4 != 0 or p >= 96) and (p-63) % 7 != 0]
    for p, x in zip(pos, e0): lanes.append((p, 1, [x]))
    sched(a, main, lanes)
    for x in e0[len(pos):]: a(x)
    st.mark()
    redo_if_bad(a, m, REDO, EXIT)
    a(f'buffer_store_dwordx4 {vr(o,4)}, v1, {SRD}, s24 offen sc1\ns_nop 3')
    for x in epi(1, True): a(x)
    a(f'buffer_store_dwordx4 {vr(o+4,4)}, v1, {SRD}, s25 offen sc1')
    hint(a, F_H, S_P)
    st.mark()
    st.flush(2, 20, S_LS)
    a(f's_cmp_lt_u32 s{S_NS}, 64\ns_cbranch_scc1 {LOOP}\n{DONE}:')
    if stamps: stamp_dump(a, EXIT)
    else: a(f's_branch {EXIT}')
    a(f'{REDO}:\ns_sub_u32 s{S_TO}, s{S_TO}, 64\ns_cbranch_scc1 {EXIT}\ns_waitcnt vmcnt(0)\ns_barrier\ns_branch {LD}')

S_T = 30
def team_setup(a):
    a(f'''s_lshl_b32 s{S_T}, s{S_P}, 2
    s_add_u32 s{S_T}, s{S_T}, s{S_W}
    v_and_b32 v2, 15, v7
    v_lshrrev_b32 v3, 4, v7
    v_mul_u32_u24 v11, 896, v2
    s_lshl_b32 s20, s{S_T}, 5
    v_add_u32 v11, s20, v11
    v_lshl_add_u32 v10, v3, 3, v11
    v_lshlrev_b32 v12, 4, v2
    v_mul_u32_u24 v13, {7*256}, v3
    v_add_u32 v13, v13, v12
    v_lshl_add_u32 v12, v3, 2, v12
    s_lshl_b32 s20, s{S_T}, 8
    v_add_u32 v12, s20, v12
    v_lshrrev_b32 v4, 1, v3
    v_lshl_add_u32 v11, v4, 4, v11
    v_lshlrev_b32 v6, 8, v4
    v_lshl_add_u32 v6, v2, 4, v6
    s_lshl_b32 s20, s{S_T}, 9
    v_add_u32 v6, s20, v6
    v_and_b32 v4, 1, v3
    v_mul_u32_u24 v9, 14336, v4
    v_add_u32 v5, v6, v9
    v_add_u32 v11, v11, v9
    v_lshl_add_u32 v6, v4, 3, v6''')

def cu_stats_setup(a, lds):
    a(f"""v_lshlrev_b32 v169, 2, v7
    v_add_u32 v169, {lds}, v169
    s_lshl_b32 s20, s{S_W}, 8
    v_add_u32 v168, s20, v169
    v_lshlrev_b32 v13, 4, v2
    v_lshl_add_u32 v12, v3, 2, v13
    s_lshl_b32 s20, s{S_P}, 8
    v_add_u32 v12, s20, v12
    v_lshl_add_u32 v13, v3, 9, v13
    v_add_u32 v170, 256, v13
    v_mov_b32 v171, {OOB}
    v_cmp_gt_u32 vcc, 64, v0
    v_cmp_gt_u32 s[20:21], 3, v3
    s_nop 1
    v_cndmask_b32 v12, v171, v12, vcc
    v_cndmask_b32 v170, v171, v170, s[20:21]""")

def cu_stats(a, q):
    a(f"""ds_write_b32 v168, v{q}
    s_waitcnt lgkmcnt(0)
    s_barrier
    ds_read2st64_b32 {vr(q,2)}, v169 offset0:0 offset1:1
    ds_read2st64_b32 {vr(q+2,2)}, v169 offset0:2 offset1:3
    s_waitcnt lgkmcnt(0)
    v_add_f32 v{q}, v{q}, v{q+1}
    v_add_f32 v{q+2}, v{q+2}, v{q+3}
    v_add_f32 v{q}, v{q}, v{q+2}
    v_min_u32 v{q}, 0xfffffffe, v{q}""")

def add_residual(a, A, RS, XP):
    for rt in range(2):
        for d in range(2):
            x = A+4*rt+2*d; r = RS+2*rt+d
            a(f'''v_lshlrev_b32 v2, 16, v{r}
            v_and_b32 v3, 0xffff0000, v{r}
            v_add_f32 v{x}, v{x}, v2
            v_add_f32 v{x+1}, v{x+1}, v3
            v_cvt_pk_bf16_f32 v{XP+2*rt+d}, v{x}, v{x+1}
            v_lshlrev_b32 v{x}, 16, v{XP+2*rt+d}
            v_and_b32 v{x+1}, 0xffff0000, v{XP+2*rt+d}''')

def pair_swap(a, XP):
    a(f's_nop 1\nv_permlane16_swap_b32 v{XP}, v{XP+2}\nv_permlane16_swap_b32 v{XP+1}, v{XP+3}')

def res_valid(a, RS, s0, EXIT):
    L = a.label('Lrv'); OK = a.label('Lrok')
    a(f'''{L}:
    v_max3_u32 v2, v{RS}, v{RS+1}, v{RS+2}
    v_max_u32 v2, v2, v{RS+3}
    v_cmp_eq_u32 vcc, -1, v2
    s_cbranch_vccz {OK}
    buffer_load_dwordx2 {vr(RS,2)}, v6, {SRD}, s{s0} offen sc1
    buffer_load_dwordx2 {vr(RS+2,2)}, v6, {SRD}, s{s0+1} offen sc1
    s_sub_u32 s{S_TO}, s{S_TO}, 1
    s_cbranch_scc1 {EXIT}
    s_waitcnt vmcnt(0)
    s_branch {L}
    {OK}:''')

def b2_role(a, EXIT, stamps=0, mode_fn=None):
    a('; ================= B2 role =================')
    DONE = a.label('Ldone')
    W = lambda ks: ar(4*ks, 4)
    hr, A, RSv, XP, AC, G, YP, m = 40, 16, 24, 28, 64, 80, 32, 36
    common_setup(a)
    sched_setup(a, 'B2')
    if HOLD: hold_back(a, EXIT, skip='s_cmp_eq_u32 0, 1')
    team_setup(a)
    cu_stats_setup(a, 122880)
    a(f'''s_load_dwordx2 s[36:37], s[0:1], 80
    s_load_dwordx2 s[48:49], s[0:1], 88
    v_lshrrev_b32 v4, 1, v7
    v_mul_u32_u24 v4, 896, v4
    v_and_b32 v8, 1, v7
    v_lshl_add_u32 v4, v8, 4, v4
    v_min_u32 v8, 13, v2
    v_lshlrev_b32 v8, 7, v8
    s_mul_i32 s31, s{S_W}, 28672
    v_lshlrev_b32 v9, 8, v3
    v_and_b32 v2, 15, v7
    v_lshl_add_u32 v9, v2, 3, v9
    v_add_u32 v9, s31, v9
    s_mov_b32 s38, {1792*896}
    s_mov_b32 s39, 0x20000
    s_mov_b32 s50, {2048*896}
    s_mov_b32 s51, 0x20000
    s_lshl_b32 s22, s{S_T}, 5
    s_waitcnt lgkmcnt(0)''')
    for rr in range(2):
        a('s_mov_b32 s23, s31')
        for k in range(28):
            a(f'''s_mov_b32 m0, s23
            s_add_u32 s23, s23, 1024
            buffer_load_dwordx4 v4, s[36:39], s22 offen lds
            s_add_u32 s22, s22, {32*896}''')
        for k in range(28):
            if k % 4 == 0: a(f's_waitcnt vmcnt({24-k}) lgkmcnt(0)')
            for jh in range(2): a(f'ds_read_b64_tr_b16 {ar(4*(28*rr+k)+2*jh,2)}, v9 offset:{k*1024+jh*128}')
        a('s_waitcnt lgkmcnt(0)')
    all_done(a, EXIT)
    mode_fn(16, 17, 32)
    sent4(a, XP)
    LF = a.label('Lpf'); LFD = a.label('Lpfd')
    a(f's_mov_b32 s{S_K}, 0\n{LF}:')
    merged_task(a, D_B2, LFD)
    a(f'''s_add_u32 s{S_K}, s{S_K}, 1
    s_cmp_eq_u32 s{S_L}, 0
    s_cbranch_scc0 {LF}
    s_mul_i32 s23, s{S_S}, 28672
    s_add_u32 s25, s23, {XN + 64*XN_SEG}
    s_add_u32 s26, s23, {X2}
    buffer_store_dwordx4 {vr(XP,4)}, v5, {SRD}, s25 offen sc1
    buffer_store_dwordx4 {vr(XP,4)}, v5, {SRD}, s26 offen sc1
    s_waitcnt vmcnt(32)
    s_branch {LF}
    {LFD}:
    v_add_u32 v9, 57344, v1
    s_and_b32 s31, s{S_W}, 1
    s_mul_i32 s31, s31, 4096
    s_lshr_b32 s25, s{S_W}, 1
    s_mul_i32 s25, s25, {56*1024}
    s_add_u32 s31, s31, s25
    s_mov_b32 s{S_K}, 0''')
    st = Stamps(a, stamps)
    LOOP = a.label('Lb2'); LD = a.label('Lld'); REDO = a.label('Lredo')
    def nxt():
        NE = a.label('Lne')
        merged_task(a, D_B2, NE, S_NL, S_NS, S_NLS)
        flag_off(a, 29, F_H, S_NLS)
        a(f'buffer_load_dword v4, v8, {SRD}, s29 offen sc1\n{NE}:')
    nxt()
    a(f'''s_waitcnt vmcnt(0)
    {LOOP}:
    s_mov_b32 s{S_L}, s{S_NL}
    s_mov_b32 s{S_S}, s{S_NS}
    s_mov_b32 s{S_LS}, s{S_NLS}
    v_cmp_eq_u32 vcc, 0, v4
    s_cbranch_vccz {LD}''')
    def hsrc():
        a(f'''s_mul_i32 s22, s{S_LS}, {HF_SEG}
        s_add_u32 s22, s22, {HF}
        s_add_u32 s22, s22, s31
        s_mov_b32 s23, s31''')
    def chunk(c):
        out = [f's_mov_b32 m0, s23', f's_add_u32 s23, s23, 8192']
        out += [f'buffer_load_dwordx4 v1, {SRD}, s22 offen offset:{i*1024} sc1 lds' for i in range(4)]
        out += [f's_add_u32 s22, s22, 8192']
        return out
    if SPEC & 8:
        a('s_barrier')
        wait_spec(a, 8, 29, 4, EXIT, hsrc, lambda: [a(x) for x in chunk(0)+chunk(1)], 8)
        a(f's_branch {LD}_j')
    else: wait_flags(a, 8, 29, 4, EXIT)
    a(f'{LD}:\ns_barrier')
    st.mark()
    hsrc()
    for x in chunk(0)+chunk(1): a(x)
    a(f'{LD}_j:')
    for x in chunk(2): a(x)
    a(f'''s_mul_i32 s26, s{S_LS}, 28672
    s_add_u32 s26, s26, {YN}
    s_add_u32 s27, s26, 14336
    s_lshl_b32 s24, s{S_S}, 13
    s_add_u32 s24, s24, {ST + 64*ST_SEG}''')
    extra = [f'buffer_load_dwordx2 {vr(RSv,2)}, v6, {SRD}, s26 offen sc1', f'buffer_load_dwordx2 {vr(RSv+2,2)}, v6, {SRD}, s27 offen sc1',
             f'buffer_load_dwordx4 {vr(G,4)}, v13, {SRD}, s24 offen sc1', f'buffer_load_dwordx4 {vr(G+4,4)}, v170, {SRD}, s24 offen sc1']
    def rd(ks): return [f'ds_read_b128 {vr(hr+8*(ks%3),4)}, v1 offset:{ks*1024}', f'ds_read_b128 {vr(hr+8*(ks%3)+4,4)}, v9 offset:{ks*1024}']
    for c in range(7):
        younger = 4*(min(c+2, 6)-c) + (4 if c >= 5 else 0)
        a(f's_waitcnt vmcnt({younger})\ns_barrier')
        if c == 0: st.mark()
        k0 = 8*c
        ex = chunk(c+3) if c+3 < 7 else (extra if c == 4 else [])
        for ins in rd(k0) + rd(k0+1): a(ins)
        for ks in range(k0, k0+8):
            a(f's_waitcnt lgkmcnt({2 if ks < k0+7 else 0})')
            for rt in range(2):
                a(mf(vr(AC+8*rt+4*(ks&1),4), W(ks), vr(hr+8*(ks%3)+4*rt,4), 0 if ks < 2 else None))
                if ks+2 < k0+8: a(rd(ks+2)[rt])
                if rt == 1: a(chk2(m, hr+8*(ks%3), hr+8*(ks%3)+4, ks == 0))
            if ex: a(ex.pop(0))
    st.mark()
    redo_if_bad(a, m, REDO, EXIT)
    a(f's_add_u32 s{S_K}, s{S_K}, 1\ns_waitcnt vmcnt(0)')
    res_valid(a, RSv, 26, EXIT)
    for rt in range(2):
        for r in range(4): a(f'v_add_f32 v{A+4*rt+r}, v{AC+8*rt+r}, v{AC+8*rt+4+r}')
    add_residual(a, A, RSv, XP)
    L1 = a.label('Lb2l1'); LE = a.label('Lb2e'); LS = a.label('Lsl'); L = a.label('Lst')
    a(f'''s_mul_i32 s23, s{S_S}, 28672
    s_cmp_eq_u32 s{S_L}, 0
    s_cbranch_scc0 {L1}''')
    q = G+28
    stats_partial(a, A, q)
    cu_stats(a, q)
    a(f'''s_cmp_eq_u32 s{S_FAST}, 1
    s_cbranch_scc0 {LS}
    buffer_store_dword v{q}, v12, {SRD}, s24 offen
    s_branch {L}
    {LS}:
    buffer_store_dword v{q}, v12, {SRD}, s24 offen sc1
    {L}:
    buffer_load_dwordx4 {vr(G,4)}, v13, {SRD}, s24 offen sc1
    buffer_load_dwordx4 {vr(G+4,4)}, v170, {SRD}, s24 offen sc1
    s_sub_u32 s{S_TO}, s{S_TO}, 1
    s_cbranch_scc1 {EXIT}
    s_waitcnt vmcnt(0)
    v_max_u32 v2, v{G}, v{G+4}
    v_cmp_eq_u32 vcc, -1, v2
    s_cbranch_vccnz {L}''')
    nxt()
    stats_finish(a, G, None, ((0, 1),))
    for rt in range(2):
        x = A+4*rt
        for r in range(4): a(f'v_sub_f32 v{x+r}, v{x+r}, v{G+2*rt}')
        for r in range(4): a(f'v_mul_f32 v{x+r}, v{x+r}, v{G+2*rt+1}')
        a(f'v_cvt_pk_bf16_f32 v{YP+2*rt}, v{x}, v{x+1}\nv_cvt_pk_bf16_f32 v{YP+2*rt+1}, v{x+2}, v{x+3}')
    guard(a, XP, 4); guard(a, YP, 4)
    pair_swap(a, YP)
    a(f's_add_u32 s25, s23, {XN + 64*XN_SEG}\nbuffer_store_dwordx4 {vr(YP,4)}, v5, {SRD}, s25 offen sc1')
    hint(a, F_XN, S_P, add=64)
    pair_swap(a, XP)
    a(f's_add_u32 s26, s23, {X2}\nbuffer_store_dwordx4 {vr(XP,4)}, v5, {SRD}, s26 offen sc1')
    a(f's_waitcnt vmcnt(3)\ns_branch {LE}\n{L1}:')
    nxt()
    pair_swap(a, XP)
    a(f'buffer_store_dwordx4 {vr(XP,4)}, v11, s[48:51], s23 offen\ns_waitcnt vmcnt(1)\n{LE}:')
    st.mark()
    st.flush(2, 20, S_LS)
    a(f's_cmp_lt_u32 s{S_NS}, 64\ns_cbranch_scc1 {LOOP}\n{DONE}:')
    if stamps: stamp_dump(a, EXIT)
    else: a(f's_branch {EXIT}')
    a(f'{REDO}:\ns_sub_u32 s{S_TO}, s{S_TO}, 64\ns_cbranch_scc1 {EXIT}\ns_branch {LD}')

def pv_role(a, EXIT, stamps=0):
    a('; ================= PV role =================')
    DONE = a.label('Ldone')
    vx, vm, pr, A, RS, XP, AC, q, m = 32, 96, 112, 16, 24, 28, 144, 160, 166
    WD = a.label('Lpvd')
    a(f'''s_branch {WD}
    {chain.PV_ENTRY}:
    s_cmp_ge_u32 s{S_P}, 7
    s_cselect_b32 s{S_U}, 4, 3
    s_cselect_b32 s20, 7, 0
    s_sub_u32 s{S_P}, s{S_P}, s20
    {WD}:''')
    common_setup(a)
    sched_setup(a, 'PV')
    team_setup(a)
    cu_stats_setup(a, 49152)
    a(f'''s_load_dwordx2 s[36:37], s[0:1], 0
    v_lshlrev_b32 v8, 7, v2
    v_mov_b32 v13, v8
    v_and_b32 v4, 1, v7
    s_lshl_b32 s20, s{S_P}, 1
    v_add_u32 v4, s20, v4
    v_lshlrev_b32 v4, 7, v4
    s_mov_b32 s38, {2048*896}
    s_mov_b32 s39, 0x20000
    s_mov_b32 s{S_K}, 0
    s_waitcnt lgkmcnt(0)''')
    sent4(a, XP)
    LF = a.label('Lpf'); LFD = a.label('Lpfd')
    a(f'{LF}:')
    merged_task(a, D_PV, LFD)
    a(f'''s_add_u32 s{S_K}, s{S_K}, 1
    s_mul_i32 s25, s{S_LS}, 28672
    s_add_u32 s25, s25, {YN}
    buffer_store_dwordx4 {vr(XP,4)}, v5, {SRD}, s25 offen sc1
    s_waitcnt vmcnt(32)
    s_branch {LF}
    {LFD}:
    s_mov_b32 s{S_K}, 0''')
    st = Stamps(a, stamps)
    LOOP = a.label('Lpv'); L1 = a.label('Lpv1'); LJ = a.label('Lpvj'); REDO = a.label('Lredo'); RUN = a.label('Lrun'); NR_ = a.label('Lnr')
    def nxt():
        NE = a.label('Lne')
        merged_task(a, D_PV, NE, S_NL, S_NS, S_NLS)
        flag_off(a, 26, F_VX, S_NLS); flag_off(a, 27, F_P, S_NLS); flag_off(a, 28, F_VM, S_NLS)
        a(f'''buffer_load_dword v9, v8, {SRD}, s26 offen sc1
        buffer_load_dword v164, v13, {SRD}, s27 offen sc1
        buffer_load_dword v165, v4, {SRD}, s28 offen sc1
        {NE}:''')
    all_done(a, EXIT)
    nxt()
    a(f'''s_waitcnt vmcnt(0)
    {LOOP}:
    s_mov_b32 s{S_L}, s{S_NL}
    s_mov_b32 s{S_S}, s{S_NS}
    s_mov_b32 s{S_LS}, s{S_NLS}''')
    def need(v, voff, soff):
        LOK = a.label('Lok')
        a(f'v_cmp_eq_u32 vcc, 0, v{v}\ns_cbranch_vccz {LOK}')
        wait_flags(a, voff, soff, v, EXIT)
        a(f'{LOK}:')
    a('s_waitcnt vmcnt(2)')
    need(9, 8, 26)
    st.mark()
    def vxl():
        LA = a.label('La'); LB = a.label('Lb')
        a(f'''s_mul_i32 s22, s{S_LS}, {VX_SEG}
        s_lshl_b32 s23, s{S_T}, 10
        s_add_u32 s22, s22, s23
        s_add_u32 s22, s22, {VX}''')
        for h in range(16):
            a(f'buffer_load_dwordx4 {vr(vx+4*h,4)}, v1, {SRD}, s22 offen sc1')
            if h < 15: a('s_add_u32 s22, s22, 28672')
        a(f'''s_mul_i32 s32, s{S_S}, 28672
        s_cmp_eq_u32 s{S_L}, 0
        s_cbranch_scc0 {LA}
        s_add_u32 s33, s32, 14336
        buffer_load_dwordx2 {vr(RS,2)}, v10, s[36:39], s32 offen
        buffer_load_dwordx2 {vr(RS+2,2)}, v10, s[36:39], s33 offen
        s_branch {LB}
        {LA}:
        s_add_u32 s32, s32, {X2}
        s_add_u32 s33, s32, 14336
        buffer_load_dwordx2 {vr(RS,2)}, v6, {SRD}, s32 offen sc1
        buffer_load_dwordx2 {vr(RS+2,2)}, v6, {SRD}, s33 offen sc1
        {LB}:''')
    def pdma():
        a(f'''s_mul_i32 s22, s{S_LS}, {PF_SEG}
        s_mul_i32 s23, s{S_W}, 10240
        s_add_u32 s22, s22, s23
        s_add_u32 s22, s22, {PF}''')
        dma_frags(a, 10, 22, 23)
    def vml():
        a(f'''s_mul_i32 s22, s{S_LS}, {VM_SEG}
        s_lshl_b32 s23, s{S_T}, 10
        s_add_u32 s22, s22, s23
        s_add_u32 s22, s22, {VM}''')
        for hq in range(4):
            a(f'buffer_load_dwordx4 {vr(vm+4*hq,4)}, v1, {SRD}, s22 offen sc1')
            if hq < 3: a('s_add_u32 s22, s22, 28672')
    JIT = a.label('Ljit')
    a(f'''s_mul_i32 s25, s{S_LS}, 28672
    s_add_u32 s25, s25, {YN}
    s_lshl_b32 s24, s{S_L}, 7
    s_add_u32 s24, s24, s{S_S}
    s_lshl_b32 s24, s24, 13
    s_add_u32 s24, s24, {ST}
    v_min_u32 v2, v164, v165
    v_cmp_eq_u32 vcc, 0, v2
    s_cbranch_vccnz {JIT}''')
    pdma(); vxl(); vml()
    st.mark()
    a(f's_mov_b32 s29, 1\ns_waitcnt vmcnt(22)\ns_branch {RUN}\n{JIT}:')
    st.n -= 1
    vxl()
    if SPEC & 16:
        wait_spec(a, 13, 27, 164, EXIT, lambda: None, pdma, 10)
        st.mark()
    else:
        need(164, 13, 27)
        st.mark()
        pdma()
    a(f'''buffer_load_dword v165, v4, {SRD}, s28 offen sc1
    s_mov_b32 s29, 0
    s_waitcnt vmcnt(0)
    v_cmp_eq_u32 vcc, 0, v165
    s_cbranch_vccnz {RUN}''')
    vml()
    a(f'''s_mov_b32 s29, 1
    {RUN}:
    s_barrier''')
    st.mark()
    NR = 8
    def rd(i): return f'ds_read_b128 {vr(pr+4*(i%NR),4)}, v1 offset:{i*1024}'
    for i in range(6): a(rd(i))
    for i in range(40):
        if i == 32:
            VOK = a.label('Lvok')
            a(f's_cmp_eq_u32 s29, 1\ns_cbranch_scc1 {VOK}')
            need(165, 4, 28)
            vml()
            a(f's_mov_b32 s29, 1\n{VOK}:\ns_waitcnt vmcnt(0)')
        if i % 2 == 0: a(f's_waitcnt lgkmcnt({max(0, min(4, 38-i))})' + (f' vmcnt({21-i//2})' if i < 32 else ''))
        rt = i & 1; par = (i >> 1) & 1
        Aop = vx+4*(i >> 1) if i < 32 else vm+4*((i-32) >> 1)
        a(mf(vr(AC+8*rt+4*par,4), vr(Aop,4), vr(pr+4*(i%NR),4), 0 if i < 4 else None))
        a(chk2(m, pr+4*(i%NR), pr+4*(i%NR)+2, i == 0))
        if i+6 < 40: a(rd(i+6))
    st.mark()
    redo_if_bad(a, m, REDO, EXIT)
    a(f's_cmp_eq_u32 s{S_L}, 0\ns_cbranch_scc1 {NR_}')
    res_valid(a, RS, 32, EXIT)
    a(f'{NR_}:\ns_add_u32 s{S_K}, s{S_K}, 1')
    nxt()
    for rt in range(2):
        for r in range(4): a(f'v_add_f32 v{A+4*rt+r}, v{AC+8*rt+r}, v{AC+8*rt+4+r}')
    st.mark(2)
    add_residual(a, A, RS, XP)
    guard(a, XP, 4)
    pair_swap(a, XP)
    a(f'buffer_store_dwordx4 {vr(XP,4)}, v5, {SRD}, s25 offen sc1')
    st.mark(2)
    stats_partial(a, A, q)
    cu_stats(a, q)
    a(f'''buffer_store_dword v{q}, v12, {SRD}, s24 offen sc1''')
    st.mark()
    st.flush(2, 20, S_LS)
    a(f's_cmp_lt_u32 s{S_NS}, 64\ns_cbranch_scc1 {LOOP}\n{DONE}:')
    if stamps: stamp_dump(a, EXIT)
    else: a(f's_branch {EXIT}')
    a(f'{REDO}:\ns_sub_u32 s{S_TO}, s{S_TO}, 64\ns_cbranch_scc1 {EXIT}\ns_barrier')
    pdma()
    a(f's_waitcnt vmcnt(0)\ns_branch {RUN}')
```

```python
from asmlib import *
from layout import *
from workers import gather_pairs, mf
SRD = 's[8:11]'
SCALE = 0x3db8aa3b
WST = 'sc1'
NT = ''
TOUCH = 11

def prep_body(a, END, hook, stamps=0):
    n_st = [0]
    def mark():
        if stamps:
            a(f's_memrealtime s[{60+2*n_st[0]}:{61+2*n_st[0]}]'); n_st[0] += 1
    def dump():
        if stamps == 9: a('s_memrealtime s[74:75]\ns_waitcnt vmcnt(0)\ns_memrealtime s[76:77]\ns_waitcnt lgkmcnt(0)')
        if not stamps or stamps == 9: return
        a(f'''s_waitcnt vmcnt(0)
        s_memrealtime s[76:77]
        s_waitcnt lgkmcnt(0)
        s_lshl_b32 s20, s2, 2
        s_add_u32 s20, s20, s12
        s_lshl_b32 s20, s20, 6
        s_add_u32 s20, s20, {STAMP+0x800000}
        v_mov_b32 v2, 0''')
        for k in range(9):
            a(f'v_mov_b32 v3, s{60+2*k}\nbuffer_store_dword v3, v2, s[8:11], s20 offen offset:{4*k}')
    EXIT = END
    mark()
    a(f'''v_and_b32 v7, 63, v0
    v_lshlrev_b32 v1, 4, v7
    v_lshlrev_b32 v2, 4, v0
    v_mov_b32 v16, -1
    v_mov_b32 v17, -1
    v_mov_b32 v18, -1
    v_mov_b32 v19, -1
    v_mov_b32 v20, 0
    v_mov_b32 v21, 0
    v_mov_b32 v22, 0
    v_mov_b32 v23, 0''')
    if TOUCH & 2:
        a(f'''s_cmp_lt_u32 s12, 2
        s_cselect_b32 s24, s44, s48
        s_cselect_b32 s25, s45, s49
        s_cselect_b32 s28, s46, s50
        s_cselect_b32 s29, s47, s51
        s_bitcmp1_b32 s12, 0
        s_cselect_b32 s24, s28, s24
        s_cselect_b32 s25, s29, s25
        s_mov_b32 s26, {448*8192}
        s_mov_b32 s27, 0x20000
        s_mul_i32 s20, s2, 14336
        v_lshlrev_b32 v8, 7, v7
        v_min_u32 v9, 47, v7
        v_lshlrev_b32 v9, 7, v9
        s_add_u32 s21, s20, 8192
        buffer_load_dword v251, v8, s[24:27], s20 offen
        buffer_load_dword v251, v9, s[24:27], s21 offen''')
        if TOUCH & 4: a('s_waitcnt vmcnt(0)\ns_barrier')
    LN = a.label('Lln')
    def touch_b():
        if not TOUCH & 8: return
        a(f'''s_cmp_eq_u32 s12, 1
        s_cselect_b64 s[20:21], s[54:55], s[52:53]
        s_cmp_ge_u32 s12, 2
        s_cselect_b64 s[20:21], s[56:57], s[20:21]
        s_mul_i32 s22, s2, 6272
        v_min_u32 v45, 48, v7
        v_lshlrev_b32 v45, 7, v45
        v_add_u32 v45, s22, v45
        global_load_dword v46, v45, s[20:21]''')
    def fills():
        nb = (SENT1-SENT0)//8192
        skip = [0, 4, (MEMG-SENT0)//8192, (MEMG-SENT0)//8192+64]
        OOBS = 0x70000000
        for rnd in range(2):
            a(f's_lshl_b32 s20, s2, 13\ns_add_u32 s20, s20, {SENT0 + 256*8192*rnd}')
            if rnd == 0:
                for b in skip: a(f's_cmp_eq_u32 s2, {b}\ns_cselect_b32 s20, {OOBS}, s20')
            else:
                a(f's_cmp_ge_u32 s2, {nb-256}\ns_cselect_b32 s20, {OOBS}, s20')
            a(f'''s_add_u32 s21, s20, 4096
            buffer_store_dwordx4 v[16:19], v2, {SRD}, s20 offen {WST}
            buffer_store_dwordx4 v[16:19], v2, {SRD}, s21 offen {WST}''')
        a(f's_mul_i32 s20, s2, 20480\ns_add_u32 s20, s20, {PF}')
        for k in range(5): a(f'buffer_store_dwordx4 v[16:19], v2, {SRD}, s20 offen {WST}\ns_add_u32 s20, s20, 4096')
        nz = (ZERO1-ZERO0)//4096
        assert (ZERO1-ZERO0) % 4096 == 0 and 256 <= nz <= 512
        for rnd in range(2):
            a(f's_lshl_b32 s20, s2, 12\ns_add_u32 s20, s20, {ZERO0 + 256*4096*rnd}')
            if rnd: a(f's_cmp_ge_u32 s2, {nz-256}\ns_cselect_b32 s20, {OOBS}, s20')
            a(f'buffer_store_dwordx4 v[20:23], v2, {SRD}, s20 offen {WST}')
    a(f's_and_b32 s22, s2, 7\ns_cmp_eq_u32 s22, 0\ns_cbranch_scc1 {LN}')
    LV = a.label('Lfv'); LJ = a.label('Lfj')
    a(f'''s_sub_u32 s22, s22, 1
    s_lshl_b32 s22, s22, 5
    s_lshr_b32 s20, s2, 3
    s_add_u32 s20, s20, s22
    s_mul_i32 s13, s20, 9363
    s_lshr_b32 s13, s13, 16
    s_mul_i32 s22, s13, 7
    s_sub_u32 s14, s20, s22
    s_and_b32 s15, s13, 15
    s_lshl_b32 s16, s14, 2
    s_add_u32 s16, s16, s12
    v_and_b32 v3, 15, v7
    v_lshrrev_b32 v4, 4, v7
    v_lshrrev_b32 v5, 2, v3
    v_and_b32 v6, 3, v3
    v_lshl_add_u32 v5, v5, 3, v6
    v_lshlrev_b32 v5, 13, v5
    v_lshl_add_u32 v5, v4, 4, v5
    s_lshl_b32 s17, s15, 9
    s_lshl_b32 s37, s12, 13
    s_mov_b32 s26, {448*8192}
    s_mov_b32 s27, 0x20000
    s_mov_b32 s30, {448*8192}
    s_mov_b32 s31, 0x20000
    s_cmp_ge_u32 s13, 16
    s_cbranch_scc1 {LV}
    s_mov_b32 s24, s44
    s_mov_b32 s25, s45
    s_mov_b32 s28, s46
    s_mov_b32 s29, s47
    v_lshrrev_b32 v24, 2, v7
    v_lshlrev_b32 v24, 13, v24
    v_and_b32 v25, 3, v7
    v_lshl_add_u32 v24, v25, 7, v24
    s_lshl_b32 s21, s16, 17
    s_add_u32 s21, s21, s17
    {'buffer_load_dword v251, v24, s[24:27], s21 offen' if TOUCH & 1 else ''}
    s_mov_b32 s32, {SCALE}
    s_mov_b32 s33, {WA}
    s_lshr_b32 s20, s16, 1
    s_lshl_b32 s20, s20, 5
    s_and_b32 s21, s16, 1
    s_lshl_b32 s21, s21, 2
    s_add_u32 s20, s20, s21
    s_lshl_b32 s20, s20, 13
    s_add_u32 s20, s20, s17''')
    for kd in range(8):
        a(f's_add_u32 m0, s37, {kd*1024 - kd*64}\ns_nop 0\nbuffer_load_dwordx4 v5, s[28:31], s20 offen offset:{kd*64} {NT} lds')
    a(f"""s_branch {LJ}
    {LV}:
    s_mov_b32 s24, s48
    s_mov_b32 s25, s49
    s_mov_b32 s28, s50
    s_mov_b32 s29, s51
    v_lshrrev_b32 v24, 2, v7
    v_lshlrev_b32 v24, 13, v24
    v_and_b32 v25, 3, v7
    v_lshl_add_u32 v24, v25, 7, v24
    s_lshl_b32 s21, s16, 17
    s_add_u32 s21, s21, s17
    {'buffer_load_dword v251, v24, s[24:27], s21 offen' if TOUCH & 1 else ''}
    s_mov_b32 s32, 1.0
    s_mov_b32 s33, {WV}
    v_lshrrev_b32 v8, 1, v7
    v_mul_u32_u24 v8, 896, v8
    v_and_b32 v9, 1, v7
    v_lshl_add_u32 v8, v9, 4, v8
    s_mul_i32 s21, s15, {256*896}
    s_lshl_b32 s20, s16, 5
    s_add_u32 s21, s21, s20""")
    for kd in range(8):
        a(f's_add_u32 m0, s37, {kd*1024}\ns_add_u32 s20, s21, {kd*32*896}\nbuffer_load_dwordx4 v8, s[28:31], s20 offen {NT} lds')
    a(f'{LJ}:')
    mark()
    AF = lambda n, ab, kd: 64*(n & 1) + 32*ab + 4*kd
    a(f"""v_lshrrev_b32 v24, 3, v7
    v_and_b32 v25, 7, v7
    v_bfe_u32 v26, v7, 4, 1
    v_xor_b32 v25, v25, v26
    v_lshlrev_b32 v24, 13, v24""")
    for rg in range(4):
        a(f"""v_xor_b32 v26, {2*rg}, v25
        v_lshl_add_u32 v{10+rg}, v26, 4, v24
        v_add_u32 v{10+rg}, {rg*8*8192}, v{10+rg}""")
    a(f"""s_lshl_b32 s38, s12, 15
    s_add_u32 s38, s38, 32768
    v_lshrrev_b32 v24, 2, v3
    v_lshlrev_b32 v14, 10, v24
    v_lshl_add_u32 v14, v6, 7, v14
    v_lshlrev_b32 v24, 1, v24
    v_lshrrev_b32 v25, 1, v6
    v_or_b32 v24, v24, v25
    v_xor_b32 v24, v24, v4
    v_lshl_add_u32 v14, v24, 4, v14
    v_add_u32 v14, s38, v14
    v_xor_b32 v15, 64, v14""")
    def adma(n):
        a(f"""s_add_u32 s34, s12, {4*n}
        s_lshl_b32 s34, s34, 18
        s_add_u32 s34, s34, s17""")
        for cg in range(4):
            for rg in range(4):
                a(f's_add_u32 m0, s38, {(n&1)*16384 + (cg*4+rg)*1024 - cg*128}\ns_nop 0\nbuffer_load_dwordx4 v{10+rg}, s[24:27], s34 offen offset:{cg*128} {NT} lds')
    def aread(n):
        for ab in range(2):
            for kd in range(8):
                a(f'ds_read_b128 {ar(AF(n,ab,kd),4)}, v{14+(kd&1)} offset:{(n&1)*16384 + (kd>>1)*4096 + ab*512}')
    adma(0); adma(1)
    fills()
    a('v_mov_b32 v44, 0\ns_waitcnt vmcnt(43)')
    a('s_barrier')
    mark()
    LB = a.label('Lfb'); LC = a.label('Lfc')
    a(f's_cmp_ge_u32 s13, 16\ns_cbranch_scc1 {LB}')
    for i in range(32): a(f'ds_read_b128 {vr(128+4*i,4)}, v1 offset:{i*1024}')
    a(f"""s_branch {LC}
    {LB}:
    v_lshlrev_b32 v9, 8, v4
    v_lshl_add_u32 v9, v3, 3, v9""")
    for i in range(32):
        for jh in range(2): a(f'ds_read_b64_tr_b16 {vr(128+4*i+2*jh,2)}, v9 offset:{i*1024+jh*128}')
        if i % 4 == 3: a('s_waitcnt lgkmcnt(4)')
    a(f"""{LC}:
    s_mul_i32 s36, s15, 28
    s_lshl_b32 s20, s14, 2
    s_add_u32 s36, s36, s20
    s_mul_i32 s36, s36, 14336
    s_add_u32 s36, s36, s33
    s_lshl_b32 s20, s12, 10
    s_add_u32 s36, s36, s20""")
    AC = 64
    def adma_list(n):
        out = [f's_add_u32 s34, s12, {4*n}', 's_lshl_b32 s34, s34, 18', 's_add_u32 s34, s34, s17']
        for cg in range(4):
            for rg in range(4):
                out += [f's_add_u32 m0, s38, {(n&1)*16384 + (cg*4+rg)*1024 - cg*128}', f'buffer_load_dwordx4 v{10+rg}, s[24:27], s34 offen offset:{cg*128} {NT} lds', '']
        return out
    def epi(n):
        A0 = AC + 32*(n & 1); out = []
        for tt in range(4):
            O = 24+4*tt
            for ab in range(2):
                A = A0+16*ab+4*tt
                out += [f'v_mul_f32 v{A+r}, s32, v{A+r}' for r in range(4)]
                out += [f'v_cvt_pk_bf16_f32 v{O+2*ab}, v{A}, v{A+1}', f'v_cvt_pk_bf16_f32 v{O+2*ab+1}, v{A+2}, v{A+3}']
            out += [f's_add_u32 s20, s36, {tt*14336 + n*4096}\nbuffer_store_dwordx4 {vr(O,4)}, v1, {SRD}, s20 offen {WST}']
        return out
    a('s_waitcnt vmcnt(27)')
    touch_b()
    aread(0)
    for n in range(4):
        if n == 3: a(f's_cmp_ge_u32 s12, 2\ns_cbranch_scc1 {EXIT}_e2')
        a('s_waitcnt lgkmcnt(0)')
        if n == 2: hook(2)
        mark()
        main = [mf(vr(AC+32*(n&1)+16*ab+4*tt,4), ar(AF(n,ab,kd),4), vr(128+4*(tt*8+kd),4), 0 if kd == 0 else None)
                for kd in range(8) for ab in range(2) for tt in range(4)]
        F = {}
        if n < 2:
            for k, x in enumerate(adma_list(n+2)): F.setdefault(k, []).append(x)
        if n >= 1:
            for k, x in enumerate(epi(n-1)): F.setdefault(8+k, []).append(x)
        if n == 0: F.setdefault(60, []).append(hook(1))
        for x in interleave(main, F): a(x)
        if n < 3:
            a(f's_waitcnt vmcnt({(29 if TOUCH & 8 else 28, 20, 4)[n]})')
            aread(n+1)
            if n == 2: hook(3)
    a('s_nop 7')
    for x in epi(3): a(x)
    a(f's_branch {EXIT}_f\n{EXIT}_e2:\ns_nop 7')
    for x in epi(2): a(x)
    a(f'{EXIT}_f:')
    a(f'{EXIT}_d:')
    dump()
    a(f's_branch {END}')
    n_st[0] = 1
    X = 24
    a(f'''{LN}:
    s_lshr_b32 s13, s2, 3
    s_lshl_b32 s14, s13, 2
    s_add_u32 s14, s14, s12
    s_mov_b32 s24, s40
    s_mov_b32 s25, s41
    s_mov_b32 s26, {2048*896}
    s_mov_b32 s27, 0x20000
    v_and_b32 v3, 15, v7
    v_lshrrev_b32 v4, 4, v7
    v_mul_u32_u24 v5, 896, v3
    v_lshl_add_u32 v5, v4, 4, v5
    s_mul_i32 s16, s14, 14336''')
    for ks in range(14): a(f'buffer_load_dwordx4 {vr(X+4*ks,4)}, v5, s[24:27], s16 offen offset:{ks*64} {NT}')
    fills()
    LM = a.label('Lm0')
    a(f'''s_cmp_ge_u32 s13, 2
    s_cbranch_scc1 {LM}
    s_mov_b32 s28, s42
    s_mov_b32 s29, s43
    s_mov_b32 s30, 7168
    s_mov_b32 s31, 0x20000
    s_lshl_b32 s21, s13, 15
    s_add_u32 s21, s21, {MEMF}
    s_lshl_b32 s22, s13, 19
    s_add_u32 s22, s22, {MEMG}''')
    for rnd in range(2):
        a(f'''v_add_u32 v8, {256*rnd}, v0
        v_min_u32 v8, 447, v8
        v_and_b32 v9, 7, v8
        v_mul_u32_u24 v10, 896, v9
        v_lshrrev_b32 v11, 3, v8
        v_lshl_add_u32 v10, v11, 4, v10
        buffer_load_dwordx4 v[12:15], v10, s[28:31], 0 offen
        v_lshlrev_b32 v10, 4, v8
        v_lshrrev_b32 v11, 4, v8
        v_lshlrev_b32 v11, 8, v11
        v_lshl_add_u32 v11, v9, 4, v11
        v_bfe_u32 v9, v8, 3, 1
        v_lshl_add_u32 v11, v9, 3, v11
        s_waitcnt vmcnt(0)''')
        for r in range(4): a(f'v_min_u32 v{12+r}, 0xfffffffe, v{12+r}')
        a(f'''buffer_store_dwordx4 v[12:15], v10, {SRD}, s22 offen sc1
        buffer_store_dword v12, v11, {SRD}, s21 offen sc1
        buffer_store_dword v13, v11, {SRD}, s21 offen offset:128 sc1
        buffer_store_dword v14, v11, {SRD}, s21 offen offset:4 sc1
        buffer_store_dword v15, v11, {SRD}, s21 offen offset:132 sc1
        s_nop 1''')
    a(f'{LM}:\ns_waitcnt vmcnt(0)')
    a('v_mov_b32 v44, 0') if False else None
    a('v_mov_b32 v210, 0\n' + hook(1).replace('v[42:43], v44', 'v[208:209], v210'))
    mark()
    U = 96
    for i in range(56):
        a(f'v_lshlrev_b32 v{U+2*i}, 16, v{X+i}\nv_and_b32 v{U+2*i+1}, 0xffff0000, v{X+i}')
    a('v_mov_b32 v8, 0\nv_mov_b32 v9, 0\nv_mov_b32 v10, 0\nv_mov_b32 v11, 0')
    for i in range(56):
        a(f'v_pk_add_f32 v[8:9], v[8:9], {vr(U+2*i,2)}\nv_pk_fma_f32 v[10:11], {vr(U+2*i,2)}, {vr(U+2*i,2)}, v[10:11]')
    a('v_add_f32 v8, v8, v9\nv_add_f32 v9, v10, v11')
    for sw in ('16', '32'):
        a(f'''v_mov_b32 v10, v8
        v_mov_b32 v11, v9
        s_nop 1
        v_permlane{sw}_swap_b32 v8, v10
        v_permlane{sw}_swap_b32 v9, v11
        v_add_f32 v8, v8, v10
        v_add_f32 v9, v9, v11''')
    a('s_waitcnt vmcnt(0)')
    hook(2, 212, 208)
    a(f'''s_mov_b32 s22, 0x3b124925
    s_mov_b32 s23, 0x3727c5ac
    v_mul_f32 v8, s22, v8
    v_mul_f32 v9, s22, v9
    v_fma_f32 v9, -v8, v8, v9
    v_max_f32 v9, 0, v9
    v_add_f32 v9, s23, v9
    v_rsq_f32 v10, v9
    s_add_u32 s20, s16, {XN}
    v_mul_f32 v8, v8, v10
    v_mov_b32 v11, v10
    v_sub_f32 v8, 0, v8
    v_mov_b32 v9, v8''')
    for ks in range(14):
        for d in range(4):
            i = 4*ks+d
            a(f'v_pk_fma_f32 {vr(U+2*i,2)}, {vr(U+2*i,2)}, v[10:11], v[8:9]\nv_cvt_pk_bf16_f32 v{X+i}, v{U+2*i}, v{U+2*i+1}\nv_min_u32 v{X+i}, 0xfffffffe, v{X+i}')
        a(f'buffer_store_dwordx4 {vr(X+4*ks,4)}, v1, {SRD}, s20 offen offset:{(ks&3)*1024} {WST}')
        if (ks & 3) == 3: a('s_add_u32 s20, s20, 4096')
    a('s_waitcnt vmcnt(14)\nv_mov_b32 v40, v212')
    dump()
    a(f'{END}:')
```

```python
import re, gen, sys
KN = gen.KN
def make(path, build=None):
    t = (build or gen.build)()
    X = f'{KN}_kernel_exit'
    t = t.replace("    s_mov_b32 s18, 0x80000\n    s_mov_b32 s16, 1\n    s_waitcnt vmcnt(0)\n", "    s_mov_b32 s18, 0x80000\n    s_mov_b32 s16, 1\n    s_waitcnt vmcnt(0)\n    s_memrealtime s[60:61]\n    s_mov_b32 s62, 0\n    s_mov_b32 s64, 0\n    s_mov_b32 s68, 0\n    s_waitcnt lgkmcnt(0)\n", 1)
    i_k = t.index('= chain K-CU'); i_v = t.index('= chain V-CU')
    k = t[i_k:i_v]
    k = k.replace('    s_cmp_eq_u32 s16, 1\n    s_cbranch_scc0 Lkslow', '    s_memrealtime s[62:63]\n    s_lshl_b32 s68, s14, 2\n    s_add_u32 s68, s68, 52\n    s_waitcnt lgkmcnt(0)\n    s_cmp_eq_u32 s14, 0\n    s_cselect_b32 s62, s62, 0\n    s_cmp_eq_u32 s16, 1\n    s_cbranch_scc0 Lkslow', 1)
    k = re.sub(r'(Lkf_\d+:\n)', lambda m: m.group(1) + '    s_lshl_b32 s88, s14, 8\n    s_add_u32 s88, s88, s17\n    s_cmp_lg_u32 s88, 2\n    s_cbranch_scc1 Lnoev2\n    s_memrealtime s[64:65]\n    s_waitcnt lgkmcnt(0)\nLnoev2:\n', k, count=1)
    t = t[:i_k] + (k + t[i_v:]).replace(f's_branch {X}\n', f's_branch {X}2\n')
    ex = f"""{X}2:
    s_cmp_lg_u32 s12, 0
    s_cbranch_scc1 {X}
    s_load_dwordx2 s[84:85], s[0:1], 96
    s_memrealtime s[66:67]
    s_mov_b64 exec, 1
    v_mov_b32 v1, 0
    s_waitcnt lgkmcnt(0)
    global_load_dword v2, v1, s[84:85] offset:128 sc1
    v_mov_b32 v10, s60
    global_atomic_umax v1, v10, s[84:85] offset:40 sc1
    v_mov_b32 v11, s62
    global_atomic_umax v1, v11, s[84:85] offset:44 sc1
    v_mov_b32 v12, s64
    global_atomic_umax v1, v12, s[84:85] offset:48 sc1
    v_mov_b32 v13, s66
    global_atomic_umax v1, v13, s[84:85] offset:60 sc1
    v_mov_b32 v3, s68
    global_atomic_umax v3, v13, s[84:85] sc1
    s_waitcnt vmcnt(0)
    global_store_dword v1, v2, s[84:85] offset:36 sc1
"""
    t = t.replace(f'{X}:\n', ex + f'{X}:\n')
    open(path, 'w').write(t)
if __name__ == '__main__': make('dbgt.s')
```

```python
import sys
from asmlib import *
from layout import *
import chain, workers
from chain import SRD, S_W, S_SLOT, S_L, S_P, S_FAST, S_STEP, S_TO

KN = 'interleave_layers__memory_aug_recurrent_mem_tr__glu_gated_glu__prompt'
R_IDLE, R_K, R_V, R_P, R_VX, R_B1, R_B2, R_PV = range(8)

def role_table():
    T = [R_IDLE]*256
    def enc(role, l=0, p=0, u=0): return role | (l << 4) | (p << 8) | (u << 16)
    for l in range(2):
        for r in range(16): T[l*32+r] = enc(R_K, l, r)
        for r in range(14): T[l*32+16+r] = enc(R_V, l, r)
    free = {x: list(range(x*32, x*32+32)) for x in range(2, 8)}
    if not workers.LAYOUT:
        for h in range(16):
            x = 2 + h % 6
            for u in range(workers.N_P): T[free[x].pop(0)] = enc(R_P, 0, h, u)
            for u in range(3): T[free[x].pop(0)] = enc(R_VX, 0, h, u)
        teams = [(R_B2, u) for u in range(4)] + [(R_PV, u) for u in range(3)]
        for (r, u), x in zip(teams, [2, 3, 4, 5, 6, 6, 7]):
            for c in range(7): T[free[x].pop(0)] = enc(r, 0, c, u)
        slots = free[6] + free[7] + free[2] + free[3] + free[4] + free[5]
        for k in range(28): T[slots[k]] = enc(R_B1, 0, k // 2, k % 2)
        return T
    for l in range(2):
        x = 2 + l
        for c in range(14): T[free[x].pop(0)] = enc(R_B1, 0, c, l)
        for u in range(2):
            for c in range(7): T[free[x].pop(0)] = enc(R_B2, 0, c, 2*l+u)
    for h in range(16):
        x = 4 + h % 4
        for u in range(workers.N_P): T[free[x].pop(0)] = enc(R_P, 0, h, u)
        for u in range(3): T[free[x].pop(0)] = enc(R_VX, 0, h, u)
    slots = [s for x in range(2, 8) for s in free[x]]
    for k in range(21): T[slots[k]] = enc(R_PV, 0, k % 7, k // 7)
    return T

def kd(name, vgpr=512, sgpr=102, acc=256):
    return f'''.amdhsa_kernel {name}
  .amdhsa_next_free_vgpr {vgpr}
  .amdhsa_next_free_sgpr {sgpr}
  .amdhsa_accum_offset {acc}
  .amdhsa_group_segment_fixed_size 0
  .amdhsa_kernarg_size 112
  .amdhsa_user_sgpr_count 2
  .amdhsa_user_sgpr_kernarg_segment_ptr 1
  .amdhsa_system_sgpr_workgroup_id_x 1
.end_amdhsa_kernel
'''

DS = 's[80:83]'
PSTAMP = 0
NOCH = False
def main_kernel(a, name, roles, stamps=False, force_slow=False, with_prep=True):
    EXIT = f'{name}_exit'
    a(f'.globl {name}\n.p2align 8\n.type {name},@function\n{name}:')
    a(f"""s_cmp_ge_u32 s2, 256
    s_cbranch_scc1 {EXIT}
    s_memrealtime s[78:79]
    s_load_dwordx2 s[4:5], s[0:1], 104
    s_load_dwordx2 s[80:81], s[0:1], 96
    s_load_dwordx4 s[40:43], s[0:1], 0
    s_load_dwordx4 s[44:47], s[0:1], 16
    s_load_dwordx4 s[48:51], s[0:1], 32
    s_load_dwordx4 s[52:55], s[0:1], 64
    s_load_dwordx2 s[56:57], s[0:1], 80
    s_getreg_b32 s7, hwreg(HW_REG_XCC_ID)
    s_and_b32 s7, s7, 7
    v_lshrrev_b32 v1, 6, v0
    s_mov_b32 s82, 256
    v_readfirstlane_b32 s{S_W}, v1
    s_mov_b32 s83, 0x20000
    s_mov_b32 s10, 0x10000000
    s_mov_b32 s11, 0x20000
    s_getpc_b64 s[22:23]
    s_waitcnt lgkmcnt(0)
    s_mov_b32 s8, s4
    s_mov_b32 s9, s5
    s_and_b32 s78, s78, 0xfffffff0
    s_lshl_b32 s20, s7, 1
    s_or_b32 s78, s78, s20
    s_or_b32 s78, s78, 1
    {'s_mov_b32 s98, s78' if stamps else ''}""")
    Lw = a.label('Lra'); Lnat = a.label('Lnat'); Lov = a.label('Lov'); Lov2 = a.label('Lov2'); Lov3 = a.label('Lov3')
    TL = a.label('Ltouch'); TJ = a.label('Ltj')
    a(f"""s_cmp_eq_u32 s{S_W}, 0
    s_cbranch_scc1 {TL}
    s_cmp_lg_u32 s{S_W}, 1
    s_cbranch_scc1 {TJ}
    s_bfe_u32 s20, s2, 0x50003
    s_lshl_b32 s20, s20, 11
    v_and_b32 v1, 15, v0
    v_lshlrev_b32 v1, 7, v1
    v_add_u32 v1, s20, v1
    v_min_u32 v2, {name}_tab-{name}-256, v1
    global_load_dword v250, v2, s[22:23]
    s_branch {TJ}
    {TL}:
    s_cmp_lg_u32 s2, 248
    s_cbranch_scc1 {TJ}
    s_mov_b64 exec, 0x1ff
    v_lshlrev_b32 v1, 7, v0
    v_mov_b32 v2, 0
    s_mov_b32 s21, {RANK}
    buffer_store_dword v2, v1, {SRD}, s21 offen sc1
    v_mov_b32 v2, s78
    v_mov_b32 v3, s79
    s_mov_b64 exec, 1
    s_waitcnt vmcnt(0)
    buffer_store_dwordx2 v[2:3], v1, {DS}, 0 offen offset:128 sc1
    s_mov_b64 exec, -1
    {TJ}:
    s_mov_b32 s6, 0""")
    def take_rank(vr_, sn):
        a(f"""s_mov_b64 exec, 1
        s_bfe_u32 s21, s{sn}, 0x30001
        s_sub_u32 s7, s7, s21
        s_and_b32 s7, s7, 7
        s_lshl_b32 s21, s7, 7
        s_add_u32 s21, s21, {RANK}
        v_mov_b32 v{vr_+1}, 0
        v_mov_b32 v{vr_}, 1
        buffer_atomic_add v{vr_}, v{vr_+1}, {SRD}, s21 offen sc0 sc1
        s_mov_b64 exec, -1
        s_mov_b32 s6, 1""")
    def hook(k, vr_=40, vn=42):
        if k == 1: return f'buffer_load_dwordx2 v[42:43], v44, {DS}, 0 offen offset:128 sc1'
        L = a.label('Lhk')
        if k == 3:
            a(f"""s_barrier
            s_cmp_lg_u32 s6, 1
            s_cbranch_scc1 {L}
            s_lshl_b32 s21, s2, 7
            s_add_u32 s21, s21, {DONEF+16}
            s_mov_b64 exec, 1
            buffer_store_dwordx2 v[42:43], v44, {SRD}, s21 offen sc1
            s_mov_b64 exec, -1
            {L}:""")
            return
        a(f"""s_cmp_lg_u32 s{S_W}, 0
        s_cbranch_scc1 {L}
        v_readfirstlane_b32 s88, v{vn}
        v_readfirstlane_b32 s89, v{vn+1}
        s_cmp_eq_u64 s[88:89], 0
        s_cbranch_scc1 {L}""")
        take_rank(vr_, 88)
        a(f'{L}:')
    if with_prep: prep.prep_body(a, a.label('Lprep_end'), hook, PSTAMP or stamps)
    a(f"""s_mov_b32 s{S_TO}, 0x80000
    s_mov_b32 s{S_FAST}, 1
    s_waitcnt vmcnt(0)
    s_barrier
    s_cmp_lg_u32 s{S_W}, 0
    s_cbranch_scc1 {Lw}
    s_mov_b64 s[78:79], s[88:89]
    s_cmp_eq_u32 s6, 1
    s_cbranch_scc1 {Lw}_r
    v_mov_b32 v1, 0
    {Lw}_n:
    buffer_load_dwordx2 v[2:3], v1, {DS}, 0 offen offset:128 sc1
    s_sub_u32 s{S_TO}, s{S_TO}, 1
    s_cbranch_scc1 {EXIT}
    s_waitcnt vmcnt(0)
    v_readfirstlane_b32 s78, v2
    v_readfirstlane_b32 s79, v3
    s_cmp_eq_u64 s[78:79], 0
    s_cbranch_scc1 {Lw}_n""")
    take_rank(40, 78)
    a(f"""{Lw}_r:
    s_mov_b64 exec, 1
    v_mov_b32 v1, 0
    v_mov_b32 v2, s78
    v_mov_b32 v3, s79
    s_lshl_b32 s21, s2, 7
    s_add_u32 s21, s21, {DONEF}
    buffer_store_dwordx2 v[2:3], v1, {SRD}, s21 offen sc1
    buffer_store_dwordx2 v[2:3], v1, {SRD}, s21 offen offset:16 sc1
    s_waitcnt vmcnt(2)
    v_readfirstlane_b32 s6, v40
    s_lshl_b32 s{S_SLOT}, s7, 5
    s_add_u32 s{S_SLOT}, s{S_SLOT}, s6
    s_cmp_lt_u32 s6, 32
    s_cbranch_scc1 {Lnat}
    v_mov_b32 v2, 1
    s_mov_b32 s21, {RANK}
    buffer_atomic_add v2, v1, {SRD}, s21 offen offset:1024 sc0 sc1
    s_waitcnt vmcnt(0)
    v_readfirstlane_b32 s22, v2
    s_mov_b64 exec, 0xff
    v_mbcnt_lo_u32_b32 v1, -1, 0
    v_lshlrev_b32 v1, 7, v1""")
    a(f'''
    {Lov}:
    buffer_load_dword v2, v1, {SRD}, s21 offen sc1
    s_sub_u32 s{S_TO}, s{S_TO}, 1
    s_cbranch_scc1 {EXIT}
    s_waitcnt vmcnt(0)
    s_mov_b32 s23, 0''')
    for x in range(8):
        a(f'v_readlane_b32 s24, v2, {x}\ns_add_u32 s23, s23, s24')
    a(f'''s_cmp_lt_u32 s23, 256
    s_cbranch_scc1 {Lov}
    s_mov_b32 s23, 0
    {Lov2}:
    v_readlane_b32 s24, v2, s23
    s_min_u32 s24, s24, 32
    s_sub_u32 s25, 32, s24
    s_cmp_lt_u32 s22, s25
    s_cbranch_scc1 {Lov3}
    s_sub_u32 s22, s22, s25
    s_add_u32 s23, s23, 1
    s_cmp_lt_u32 s23, 8
    s_cbranch_scc1 {Lov2}
    s_mov_b32 s{S_SLOT}, 30
    s_branch {Lnat}
    {Lov3}:
    s_lshl_b32 s{S_SLOT}, s23, 5
    s_add_u32 s{S_SLOT}, s{S_SLOT}, s24
    s_add_u32 s{S_SLOT}, s{S_SLOT}, s22
    {Lnat}:
    s_mov_b64 exec, -1
    v_mov_b32 v1, 0
    v_mov_b32 v2, s{S_SLOT}
    v_mov_b32 v3, s78
    v_mov_b32 v4, s79
    ds_write_b96 v1, v[2:4]
    s_waitcnt lgkmcnt(0)
    {Lw}:
    s_barrier
    v_mov_b32 v1, 0
    ds_read_b96 v[2:4], v1
    s_getpc_b64 s[20:21]
    {name}_pc:
    s_add_u32 s20, s20, {name}_tab-{name}_pc
    s_addc_u32 s21, s21, 0
    s_waitcnt lgkmcnt(0)
    v_readfirstlane_b32 s{S_SLOT}, v2
    v_readfirstlane_b32 s78, v3
    v_readfirstlane_b32 s79, v4
    s_and_b32 s{S_SLOT}, s{S_SLOT}, 255
    s_lshl_b32 s22, s{S_SLOT}, 2
    s_load_dword s22, s[20:21], s22
    s_barrier
    s_waitcnt lgkmcnt(0)
    s_bfe_u32 s{S_L}, s22, 0x10004
    s_bfe_u32 s{S_P}, s22, 0x80008
    s_bfe_u32 s19, s22, 0x80010
    s_and_b32 s22, s22, 15
    {'s_memrealtime s[100:101]' if stamps else ''}''')
    labels = {r: a.label(f'Lrole{r}') for r in roles}
    Lch = a.label('Lch')
    for r in roles:
        a(f's_cmp_eq_u32 s22, {r}\ns_cbranch_scc1 {labels[r]}')
    a(f'{EXIT}:\ns_endpgm')
    def chain_mode(va, vd, need=30):
        L = a.label('Lcm'); Ld = a.label('Lcmd')
        a(f'''v_and_b32 v{va}, 7, v0
        v_lshlrev_b32 v{va}, 7, v{va}
        s_mov_b32 s21, {RANK}
        {L}:
        buffer_load_dword v{vd}, v{va}, {SRD}, s21 offen sc1
        s_sub_u32 s{S_TO}, s{S_TO}, 1
        s_cbranch_scc1 {EXIT}
        s_waitcnt vmcnt(0)
        s_lshr_b32 s23, s{S_SLOT}, 5
        s_nop 3
        v_readlane_b32 s22, v{vd}, s23
        s_cmp_ge_u32 s22, {need}
        s_cbranch_scc1 {Ld}
        s_mov_b32 s23, 0''')
        for x in range(8):
            a(f'v_readlane_b32 s22, v{vd}, {x}\ns_add_u32 s23, s23, s22')
        a(f'''s_cmp_lt_u32 s23, 256
        s_cbranch_scc1 {L}
        s_mov_b32 s{S_FAST}, 0
        {Ld}:''')
        if force_slow: a(f's_mov_b32 s{S_FAST}, 0')
    for r in roles:
        a(f'{labels[r]}:')
        if r in (R_K, R_V, R_B2, R_B1): roles[r](a, EXIT, (0 if NOCH and r in (R_K, R_V) else stamps), chain_mode)
        else: roles[r](a, EXIT, stamps)
    a(f'.p2align 2\n.type {name}_tab,@object\n{name}_tab:')
    T = role_table()
    for i in range(0, 256, 8):
        a('.long ' + ', '.join(f'0x{x:x}' for x in T[i:i+8]))

import workers, prep
ALL = {R_K: chain.k_cu, R_V: chain.v_cu, R_P: workers.p_role, R_VX: workers.vx_role, R_B1: workers.b1_role, R_B2: workers.b2_role, R_PV: workers.pv_role}

HEADER = open('cdna_kernels/' + KN + '.s.ref').read().split('; Override launch geometry')[0]

def build(roles=None, stamps=0, force_slow=False, with_prep=True):
    a = Asm()
    a(HEADER)
    name = KN + '_kernel'
    a('; @launch grid=(256,1,1) block=(256,1,1) lds=163840')
    a('.amdgcn_target "amdgcn-amd-amdhsa--gfx950"\n.text')
    chain.HANDOVER = False
    chain.PREP = with_prep
    main_kernel(a, name, {r: ALL[r] for r in (ALL if roles is None else roles)}, stamps, force_slow, with_prep)
    a('.section .rodata,"a"\n.p2align 6')
    a(kd(name))
    return a.text()

def with_timeout_diag(txt):
    lines = txt.split('\n'); out = []; stubs = []; n = 0
    for i, ln in enumerate(lines):
        if ln.strip() == f's_cbranch_scc1 {KN}_kernel_exit' and lines[i-1].strip().startswith('s_sub_u32 s18'):
            n += 1
            out.append(f'    s_cbranch_scc1 Lto_{n}   ; site {n}')
            stubs.append(f'Lto_{n}:\n    s_mov_b32 s99, {n}\n    s_branch Lto_common')
        elif ln.startswith(f'.type {KN}_kernel_tab') :
            out.pop()
            out += stubs
            out.append(f"""Lto_common:
    s_mov_b64 exec, 1
    s_lshl_b32 s20, s13, 2
    s_add_u32 s20, s20, s12
    s_lshl_b32 s20, s20, 4
    s_add_u32 s20, s20, {STAMP+0x900000}
    v_mov_b32 v1, 0
    v_mov_b32 v4, s99
    v_mov_b32 v5, s17
    v_mov_b32 v6, s44
    v_mov_b32 v7, s47
    buffer_store_dwordx4 v[4:7], v1, s[8:11], s20 offen
    s_endpgm
.p2align 2""")
            out.append(ln)
        else: out.append(ln)
    return '\n'.join(out).replace('s_mov_b32 s18, 0x80000', 's_mov_b32 s18, 0x4000')

if __name__ == '__main__':
    E = 'exp/'
    open(E+'chain1.s', 'w').write(build([R_K, R_V], 1, with_prep=False))
    open(E+'chain2.s', 'w').write(build([R_K, R_V], 2, with_prep=False))
    open(E+'prep.s', 'w').write(build([]))
    for nm, r in (('p', R_P), ('vx', R_VX), ('b1', R_B1), ('b2', R_B2), ('pv', R_PV)):
        open(E+f'r_{nm}.s', 'w').write(build([r], 1, with_prep=False))
    open(E+'full.s', 'w').write(build())
    open(E+'full_to.s', 'w').write(with_timeout_diag(build()))
    open(E+'slow_to.s', 'w').write(with_timeout_diag(build(force_slow=True)))
    open(E+'full_cy.s', 'w').write(build(stamps=1))
    chain.STAMP_OP = 's_memrealtime'
    open(E+'chain3.s', 'w').write(build([R_K, R_V], 2, with_prep=False))
    open(E+'full_st.s', 'w').write(build(stamps=1))
    NOCH = True
    open(E+'full_sw.s', 'w').write(build(stamps=1))
    NOCH = False
    open(E+'prep_st.s', 'w').write(build([], stamps=1))
```

```python
from asmlib import *
from layout import *
from chain import SRD, S_W, S_SLOT, S_L, S_P, S_TO, S_U, wait_flags, need_head, all_done, hold_back, Stamps, stamp_dump, DPP
import chain

S_K, S_S, S_LS = 42, 43, 44
OOB = 0x7f000000
D_V, D_PV, D_B2, D_B1, D_P = 17, 15, 15, 15, 15
N_PV, N_B2, N_B1, N_P = 3, 4, 2, 4
DEC = 147392
ONES = ST + 7168
ZEROS = CNT + 1152
S_NL, S_NS, S_NLS, S_HAVE, S_PEND, S_BUF = 45, 46, 47, 52, 53, 54
SRD2 = 's[56:59]'
S_FAST = chain.S_FAST

def w4(i, nA=64, vb=120):
    return ar(4*i, 4) if i < nA else vr(vb + 4*(i-nA), 4)

def load_frags(a, n, sreg, dst, voff=1, start=0):
    for i in range(n):
        a(f'buffer_load_dwordx4 {dst(i)}, v{voff}, {SRD}, s{sreg} offen offset:{(i & 3)*1024} sc1')
        if (i & 3) == 3: a(f's_add_u32 s{sreg}, s{sreg}, 4096')
        if start+i >= 47 and (start+i) % 8 == 7: a('s_waitcnt vmcnt(40)')

S_SCH = 70
S0_P, S0_PV, S0_B1, S0_B2, S1_V = 38, 37, 36, 64, 21
MERGE = {'PV': 10}
def sched_table(role):
    if role == 'VX': return [(S1_V//3, 0, 3, 0, 1, 2, 0), (S1_V//3, 0, 3, 1, 1, 2, 1), (S1_V//3, 0, 3, 2, 0, 1, S1_V)]
    if role == 'B2': return [(32, 0, 2, 0, 1, 4, S0_B2), (32, 0, 2, 1, 1, 4, S0_B2+1), (S0_B2//2, 1, 2, 0, 1, 4, S0_B2+2), (S0_B2//2, 1, 2, 1, 1, 4, S0_B2+3)]
    if role == 'P': return [(32, 0, 2, 0, 1, 4, 64), (32, 0, 2, 1, 1, 4, 64), (32, 1, 2, 0, 1, 4, 64), (32, 1, 2, 1, 1, 4, 64)]
    if role == 'PV' and N_PV == 4: return [(32, 0, 2, 0, 1, 4, 64), (32, 0, 2, 1, 1, 4, 64), (32, 1, 2, 0, 1, 4, 64), (32, 1, 2, 1, 1, 4, 64)]
    if role == 'B1': return [(64, 0, 1, 0, 1, 1, 64), (64, 1, 1, 0, 1, 1, 64)]
    S0, N = {'P': (S0_P, 4), 'PV': (S0_PV, 5), 'B1': (S0_B1, 3)}[role]
    return [(32, 0, 2, 0, 1, N, S0+1), (32, 0, 2, 1, 1, N, S0+2), (S0, 1, 1, 0, 1, N, S0)] + [(0, 1, 1, 0, 1, N, S0+u) for u in range(3, N)]
def task_list(role, u):
    if role in MERGE:
        D = MERGE[role]; out = []
        for k in range(u, 128, 3):
            if k < D: out.append(k)
            elif k >= 128-D: out.append(k)
            else:
                kk = k-D; l = kk & 1; out.append(64*l + (kk >> 1) + (1-l)*D)
        return out
    c1, l1, t1, b1, l2, t2, b2 = sched_table(role)[u]
    out = []; k = 0
    while True:
        l, s = (l1, b1+t1*k) if k < c1 else (l2, b2+t2*(k-c1))
        if s >= 64: return out
        out.append(64*l+s); k += 1
CUR_ROLE = [None]
def sched_setup(a, role):
    CUR_ROLE[0] = role
    if role in MERGE: return
    T = sched_table(role)
    J = a.label('Lsj')
    for u, row in enumerate(T):
        N = a.label('Lsn')
        if u < len(T)-1: a(f's_cmp_eq_u32 s{S_U}, {u}\ns_cbranch_scc0 {N}')
        for i, v in enumerate(row): a(f's_mov_b32 s{S_SCH+i}, {v}')
        if u < len(T)-1: a(f's_branch {J}\n{N}:')
    a(f'{J}:')

def task_calc(S_L, S_S, S_LS):
    return [f's_sub_u32 s20, s{S_K}, s{S_SCH}\ns_cselect_b32 s20, s{S_K}, s20\ns_cselect_b32 s{S_L}, s{S_SCH+1}, s{S_SCH+4}\n'
            f's_cselect_b32 s21, s{S_SCH+2}, s{S_SCH+5}\ns_cselect_b32 s{S_S}, s{S_SCH+3}, s{S_SCH+6}',
            's_mul_i32 s20, s20, s21', f's_add_u32 s{S_S}, s{S_S}, s20', f's_lshl_b32 s{S_LS}, s{S_L}, 6', f's_add_u32 s{S_LS}, s{S_LS}, s{S_S}']

def merged_task(a, D, DONE, S_L=S_L, S_S=S_S, S_LS=S_LS):
    if CUR_ROLE[0] in MERGE:
        D = MERGE[CUR_ROLE[0]]
        L2 = a.label('Lm2'); LD = a.label('Lmd')
        a(f'''s_mul_i32 s21, s{S_K}, 3
        s_add_u32 s21, s21, s{S_U}
        s_mov_b32 s{S_L}, 0
        s_mov_b32 s{S_S}, s21
        s_cmp_lt_u32 s21, {D}
        s_cbranch_scc1 {LD}
        s_cmp_ge_u32 s21, {128-D}
        s_cbranch_scc1 {L2}
        s_sub_u32 s20, s21, {D}
        s_and_b32 s{S_L}, s20, 1
        s_lshr_b32 s{S_S}, s20, 1
        s_xor_b32 s20, s{S_L}, 1
        s_mul_i32 s20, s20, {D}
        s_add_u32 s{S_S}, s{S_S}, s20
        s_branch {LD}
        {L2}:
        s_mov_b32 s{S_L}, 1
        s_sub_u32 s{S_S}, s21, 64
        {LD}:
        s_lshl_b32 s{S_LS}, s{S_L}, 6
        s_add_u32 s{S_LS}, s{S_LS}, s{S_S}
        s_cmp_ge_u32 s{S_S}, 64
        s_cbranch_scc1 {DONE}''')
        return
    a(f'''s_sub_u32 s20, s{S_K}, s{S_SCH}
    s_cselect_b32 s20, s{S_K}, s20
    s_cselect_b32 s{S_L}, s{S_SCH+1}, s{S_SCH+4}
    s_cselect_b32 s21, s{S_SCH+2}, s{S_SCH+5}
    s_cselect_b32 s{S_S}, s{S_SCH+3}, s{S_SCH+6}
    s_mul_i32 s20, s20, s21
    s_add_u32 s{S_S}, s{S_S}, s20
    s_lshl_b32 s{S_LS}, s{S_L}, 6
    s_add_u32 s{S_LS}, s{S_LS}, s{S_S}
    s_cmp_ge_u32 s{S_S}, 64
    s_cbranch_scc1 {DONE}''')

def flag_off(a, dst, kind, ls=S_LS):
    a(f's_mul_i32 s{dst}, s{ls}, {flag_seg(kind)}\ns_add_u32 s{dst}, s{dst}, {flag_base(kind)}')

def pend_flag(a, kind, sidx, ls=S_LS, add=0):
    a(f"""s_mul_i32 s{S_PEND}, s{ls}, {flag_seg(kind)}
    s_lshl_b32 s20, s{sidx}, 7
    s_add_u32 s{S_PEND}, s{S_PEND}, s20
    s_add_u32 s{S_PEND}, s{S_PEND}, {flag_base(kind) + add*flag_seg(kind)}""")

def flush(a, cnt=0):
    a(f"""s_waitcnt vmcnt({cnt})
    s_barrier
    buffer_store_dword v15, v14, {SRD}, s{S_PEND} offen sc1
    s_mov_b32 s{S_PEND}, {DUMMY}""")

def pipe_setup(a, vdw, vdr):
    a(f"""s_lshl_b32 s20, s{S_W}, 2
    s_add_u32 s20, s20, {DEC}
    v_mov_b32 v{vdw}, s20
    v_mov_b32 v{vdr}, {DEC}
    s_mov_b32 s56, s4
    s_mov_b32 s57, s5
    s_mov_b32 s58, 0
    s_mov_b32 s59, 0x20000
    s_mov_b32 s{S_HAVE}, 0
    s_mov_b32 s{S_PEND}, {DUMMY}
    s_mov_b32 s{S_BUF}, 0""")

def mid_sync(a, vfl, vdw, vdr, vt):
    a(f"""s_waitcnt vmcnt(0)
    v_cmp_eq_u32 vcc, 0, v{vfl}
    s_nop 1
    v_mov_b32 v{vt}, vcc_lo
    v_or_b32 v{vt}, vcc_hi, v{vt}
    ds_write_b32 v{vdw}, v{vt}
    s_waitcnt lgkmcnt(0)
    s_barrier
    ds_read_b32 v{vt}, v{vdr}
    buffer_store_dword v15, v14, {SRD}, s{S_PEND} offen sc1
    s_mov_b32 s{S_PEND}, {DUMMY}
    s_waitcnt lgkmcnt(0)
    v_readfirstlane_b32 s20, v{vt}
    s_cmp_eq_u32 s20, 0
    s_cselect_b32 s{S_HAVE}, 1, 0
    s_cselect_b32 s58, 0x10000000, 0""")

def dma_list(n, s_src, s_lds, srd=SRD, flags='sc1'):
    out = []
    for i in range(n):
        pre = []
        if (i & 3) == 0:
            if i: pre.append(f's_add_u32 s{s_src}, s{s_src}, 4096')
            pre.append(f's_mov_b32 m0, s{s_lds}')
            pre.append(f's_add_u32 s{s_lds}, s{s_lds}, 4096')
        out.append((pre, f'buffer_load_dwordx4 v1, {srd}, s{s_src} offen offset:{(i&3)*1024} {flags} lds'))
    return out

def set_flag(a, kind, sidx, vz=14, v1_=15, st=20):
    a(f'''s_mul_i32 s{st}, s{S_LS}, {flag_seg(kind)}
    s_lshl_b32 s{st+1}, s{sidx}, 7
    s_add_u32 s{st}, s{st}, s{st+1}
    s_add_u32 s{st}, s{st}, {flag_base(kind)}
    s_waitcnt vmcnt(0)
    s_barrier
    buffer_store_dword v{v1_}, v{vz}, {SRD}, s{st} offen sc1''')

def common_setup(a):
    a(f'''v_and_b32 v7, 63, v0
    v_lshlrev_b32 v1, 4, v7
    v_cmp_eq_u32 vcc, 0, v0
    v_mov_b32 v14, {OOB}
    v_mov_b32 v15, 1
    v_cndmask_b32 v14, v14, 0, vcc''')

def dma_frags(a, n, s_src, lds_base_s, flags='sc1'):
    for i in range(n):
        if (i & 3) == 0:
            a(f's_mov_b32 m0, s{lds_base_s}\ns_add_u32 s{lds_base_s}, s{lds_base_s}, 4096')
        a(f'buffer_load_dwordx4 v1, {SRD}, s{s_src} offen offset:{(i&3)*1024} {flags} lds')
        if (i & 3) == 3: a(f's_add_u32 s{s_src}, s{s_src}, 4096')

def gather_pairs(a, batches, T0=64, dst='a'):
    P = [[e for e in b if not isinstance(e, str)] for b in batches]
    def issue(b):
        k = 0
        for e in batches[b]:
            if isinstance(e, str): a(e); continue
            a(e[0].format(T0+32*(b % 2)+2*k)); a(e[1].format(T0+32*(b % 2)+2*k+1)); k += 1
    def fin(b):
        for k, (lo, hi, d) in enumerate(P[b]):
            t = T0+32*(b % 2)+2*k
            if dst == 'a': a(f'v_lshl_or_b32 v{t}, v{t+1}, 16, v{t}\nv_accvgpr_write_b32 a{d}, v{t}')
            else: a(f'v_lshl_or_b32 v{d}, v{t+1}, 16, v{t}')
    n = len(batches)
    for b in range(n+1):
        if b < n: issue(b)
        if b >= 1:
            a(f's_waitcnt vmcnt({2*len(P[b]) if b < n else 0})')
            fin(b-1)

def mf(D, A, B, C=None):
    return f'v_mfma_f32_16x16x32_bf16 {D}, {A}, {B}, {D if C is None else C}'


def hint(a, kind, sidx, add=0, sc='sc1'):
    a(f"""s_mul_i32 s21, s{S_LS}, {flag_seg(kind)}
    s_lshl_b32 s20, s{sidx}, 7
    s_add_u32 s21, s21, s20
    s_add_u32 s21, s21, {flag_base(kind) + add*flag_seg(kind)}
    s_barrier
    buffer_store_dword v15, v14, {SRD}, s21 offen {sc}""")

def guard(a, r, n):
    for i in range(n): a(f'v_min_u32 v{r+i}, 0xfffffffe, v{r+i}')

def vote(a, vfl, vdw, vdr, vt, cnt):
    a(f"""s_waitcnt vmcnt({cnt})
    v_cmp_eq_u32 vcc, 0, v{vfl}
    s_nop 1
    v_mov_b32 v{vt}, vcc_lo
    v_or_b32 v{vt}, vcc_hi, v{vt}
    ds_write_b32 v{vdw}, v{vt}
    s_waitcnt lgkmcnt(0)
    s_barrier
    ds_read_b32 v{vt}, v{vdr}
    s_waitcnt lgkmcnt(0)
    v_readfirstlane_b32 s20, v{vt}
    s_cmp_eq_u32 s20, 0
    s_cselect_b32 s{S_HAVE}, 1, 0
    s_cselect_b32 s58, 0x10000000, 0""")

def chk4(m, r, first=False):
    if first: return [f'v_max3_u32 v{m}, v{r}, v{r+1}, v{r+2}', f'v_max_u32 v{m}, v{m}, v{r+3}']
    return [f'v_max3_u32 v{m}, v{m}, v{r}, v{r+1}', f'v_max3_u32 v{m}, v{m}, v{r+2}, v{r+3}']

def redo_if_bad(a, m, REDO, EXIT):
    a(f"""v_cmp_eq_u32 vcc, -1, v{m}
    s_cbranch_vccnz {REDO}""")

def vote_pre(a, vfl, vdw, vt):
    a(f"""v_cmp_eq_u32 vcc, 0, v{vfl}
    s_nop 1
    v_mov_b32 v{vt}, vcc_lo
    v_or_b32 v{vt}, vcc_hi, v{vt}
    ds_write_b32 v{vdw}, v{vt}
    s_waitcnt lgkmcnt(0)""")

def vote_post(a, vdr, vt, between=()):
    a(f'ds_read_b32 v{vt}, v{vdr}')
    for x in between: a(x)
    a(f"""s_waitcnt lgkmcnt({len([x for x in between if x.startswith('ds_')])})
    v_readfirstlane_b32 s20, v{vt}
    s_cmp_eq_u32 s20, 0
    s_cselect_b32 s{S_HAVE}, 1, 0
    s_cselect_b32 s58, 0x10000000, 0""")

def chk2(m, r0, r1, first=False):
    return f'v_max_u32 v{m}, v{r0}, v{r1}' if first else f'v_max3_u32 v{m}, v{m}, v{r0}, v{r1}'

def sched(a, main, lanes):
    F = {}
    for start, step, ins in lanes:
        for k, x in enumerate(ins): F.setdefault(start+k*step, []).append(x)
    for x in interleave(main, F): a(x)

SPEC = 1
def wait_spec(a, voff, soff, vd, EXIT, setup, loads, n):
    L = a.label('Lws')
    a(f'{L}:')
    setup()
    a(f'buffer_load_dword v{vd}, v{voff}, {SRD}, s{soff} offen sc1')
    loads()
    a(f"""s_sub_u32 s{S_TO}, s{S_TO}, 1
    s_cbranch_scc1 {EXIT}
    s_waitcnt vmcnt({n})
    v_cmp_eq_u32 vcc, 0, v{vd}
    s_cbranch_vccnz {L}""")

HOLD = 0
OUTSC = 1
HLOC = 1
WBL = 0
PRET = 0
LAYOUT = 1
def vx_role(a, EXIT, stamps=0):
    a('; ================= VX role =================')
    acc, xr, o, m = 16, 72, 96, 106
    common_setup(a)
    sched_setup(a, 'VX')
    need_head(a, 1, EXIT)
    a(f'''s_mul_i32 s20, s{S_P}, 28
    s_mul_i32 s21, s{S_W}, 7
    s_add_u32 s30, s20, s21
    s_mul_i32 s20, s30, 14336
    s_add_u32 s20, s20, {WV}''')
    load_frags(a, 98, 20, w4)
    a(f'''s_lshl_b32 s30, s30, 10
    s_mul_i32 s31, s{S_W}, 7168
    v_and_b32 v8, 7, v7
    v_min_u32 v8, 6, v8
    v_lshlrev_b32 v8, 7, v8
    v_min_u32 v3, 55, v7
    v_lshlrev_b32 v3, 7, v3
    s_mov_b32 s{S_K}, 0''')
    all_done(a, EXIT)
    pipe_setup(a, 10, 11)
    merged_task(a, D_V, EXIT)
    st = Stamps(a, stamps)
    LOOP = a.label('Lvx'); NW = a.label('Lnw'); HV = a.label('Lhv'); GO = a.label('Lgo'); REDO = a.label('Lredo'); RUN = a.label('Lrun')
    def src(ls, buf_expr):
        a(f'''s_mul_i32 s22, s{ls}, {XN_SEG}
        s_add_u32 s22, s22, s31
        s_add_u32 s22, s22, {XN}
        {buf_expr}
        s_add_u32 s23, s23, s31''')
    def lookahead():
        NJ = a.label('Lnj')
        a(f's_add_u32 s{S_K}, s{S_K}, 1\ns_mov_b32 s25, {ZEROS}')
        merged_task(a, D_V, NJ, S_NL, S_NS, S_NLS)
        flag_off(a, 25, F_XN, S_NLS)
        a(f'''s_cmp_eq_u32 s{S_NL}, 0
        s_cselect_b32 s25, {ONES}, s25
        {NJ}:
        buffer_load_dword v9, v8, {SRD}, s25 offen sc1''')
    lookahead()
    a(f'{LOOP}:')
    st.mark()
    a(f's_cmp_eq_u32 s{S_HAVE}, 1\ns_cbranch_scc1 {HV}')
    flush(a)
    a(f's_cmp_eq_u32 s{S_L}, 0\ns_cbranch_scc1 {NW}')
    if SPEC & 2:
        flag_off(a, 26, F_XN)
        wait_spec(a, 8, 26, 12, EXIT, lambda: src(S_LS, f's_mov_b32 s23, s{S_BUF}'), lambda: dma_frags(a, 7, 22, 23), 7)
        a(f's_branch {NW}_j')
    else:
        flag_off(a, 22, F_XN)
        wait_flags(a, 8, 22, 12, EXIT)
    a(f'{NW}:')
    src(S_LS, f's_mov_b32 s23, s{S_BUF}')
    dma_frags(a, 7, 22, 23)
    a(f'{NW}_j:\nbuffer_load_dword v9, v8, {SRD}, s25 offen sc1')
    a(f's_waitcnt vmcnt(0)\ns_branch {GO}\n{HV}:\ns_waitcnt vmcnt(7)\n{GO}:')
    st.mark()
    a(f'''v_add_u32 v2, s{S_BUF}, v1
    s_mul_i32 s24, s{S_LS}, {VX_SEG}
    s_add_u32 s24, s24, s30
    s_add_u32 s24, s24, {VX}
    {RUN}:''')
    src(S_NLS, f's_xor_b32 s23, s{S_BUF}, 28672')
    vote_pre(a, 9, 10, 12)
    a('s_barrier')
    st.mark()
    def rd(ks): return [f'ds_read_b128 {vr(xr+8*(ks%3)+4*rt,4)}, v2 offset:{(rt*14+ks)*1024}' for rt in range(2)]
    vote_post(a, 11, 12, rd(0) + rd(1))
    main = []; lanes = []
    dl = dma_list(7, 22, 23, SRD2)
    for ks in range(14):
        b = 14*ks
        for t in range(7):
            for rt in range(2):
                main.append(mf(vr(acc+28*rt+4*t,4), vr(xr+8*(ks%3)+4*rt,4), w4(t*14+ks), 0 if ks == 0 else None))
        lanes.append((b-1, 1, [f's_waitcnt lgkmcnt({2 if ks < 13 else 0})']))
        if ks+2 < 14: lanes.append((b, 3, rd(ks+2)))
        lanes.append((b+1, 1, [chk2(m, xr+8*(ks%3), xr+8*(ks%3)+4, ks == 0)]))
        if ks < 7: lanes.append((b+6, 1, dl[ks][0] + [dl[ks][1]]))
    if PRET & 1:
        lanes.append((14*8+6, 1, [f's_mul_i32 s26, s{S_NLS}, {VX_SEG}', 's_add_u32 s26, s26, s30', f's_add_u32 s26, s26, {VX}', f'buffer_load_dword v107, v3, {SRD}, s26 offen']))
    lanes.append((14*5+4, 1, ['s_waitcnt vmcnt(5)\ns_barrier', f'buffer_store_dword v15, v14, {SRD}, s{S_PEND} offen sc1', f's_mov_b32 s{S_PEND}, {DUMMY}']))
    sched(a, main, lanes)
    st.mark()
    redo_if_bad(a, m, REDO, EXIT)
    pend_flag(a, F_VX, S_P)
    st.flush(104, 20, S_LS); st.n = 0
    a(f'''s_mov_b32 s{S_L}, s{S_NL}
    s_mov_b32 s{S_S}, s{S_NS}
    s_mov_b32 s{S_LS}, s{S_NLS}
    s_xor_b32 s{S_BUF}, s{S_BUF}, 28672
    s_mov_b32 s35, s{S_NS}''')
    lookahead()
    for t in range(7):
        O = o+4*(t & 1)
        for rt in range(2):
            A = acc+28*rt+4*t
            a(f'v_cvt_pk_bf16_f32 v{O+2*rt}, v{A}, v{A+1}\nv_cvt_pk_bf16_f32 v{O+2*rt+1}, v{A+2}, v{A+3}')
        a(f'buffer_store_dwordx4 {vr(O,4)}, v1, {SRD}, s24 offen offset:{(t&3)*1024} sc1')
        if t == 3: a('s_add_u32 s24, s24, 4096')
    st.mark()
    a(f's_cmp_lt_u32 s35, 64\ns_cbranch_scc1 {LOOP}')
    flush(a)
    if stamps: stamp_dump(a, EXIT)
    else: a(f's_branch {EXIT}')
    a(f'{REDO}:\ns_sub_u32 s{S_TO}, s{S_TO}, 64\ns_cbranch_scc1 {EXIT}\ns_barrier')
    src(S_LS, f's_mov_b32 s23, s{S_BUF}')
    dma_frags(a, 7, 22, 23)
    a(f's_waitcnt vmcnt(0)\ns_branch {RUN}')
    st.n = 0

def p_role(a, EXIT, stamps=0):
    a('; ================= P role =================')
    PART = 65536
    SW = 4096
    acc, qr, xk, s4, m, ninf = 16, 44, 84, 112, 116, 117
    TB = lambda rt, u: 56 + 14*rt + 2*u - (0 if u == 0 else 0)
    TBP = lambda rt, p: 56 + 14*rt + 2 + 4*p
    S_XP, S_XS, S_MP, S_MS = 30, 31, 32, 33
    CM = 82
    WD = a.label('Lpwd')
    a(f's_mov_b32 s23, 0\ns_branch {WD}\n{chain.P_ENTRY}:\ns_mov_b32 s{S_U}, 3\ns_mov_b32 s23, 1\n{WD}:')
    common_setup(a)
    sched_setup(a, 'P')
    a(f"""s_cmp_eq_u32 s23, 1
    s_cbranch_scc1 {WD}_skip""")
    if HOLD: hold_back(a, EXIT, skip=f's_cmp_lt_u32 s{S_U}, 2')
    need_head(a, 0, EXIT)
    a(f"""s_mul_i32 s20, s{S_P}, 28
    s_mul_i32 s21, s{S_W}, 7
    s_add_u32 s20, s20, s21
    s_and_b32 s22, s{S_W}, 1
    s_add_u32 s21, s20, s22
    s_mul_i32 s21, s21, 14336
    s_add_u32 s21, s21, {WA}
    s_xor_b32 s22, s22, 1
    s_mul_i32 s22, s22, 6
    s_add_u32 s20, s20, s22
    s_mul_i32 s20, s20, 14336
    s_add_u32 s20, s20, {WA}""")
    load_frags(a, 14, 20, w4)
    load_frags(a, 84, 21, lambda i: w4(14+i), start=14)
    a(f"""{WD}_skip:
    s_mul_i32 s20, s{S_W}, 7
    s_add_u32 s20, s20, 1
    s_lshr_b32 s20, s20, 1
    s_lshr_b32 s21, s{S_W}, 1
    s_mul_i32 s21, s21, 7
    s_add_u32 s21, s21, 3
    s_lshl_b32 s{S_XP}, s20, 10
    s_lshl_b32 s{S_XS}, s21, 10
    s_lshl_b32 s{S_MP}, s20, 9
    s_lshl_b32 s{S_MS}, s21, 9
    s_and_b32 s22, s{S_W}, 1
    s_lshl_b32 s34, s22, 3
    v_lshrrev_b32 v10, 4, v7
    v_and_b32 v11, 15, v7
    v_and_b32 v3, 7, v7
    v_min_u32 v8, 6, v3
    v_lshlrev_b32 v8, 7, v8
    v_lshlrev_b32 v3, 4, v3
    v_lshl_add_u32 v3, v10, 7, v3
    v_add_u32 v4, s34, v3
    v_mul_u32_u24 v5, 272, v10
    v_lshl_add_u32 v5, v11, 4, v5
    s_lshl_b32 s20, s{S_W}, 12
    s_add_u32 s20, s20, {PART}
    v_add_u32 v5, s20, v5
    s_lshl_b32 s20, s{S_W}, 2
    v_add_u32 v12, s20, v10
    v_min_u32 v6, 11, v11
    v_mul_u32_u24 v6, 272, v6
    v_lshl_add_u32 v6, v12, 4, v6
    v_add_u32 v6, {PART}, v6
    s_lshl_b32 s20, s{S_P}, 11
    v_and_b32 v13, 3, v11
    v_lshlrev_b32 v13, 8, v13
    v_lshl_add_u32 v13, v12, 4, v13
    v_lshrrev_b32 v9, 2, v11
    v_lshl_add_u32 v9, v9, 3, v13
    v_add_u32 v9, s20, v9
    s_lshr_b32 s20, s{S_P}, 2
    s_lshl_b32 s20, s20, 11
    s_add_u32 s20, s20, 32768
    s_and_b32 s21, s{S_P}, 2
    s_lshl_b32 s21, s21, 8
    s_add_u32 s20, s20, s21
    s_and_b32 s21, s{S_P}, 1
    s_lshl_b32 s21, s21, 3
    s_add_u32 s20, s20, s21
    v_add_u32 v13, s20, v13
    v_cmp_gt_u32 vcc, 8, v11
    v_cmp_gt_u32 s[22:23], 10, v11
    v_lshlrev_b32 v10, 2, v11
    v_cndmask_b32 v9, v13, v9, vcc
    v_mov_b32 v13, {OOB}
    v_cndmask_b32 v9, v13, v9, s[22:23]
    v_mov_b32 v13, 64
    v_cndmask_b32 v13, v13, 0, s[22:23]
    v_cndmask_b32 v10, v13, v10, vcc
    v_mov_b32 v{ninf}, 0xff800000""")
    for rt in range(2):
        for r in range(4):
            c = CM + 2*(4*rt+r)
            a(f"""v_add_u32 v13, {r}, v10
            v_cndmask_b32 v13, v10, v13, vcc
            v_add_u32 v2, {16*rt}, v12
            v_cmp_le_u32 s[{c}:{c+1}], v13, v2""")
    pipe_setup(a, 10, 11)
    a(f's_mul_i32 s29, s{S_W}, 7168\ns_mov_b32 s{S_K}, 0')
    all_done(a, EXIT)
    merged_task(a, D_P, EXIT)
    XK = lambda u, kt: xk + (2*kt if u == 0 else 4 + 8*(u-1) + 4*kt)
    def src(ls, buf_expr):
        a(f"""s_mul_i32 s22, s{ls}, {XN_SEG}
        s_add_u32 s22, s22, s29
        s_add_u32 s22, s22, {XN}
        {buf_expr}
        s_add_u32 s23, s23, s29""")
    def lookahead():
        NJ = a.label('Lnj')
        a(f's_add_u32 s{S_K}, s{S_K}, 1\ns_mov_b32 s36, {ZEROS}')
        merged_task(a, D_P, NJ, S_NL, S_NS, S_NLS)
        flag_off(a, 36, F_XN, S_NLS)
        a(f"""s_cmp_eq_u32 s{S_NL}, 0
        s_cselect_b32 s36, {ONES}, s36
        {NJ}:
        buffer_load_dword v12, v8, {SRD}, s36 offen sc1""")
    st = Stamps(a, stamps)
    LOOP = a.label('Lp'); NW = a.label('Lnw'); HV = a.label('Lhv'); REDO = a.label('Lredo')
    lookahead()
    a(f'{LOOP}:')
    st.mark()
    a(f's_cmp_eq_u32 s{S_HAVE}, 1\ns_cbranch_scc1 {HV}')
    a(f's_cmp_eq_u32 s{S_L}, 0\ns_cbranch_scc1 {NW}')
    flag_off(a, 22, F_XN)
    wait_flags(a, 8, 22, 118, EXIT)
    a(f'{NW}:')
    src(S_LS, f's_mov_b32 s23, s{S_BUF}')
    dma_frags(a, 7, 22, 23)
    a(f'buffer_load_dword v12, v8, {SRD}, s36 offen sc1\ns_waitcnt vmcnt(0)\n{HV}:')
    a(f"""v_add_u32 v13, s{S_BUF}, v1
    s_lshl_b32 s27, s{S_LS}, 13
    s_add_u32 s27, s27, {MEMG}
    s_add_u32 s28, s27, s{S_MS}
    s_add_u32 s27, s27, s{S_MP}
    s_mul_i32 s24, s{S_LS}, {PF_SEG}
    s_add_u32 s24, s24, {PF}
    v_add_u32 v2, s{S_XP}, v13
    v_add_u32 v7, s{S_XS}, v13
    v_add_u32 v7, s34, v7""")
    src(S_NLS, f's_xor_b32 s23, s{S_BUF}, 32768')
    a('s_waitcnt vmcnt(3)')
    vote_pre(a, 12, 10, 118)
    a('s_barrier')
    st.mark()
    def rd(i): return f'ds_read_b128 {vr(qr+4*(i%3),4)}, v13 offset:{i*1024}'
    vote_post(a, 11, 118, [rd(0), rd(1)])
    kl = []
    for kt in range(2):
        kl.append(f'ds_read_b64 {vr(XK(0,kt),2)}, v7 offset:{kt*14336}')
        kl += [f'ds_read_b128 {vr(XK(u,kt),4)}, v2 offset:{kt*14336+(u-1)*1024}' for u in range(1, 4)]
    MK = lambda u: (118, qr+8, qr, qr+4)[u]
    mkl = [f'buffer_load_dwordx2 {vr(MK(0),2)}, v4, {SRD}, s28 offen sc1'] + [f'buffer_load_dwordx4 {vr(MK(u),4)}, v3, {SRD}, s27 offen offset:{(u-1)*512} sc1' for u in range(1, 4)]
    def cvts(rt): return [x for u in range(7) for x in (f'v_cvt_pk_bf16_f32 v{TB(rt,u)}, v{acc+4*u}, v{acc+4*u+1}', f'v_cvt_pk_bf16_f32 v{TB(rt,u)+1}, v{acc+4*u+2}, v{acc+4*u+3}')]
    def score(D, D2, K, rt):
        return [mf(vr(D,4), vr(K(1),4), vr(TBP(rt,0),4), 0), f'v_mfma_f32_16x16x16_bf16 {vr(D2,4)}, {vr(K(0),2)}, {vr(TB(rt,0),2)}, 0',
                mf(vr(D,4), vr(K(2),4), vr(TBP(rt,1),4)), mf(vr(D,4), vr(K(3),4), vr(TBP(rt,2),4))]
    def stream(rt, extra):
        main = []; lanes = list(extra)
        for ks in range(14):
            i = 14*rt+ks; b = 7*ks
            main += [mf(vr(acc+4*u,4), w4(u*14+ks), vr(qr+4*(i%3),4), 0 if ks == 0 else None) for u in range(7)]
            lanes.append((b-1, 1, [f's_waitcnt lgkmcnt({0 if i == 27 else 1})']))
            if i+2 < 28: lanes.append((b+5, 1, [rd(i+2)]))
            lanes.append((b+1, 1, [f'v_mov_b32 v{m}, v{qr}' if i == 0 else f'v_max_u32 v{m}, v{m}, v{qr+4*(i%3)}']))
        sched(a, main, lanes)
    dl = dma_list(7, 22, 23, SRD2)
    ex = [(7*k+2, 1, [kl[k]]) for k in range(8)]
    for k in range(4): ex.append((7*(3*k+1)+3, 7, ['\n'.join(dl[k][0]) or 's_nop 0', dl[k][1]]))
    stream(0, ex)
    st.mark(2)
    a('s_nop 0')
    for x in cvts(0): a(x)
    s0 = [f'v_mfma_f32_16x16x16_bf16 {vr(s4,4)}, {vr(XK(0,0),2)}, {vr(TB(0,0),2)}, 0'] + [mf(vr(s4,4), vr(XK(u,0),4), vr(TBP(0,u-1),4)) for u in range(1, 4)]
    ex = [(2, 1, [s0[0]]), (16, 1, s0[1:]), (30, 1, [f'ds_write_b128 v5, {vr(s4,4)}'])]
    for k in range(4, 7): ex.append((7*(3*(k-4)+1)+3, 7, ['\n'.join(dl[k][0]) or 's_nop 0', dl[k][1]]))
    MK = lambda u: (118, qr+4, qr+8, qr)[u]
    mkl = [f'buffer_load_dwordx2 {vr(MK(0),2)}, v4, {SRD}, s28 offen sc1'] + [f'buffer_load_dwordx4 {vr(MK(u),4)}, v3, {SRD}, s27 offen offset:{(u-1)*512} sc1' for u in range(1, 4)]
    ex += [(7*12+2, 1, [mkl[0]]), (7*12+4, 1, [mkl[1]]), (7*13+2, 1, [mkl[2]]), (7*13+6, 1, [mkl[3]])]
    stream(1, ex)
    redo_if_bad(a, m, REDO, EXIT)
    for x in cvts(1): a(x)
    st.mark()
    d0, d1, e0, e1, t = acc, acc+4, acc+8, acc+12, s4
    sa = score(d0, e0, lambda u: XK(u, 0), 1); sb = score(d1, e1, lambda u: XK(u, 1), 1)
    for x, y in zip(sa, sb): a(x); a(y)
    a(f"""s_mov_b32 s37, s{S_LS}
    s_mov_b32 s{S_L}, s{S_NL}
    s_mov_b32 s{S_LS}, s{S_NLS}
    s_xor_b32 s{S_BUF}, s{S_BUF}, 32768
    s_mov_b32 s35, s{S_NS}""")
    lookahead()
    for r in range(4): a(f'v_add_f32 v{d0+r}, v{d0+r}, v{e0+r}')
    a(f'ds_write_b128 v5, {vr(d0,4)} offset:16384')
    for r in range(4): a(f'v_add_f32 v{d1+r}, v{d1+r}, v{e1+r}')
    a(f'ds_write_b128 v5, {vr(d1,4)} offset:{16384+1088}')
    L = a.label('Lpmk'); LC = a.label('Lpc')
    def check():
        a(f"""v_max3_u32 v{t}, v118, v119, v{qr}
        v_max3_u32 v{t+1}, v{qr+1}, v{qr+2}, v{qr+3}
        v_max3_u32 v{t}, v{t}, v{qr+4}, v{qr+5}
        v_max3_u32 v{t+1}, v{t+1}, v{qr+6}, v{qr+7}
        v_max3_u32 v{t}, v{t}, v{qr+8}, v{qr+9}
        v_max3_u32 v{t+1}, v{t+1}, v{qr+10}, v{qr+11}
        v_max_u32 v{t}, v{t}, v{t+1}
        v_cmp_eq_u32 vcc, -1, v{t}""")
    st.mark(2)
    a('s_waitcnt vmcnt(1)')
    check()
    a(f's_cbranch_vccz {LC}\n{L}:')
    for x in mkl: a(x)
    a(f"""s_sub_u32 s{S_TO}, s{S_TO}, 1
    s_cbranch_scc1 {EXIT}
    s_waitcnt vmcnt(0)""")
    check()
    a(f's_cbranch_vccnz {L}\n{LC}:')
    st.mark()
    d0, d1, e0, e1 = acc+16, acc+20, acc+8, acc+12
    sa = score(d0, e0, MK, 0); sb = score(d1, e1, MK, 1)
    for x, y in zip(sa, sb): a(x); a(y)
    a(f"""s_mul_i32 s21, s37, {flag_seg(F_P)}
    s_lshl_b32 s20, s{S_P}, 7
    s_add_u32 s21, s21, s20
    s_add_u32 s21, s21, {flag_base(F_P)}
    s_nop 2""")
    for r in range(4): a(f'v_add_f32 v{d0+r}, v{d0+r}, v{e0+r}')
    a(f'ds_write_b128 v5, {vr(d0,4)} offset:2176')
    for r in range(4): a(f'v_add_f32 v{d1+r}, v{d1+r}, v{e1+r}')
    a(f'ds_write_b128 v5, {vr(d1,4)} offset:{16384+2176}')
    st.mark(2)
    a('s_waitcnt lgkmcnt(0)\ns_barrier')
    st.mark(2)
    RR = [56, 84]
    for rt in range(2):
        for w in range(4): a(f'ds_read_b128 {vr(RR[rt]+4*w,4)}, v6 offset:{rt*16384+w*SW}')
    for rt in range(2):
        R = RR[rt]
        a(f"""s_waitcnt lgkmcnt({4-4*rt})
        v_pk_add_f32 {vr(R,2)}, {vr(R,2)}, {vr(R+4,2)}
        v_pk_add_f32 {vr(R+2,2)}, {vr(R+2,2)}, {vr(R+6,2)}
        v_pk_add_f32 {vr(R+8,2)}, {vr(R+8,2)}, {vr(R+12,2)}
        v_pk_add_f32 {vr(R+10,2)}, {vr(R+10,2)}, {vr(R+14,2)}
        v_pk_add_f32 {vr(R,2)}, {vr(R,2)}, {vr(R+8,2)}
        v_pk_add_f32 {vr(R+2,2)}, {vr(R+2,2)}, {vr(R+10,2)}""")
        for r in range(4): a(f'v_cndmask_b32 v{R+r}, v{ninf}, v{R+r}, s[{CM+2*(4*rt+r)}:{CM+2*(4*rt+r)+1}]')
    st.mark(2)
    def both(f):
        for R in RR: a(f(R))
    both(lambda R: f'v_max3_f32 v{R+4}, v{R}, v{R+1}, v{R+2}')
    both(lambda R: f'v_max_f32 v{R+4}, v{R+4}, v{R+3}')
    for k in (8, 4, 2, 1):
        a('s_nop 0'); both(lambda R: f'v_max_f32_dpp v{R+4}, v{R+4}, v{R+4} row_ror:{k} {DPP}')
    for r in range(4): both(lambda R: f'v_sub_f32 v{R+r}, v{R+r}, v{R+4}')
    for r in range(4): both(lambda R: f'v_exp_f32 v{R+r}, v{R+r}')
    both(lambda R: f'v_add_f32 v{R+4}, v{R}, v{R+1}')
    both(lambda R: f'v_add_f32 v{R+5}, v{R+2}, v{R+3}')
    both(lambda R: f'v_add_f32 v{R+4}, v{R+4}, v{R+5}')
    for k in (8, 4, 2, 1):
        a('s_nop 0'); both(lambda R: f'v_add_f32_dpp v{R+4}, v{R+4}, v{R+4} row_ror:{k} {DPP}')
    both(lambda R: f'v_rcp_f32 v{R+4}, v{R+4}')
    a('s_nop 0')
    for rt, R in enumerate(RR):
        a(f"""v_pk_mul_f32 {vr(R,2)}, {vr(R+4,2)}, {vr(R,2)} op_sel_hi:[0,1]
        v_pk_mul_f32 {vr(R+2,2)}, {vr(R+4,2)}, {vr(R+2,2)} op_sel_hi:[0,1]
        v_cvt_pk_bf16_f32 v{s4+2*rt}, v{R}, v{R+1}
        v_cvt_pk_bf16_f32 v{s4+2*rt+1}, v{R+2}, v{R+3}
        v_min_u32 v{s4+2*rt}, 0xfffffffe, v{s4+2*rt}
        buffer_store_dwordx2 {vr(s4+2*rt,2)}, v9, {SRD}, s24 offen offset:{1024*rt} sc1""")
    a(f's_barrier\nbuffer_store_dword v15, v14, {SRD}, s21 offen sc1')
    st.mark()
    st.flush(118, 20, 37)
    a(f's_cmp_lt_u32 s35, 64\ns_cbranch_scc1 {LOOP}')
    if stamps: stamp_dump(a, EXIT)
    else: a(f's_branch {EXIT}')
    a(f'{REDO}:\ns_sub_u32 s{S_TO}, s{S_TO}, 64\ns_cbranch_scc1 {EXIT}\ns_waitcnt lgkmcnt(0)\ns_barrier\ns_branch {NW}')

def rscatter(a, q):
    a(f'''s_nop 1
    v_permlane32_swap_b32 v{q}, v{q+2}
    v_permlane32_swap_b32 v{q+1}, v{q+3}
    v_add_f32 v{q}, v{q}, v{q+2}
    v_add_f32 v{q+1}, v{q+1}, v{q+3}
    s_nop 1
    v_permlane16_swap_b32 v{q}, v{q+1}
    v_add_f32 v{q}, v{q}, v{q+1}''')

def stats_partial(a, A, q):
    for rt in range(2):
        x = A+4*rt
        a(f'''v_add_f32 v{q+2*rt}, v{x}, v{x+1}
        v_mul_f32 v{q+2*rt+1}, v{x}, v{x}
        v_add_f32 v{q+2*rt}, v{q+2*rt}, v{x+2}
        v_fmac_f32 v{q+2*rt+1}, v{x+1}, v{x+1}
        v_add_f32 v{q+2*rt}, v{q+2*rt}, v{x+3}
        v_fmac_f32 v{q+2*rt+1}, v{x+2}, v{x+2}
        v_fmac_f32 v{q+2*rt+1}, v{x+3}, v{x+3}''')
    rscatter(a, q)

def stats_loads(G, vg, s_st, srd=SRD):
    return [f'buffer_load_dwordx4 {vr(G+4*i,4)}, v{vg}, {srd}, s{s_st} offen offset:{256*i} sc1' for i in range(7)]

def stats_check(a, G, t):
    a(f'''v_max3_u32 v{t}, v{G}, v{G+4}, v{G+8}
    v_max3_u32 v{t+1}, v{G+12}, v{G+16}, v{G+20}
    v_max3_u32 v{t}, v{t}, v{t+1}, v{G+24}
    v_cmp_eq_u32 vcc, -1, v{t}''')

def stats_finish(a, G, keep=None, pairs=((0, 1), (2, 3), (4, 5), (0, 2), (4, 6), (0, 4))):
    for (i, j) in pairs:
        a(f'v_pk_add_f32 {vr(G+4*i,2)}, {vr(G+4*i,2)}, {vr(G+4*j,2)}\nv_pk_add_f32 {vr(G+4*i+2,2)}, {vr(G+4*i+2,2)}, {vr(G+4*j+2,2)}')
    rscatter(a, G)
    a(f'''v_mov_b32 v{G+1}, v{G}
    s_nop 1
    v_permlane16_swap_b32 v{G}, v{G+1}
    v_mov_b32 v{G+2}, v{G}
    v_mov_b32 v{G+3}, v{G+1}
    s_mov_b32 s20, 0x3b124925
    s_mov_b32 s21, 0x3727c5ac
    v_permlane32_swap_b32 v{G}, v{G+2}
    v_permlane32_swap_b32 v{G+1}, v{G+3}''')
    for rt in range(2):
        m = G+2*rt; v = m+1
        a(f'''v_mul_f32 v{m}, s20, v{m}
        v_mul_f32 v{v}, s20, v{v}
        v_fma_f32 v{v}, -v{m}, v{m}, v{v}
        v_max_f32 v{v}, 0, v{v}
        v_add_f32 v{v}, s21, v{v}''')
        if keep is not None: a(f'v_sqrt_f32 v{keep+rt}, v{v}')
        a(f'v_rsq_f32 v{v}, v{v}')
    a('s_nop 0')

def sent4(a, r):
    for i in range(4): a(f'v_mov_b32 v{r+i}, -1')

def b1_role(a, EXIT, stamps=0, mode_fn=None):
    a('; ================= B1 role =================')
    W = lambda tt, ks: ar(4*(tt*14+ks), 4)
    ACC = lambda rt, tt: 48+16*rt+4*tt
    yr, o, cs, GS, MS, m, PK, SN = 16, 40, 80, 96, 152, 158, 160, 176
    common_setup(a)
    sched_setup(a, 'B1')
    if HOLD: hold_back(a, EXIT, skip=f's_cmp_eq_u32 s{S_U}, 0')
    a(f'''s_load_dwordx4 s[24:27], s[0:1], 64
    s_lshl_b32 s20, s{S_P}, 2
    s_add_u32 s30, s20, s{S_W}
    v_lshrrev_b32 v2, 2, v7
    v_mul_u32_u24 v2, 3584, v2
    v_and_b32 v3, 3, v7
    v_lshl_add_u32 v2, v3, 4, v2
    v_lshrrev_b32 v4, 4, v7
    v_lshlrev_b32 v5, 9, v4
    v_bfe_u32 v6, v7, 2, 2
    v_lshl_add_u32 v5, v6, 6, v5
    v_lshl_add_u32 v5, v3, 4, v5
    s_mul_i32 s31, s{S_W}, 28672
    v_add_u32 v5, s31, v5
    v_and_b32 v6, 15, v7
    v_lshlrev_b32 v13, 4, v6
    v_lshl_add_u32 v13, v4, 9, v13
    v_add_u32 v6, 256, v13
    v_cmp_gt_u32 vcc, 3, v4
    v_mov_b32 v4, {OOB}
    v_mov_b32 v3, v6
    v_cndmask_b32 v6, v4, v3, vcc
    s_waitcnt lgkmcnt(0)
    s_mov_b32 s36, s24
    s_mov_b32 s37, s25
    s_mov_b32 s38, {448*3584}
    s_mov_b32 s39, 0x20000
    s_mov_b32 s48, s26
    s_mov_b32 s49, s27
    s_mov_b32 s50, {448*3584}
    s_mov_b32 s51, 0x20000
    s_lshl_b32 s22, s30, 6''')
    for rr in range(2):
        a(f's_mov_b32 s23, s31')
        for k in range(7):
            for mat in range(2):
                for hf in range(2):
                    a(f'''s_mov_b32 m0, s23
                    s_add_u32 s21, s22, {(32*(7*rr+k)+16*hf)*3584}
                    buffer_load_dwordx4 v2, s[{36+12*mat}:{39+12*mat}], s21 offen lds
                    s_add_u32 s23, s23, 1024''')
        for k in range(7):
            a(f's_waitcnt vmcnt({4*(6-k)})')
            for mat in range(2):
                for t2 in range(2):
                    for jh in range(2):
                        b = 4*((2*mat+t2)*14+7*rr+k)+2*jh
                        a(f'ds_read_b64_tr_b16 {ar(b,2)}, v5 offset:{k*4096+mat*2048+jh*256+t2*8}')
            a('s_waitcnt lgkmcnt(0)')
    a('s_barrier')
    for r in range(4): a(f'v_mov_b32 v{yr+r}, 0x3f803f80')
    sent4(a, SN)
    for ks in range(14):
        for tt in range(4): a(mf(vr(cs+4*tt,4), W(tt,ks), vr(yr,4), 0 if ks == 0 else None))
    a(f'''s_lshl_b32 s30, s30, 10
    s_mul_i32 s31, s{S_W}, 7168
    s_mov_b32 s33, 0xbfb8aa3b
    s_mov_b32 s34, 0x3b124925
    s_mov_b32 s35, 0x3727c5ac
    s_mov_b32 s{S_K}, 0''')
    all_done(a, EXIT)
    mode_fn(16, 17, 28 if LAYOUT else 32)
    def variant(SC):
        LF = a.label('Lpf'); LFD = a.label('Lpfd'); DONE = a.label('Ldone')
        a(f'{LF}:')
        merged_task(a, D_B1, LFD)
        a(f'''s_add_u32 s{S_K}, s{S_K}, 1
        s_mul_i32 s24, s{S_LS}, {HF_SEG}
        s_add_u32 s24, s24, s30
        s_add_u32 s24, s24, {HF}
        s_add_u32 s25, s24, {56*1024}
        buffer_store_dwordx4 {vr(SN,4)}, v1, {SRD}, s24 offen {SC}
        buffer_store_dwordx4 {vr(SN,4)}, v1, {SRD}, s25 offen {SC}
        s_cmp_lt_u32 s{S_K}, 4
        s_cbranch_scc1 {LF}
        {LFD}:
        s_mov_b32 s{S_K}, 0''')
        st = Stamps(a, stamps)
        G = GS; G2 = GS+8
        LOOP = a.label('Lb1'); LD = a.label('Lld'); SP = a.label('Lsp'); SOK = a.label('Lsok'); REDO = a.label('Lredo'); HV = a.label('Lhv'); GO = a.label('Lgo')
        pipe_setup(a, 10, 11)
        def nxt_calc():
            return task_calc(S_NL, S_NS, S_NLS) + [f's_lshl_b32 s27, s{S_NL}, 6', f's_add_u32 s27, s27, s{S_NLS}', 's_lshl_b32 s27, s27, 13', f's_add_u32 s27, s27, {ST}',
                    f's_mul_i32 s28, s{S_NLS}, {XN_SEG}', 's_add_u32 s28, s28, s31', f's_add_u32 s28, s28, {YN}', f's_xor_b32 s29, s{S_BUF}, 32768', 's_add_u32 s29, s29, s31',
                    f's_cmp_lt_u32 s{S_NS}, 64\ns_cselect_b32 s58, 0x10000000, 0']
        def sl(G, s, srd): return [f'buffer_load_dwordx4 {vr(G,4)}, v13, {srd}, s{s} offen sc1', f'buffer_load_dwordx4 {vr(G+4,4)}, v6, {srd}, s{s} offen sc1']
        a(f's_mov_b32 s{S_BUF}, 32768')
        for x in nxt_calc(): a(x)
        a(f'{LOOP}:')
        st.mark()
        a(f"""s_mov_b32 s{S_LS}, s{S_NLS}
        s_mov_b32 s26, s27
        s_xor_b32 s{S_BUF}, s{S_BUF}, 32768
        s_mul_i32 s24, s{S_LS}, {HF_SEG}
        s_add_u32 s24, s24, s30
        s_add_u32 s24, s24, {HF}
        s_add_u32 s25, s24, {56*1024}
        v_add_u32 v5, s{S_BUF}, v1
        s_add_u32 s{S_K}, s{S_K}, 1
        s_cmp_eq_u32 s{S_HAVE}, 1
        s_cbranch_scc1 {HV}
        {LD}:
        s_mul_i32 s22, s{S_LS}, {XN_SEG}
        s_add_u32 s22, s22, s31
        s_add_u32 s22, s22, {YN}
        s_add_u32 s23, s31, s{S_BUF}
        {SP}:""")
        for x in sl(G2, 26, SRD): a(x)
        if SPEC & 1:
            dma_frags(a, 7, 22, 23)
            a(f"""s_sub_u32 s{S_TO}, s{S_TO}, 1
            s_cbranch_scc1 {EXIT}
            s_waitcnt vmcnt(7)
            v_max_u32 v2, v{G2}, v{G2+4}
            v_cmp_eq_u32 vcc, -1, v2
            s_cbranch_vccnz {LD}""")
        else:
            a(f"""s_sub_u32 s{S_TO}, s{S_TO}, 1
            s_cbranch_scc1 {EXIT}
            s_waitcnt vmcnt(0)
            v_max_u32 v2, v{G2}, v{G2+4}
            v_cmp_eq_u32 vcc, -1, v2
            s_cbranch_vccz {SOK}
            s_sleep 1
            s_branch {SP}
            {SOK}:""")
            dma_frags(a, 7, 22, 23)
        a(f's_mov_b32 s{S_HAVE}, 0\n{HV}:')
        a(f'v_pk_add_f32 {vr(G,2)}, {vr(G2,2)}, {vr(G2+4,2)}\nv_pk_add_f32 {vr(G+2,2)}, {vr(G2+2,2)}, {vr(G2+6,2)}')
        sf = Asm(); stats_finish(sf, G, MS+4, ())
        for x in sf.lines:
            if 's_mov' not in x: a(x.replace('s20', 's34').replace('s21', 's35'))
        for rt in range(2):
            P = PK+6*rt
            a(f"""v_sub_f32 v{P}, 0, v{G+2*rt}
            v_mul_f32 v{P+2}, s33, v{G+2*rt+1}
            v_mov_b32 v{P+4}, v{MS+4+rt}""")
            for k in range(8): a(f'v_pk_mul_f32 {vr(ACC(rt,0)+2*k,2)}, {vr(P,2)}, {vr(cs+2*k,2)} op_sel_hi:[0,1]')
        a(f"""s_cmp_eq_u32 s{S_HAVE}, 1
        s_cbranch_scc1 {GO}
        s_waitcnt vmcnt(0)
        {GO}:
        s_waitcnt vmcnt(3)
        s_barrier""")
        st.mark()
        def rd(i): return f'ds_read_b128 {vr(yr+4*(i%6),4)}, v5 offset:{i*1024}'
        for i in range(4): a(rd(i))
        def epi(rt, pk):
            P = PK+6*rt; A = ACC(rt, 0); out = []
            if pk: out += [f'v_pk_mul_f32 {vr(A+2*k,2)}, {vr(P+2,2)}, {vr(A+2*k,2)} op_sel_hi:[0,1]' for k in range(4)]
            else: out += [f'v_mul_f32 v{A+k}, v{P+2}, v{A+k}' for k in range(8)]
            out += [f'v_exp_f32 v{A+k}, v{A+k}' for k in range(8)]
            if pk: out += [f'v_pk_fma_f32 {vr(A+2*k,2)}, {vr(A+2*k,2)}, {vr(P+4,2)}, {vr(P+4,2)} op_sel_hi:[1,0,0]' for k in range(4)]
            else: out += [f'v_fma_f32 v{A+k}, v{A+k}, v{P+4}, v{P+4}' for k in range(8)]
            out += [f'v_rcp_f32 v{A+k}, v{A+k}' for k in range(8)]
            if pk: out += [f'v_pk_mul_f32 {vr(A+2*k,2)}, {vr(A+2*k,2)}, {vr(A+8+2*k,2)}' for k in range(4)]
            else: out += [f'v_mul_f32 v{A+k}, v{A+k}, v{A+8+k}' for k in range(8)]
            out += [f'v_cvt_pk_bf16_f32 v{o+4*rt+d}, v{A+2*d}, v{A+2*d+1}' for d in range(4)]
            out.append(f'v_min_u32 v{o+4*rt}, 0xfffffffe, v{o+4*rt}')
            return out
        main = []; lanes = []
        for i in range(28):
            rt, ks = divmod(i, 14); b = 4*i
            main += [mf(vr(ACC(rt,tt),4), W(tt,ks), vr(yr+4*(i%6),4)) for tt in range(4)]
            if i % 2 == 0: lanes.append((b-1, 1, [f's_waitcnt lgkmcnt({max(0, min(2, 26-i))})']))
            if i+4 < 28: lanes.append((b, 1, [rd(i+4)]))
            if i & 1: lanes.append((b-1, 1, [chk2(m, yr+4*((i-1)%6), yr+4*(i%6), i == 1)]))
        free = [p for p in range(1, 62) if p % 4 in (1, 2)]
        nc = nxt_calc(); nc = nc[:9] + nc[-1:] + sl(G2, 27, SRD2) + nc[9:-1]
        nc += [f's_and_b32 s36, s{S_LS}, 63', f's_add_u32 s37, s24, {4*HF_SEG}', f's_cmp_lt_u32 s36, 60\ns_cselect_b32 s37, s37, {DUMMY}',
               f'buffer_store_dwordx4 {vr(SN,4)}, v1, {SRD}, s37 offen {SC}', f's_add_u32 s37, s37, {56*1024}', f'buffer_store_dwordx4 {vr(SN,4)}, v1, {SRD}, s37 offen {SC}']
        assert len(nc) <= 23
        for p, x in zip(free, nc): lanes.append((p, 1, [x]))
        lanes.append((free[22], 1, [f's_waitcnt vmcnt(2)\nv_max_u32 v2, v{G2}, v{G2+4}']))
        lanes.append((free[23], 1, ['v_cmp_eq_u32 vcc, -1, v2']))
        lanes.append((free[24], 1, [f's_cmp_eq_u64 vcc, 0\ns_cselect_b32 s58, s58, 0\ns_cmp_lg_u32 s58, 0\ns_cselect_b32 s{S_HAVE}, 1, 0']))
        dl = dma_list(7, 28, 29, SRD2)
        for k in range(7): lanes.append((50+5*k, 1, ['\n'.join(dl[k][0] + [dl[k][1]])]))
        e0 = epi(0, False)
        pos = [p for p in range(62, 112) if (p % 4 != 0 or p >= 96) and not (p <= 80 and p % 5 == 0)]
        for p, x in zip(pos, e0): lanes.append((p, 1, [x]))
        sched(a, main, lanes)
        for x in e0[len(pos):]: a(x)
        st.mark()
        redo_if_bad(a, m, REDO, EXIT)
        a(f'buffer_store_dwordx4 {vr(o,4)}, v1, {SRD}, s24 offen {SC}\ns_nop 3')
        for x in epi(1, True): a(x)
        a(f'buffer_store_dwordx4 {vr(o+4,4)}, v1, {SRD}, s25 offen {SC}')
        hint(a, F_H, S_P, sc=SC)
        st.mark()
        st.flush(2, 20, S_LS)
        a(f's_cmp_lt_u32 s{S_NS}, 64\ns_cbranch_scc1 {LOOP}\n{DONE}:')
        if WBL: a(f's_cmp_lg_u32 s{S_W}, 0\ns_cbranch_scc1 {DONE}_w\ns_cmp_lg_u32 s{S_P}, 0\ns_cbranch_scc1 {DONE}_w\nbuffer_wbl2 sc1\ns_waitcnt vmcnt(0)\n{DONE}_w:')
        if stamps: stamp_dump(a, EXIT)
        else: a(f's_branch {EXIT}')
        a(f'{REDO}:\ns_sub_u32 s{S_TO}, s{S_TO}, 64\ns_cbranch_scc1 {EXIT}\ns_waitcnt vmcnt(0)\ns_barrier\ns_branch {LD}')
    SL = a.label('Lb1slow')
    a(f's_cmp_eq_u32 s{S_FAST}, 1\ns_cbranch_scc0 {SL}')
    variant('' if HLOC and LAYOUT else 'sc1')
    a(f'{SL}:')
    variant('sc1')

S_T = 30
def team_setup(a):
    a(f'''s_lshl_b32 s{S_T}, s{S_P}, 2
    s_add_u32 s{S_T}, s{S_T}, s{S_W}
    v_and_b32 v2, 15, v7
    v_lshrrev_b32 v3, 4, v7
    v_mul_u32_u24 v11, 896, v2
    s_lshl_b32 s20, s{S_T}, 5
    v_add_u32 v11, s20, v11
    v_lshl_add_u32 v10, v3, 3, v11
    v_lshlrev_b32 v12, 4, v2
    v_mul_u32_u24 v13, {7*256}, v3
    v_add_u32 v13, v13, v12
    v_lshl_add_u32 v12, v3, 2, v12
    s_lshl_b32 s20, s{S_T}, 8
    v_add_u32 v12, s20, v12
    v_lshrrev_b32 v4, 1, v3
    v_lshl_add_u32 v11, v4, 4, v11
    v_lshlrev_b32 v6, 8, v4
    v_lshl_add_u32 v6, v2, 4, v6
    s_lshl_b32 s20, s{S_T}, 9
    v_add_u32 v6, s20, v6
    v_and_b32 v4, 1, v3
    v_mul_u32_u24 v9, 14336, v4
    v_add_u32 v5, v6, v9
    v_add_u32 v11, v11, v9
    v_lshl_add_u32 v6, v4, 3, v6''')

def cu_stats_setup(a, lds):
    a(f"""v_lshlrev_b32 v169, 2, v7
    v_add_u32 v169, {lds}, v169
    s_lshl_b32 s20, s{S_W}, 8
    v_add_u32 v168, s20, v169
    v_lshlrev_b32 v13, 4, v2
    v_lshl_add_u32 v12, v3, 2, v13
    s_lshl_b32 s20, s{S_P}, 8
    v_add_u32 v12, s20, v12
    v_lshl_add_u32 v13, v3, 9, v13
    v_add_u32 v170, 256, v13
    v_mov_b32 v171, {OOB}
    v_cmp_gt_u32 vcc, 64, v0
    v_cmp_gt_u32 s[20:21], 3, v3
    s_nop 1
    v_cndmask_b32 v12, v171, v12, vcc
    v_cndmask_b32 v170, v171, v170, s[20:21]""")

def cu_stats(a, q):
    a(f"""ds_write_b32 v168, v{q}
    s_waitcnt lgkmcnt(0)
    s_barrier
    ds_read2st64_b32 {vr(q,2)}, v169 offset0:0 offset1:1
    ds_read2st64_b32 {vr(q+2,2)}, v169 offset0:2 offset1:3
    s_waitcnt lgkmcnt(0)
    v_add_f32 v{q}, v{q}, v{q+1}
    v_add_f32 v{q+2}, v{q+2}, v{q+3}
    v_add_f32 v{q}, v{q}, v{q+2}
    v_min_u32 v{q}, 0xfffffffe, v{q}""")

def add_residual(a, A, RS, XP):
    for rt in range(2):
        for d in range(2):
            x = A+4*rt+2*d; r = RS+2*rt+d
            a(f'''v_lshlrev_b32 v2, 16, v{r}
            v_and_b32 v3, 0xffff0000, v{r}
            v_add_f32 v{x}, v{x}, v2
            v_add_f32 v{x+1}, v{x+1}, v3
            v_cvt_pk_bf16_f32 v{XP+2*rt+d}, v{x}, v{x+1}
            v_lshlrev_b32 v{x}, 16, v{XP+2*rt+d}
            v_and_b32 v{x+1}, 0xffff0000, v{XP+2*rt+d}''')

def pair_swap(a, XP):
    a(f's_nop 1\nv_permlane16_swap_b32 v{XP}, v{XP+2}\nv_permlane16_swap_b32 v{XP+1}, v{XP+3}')

def res_valid(a, RS, s0, EXIT, t=2):
    L = a.label('Lrv'); OK = a.label('Lrok')
    a(f'''{L}:
    v_max3_u32 v{t}, v{RS}, v{RS+1}, v{RS+2}
    v_max_u32 v{t}, v{t}, v{RS+3}
    v_cmp_eq_u32 vcc, -1, v{t}
    s_cbranch_vccz {OK}
    buffer_load_dwordx2 {vr(RS,2)}, v6, {SRD}, s{s0} offen sc1
    buffer_load_dwordx2 {vr(RS+2,2)}, v6, {SRD}, s{s0+1} offen sc1
    s_sub_u32 s{S_TO}, s{S_TO}, 1
    s_cbranch_scc1 {EXIT}
    s_waitcnt vmcnt(0)
    s_branch {L}
    {OK}:''')

def b2_role(a, EXIT, stamps=0, mode_fn=None):
    a('; ================= B2 role =================')
    DONE = a.label('Ldone')
    W = lambda tt, k: ar(4*(28*tt+k), 4)
    hr, A, RSv, XP, AC, G, YP, m = 120, 16, 24, 28, 64, 80, 32, 36
    common_setup(a)
    sched_setup(a, 'B2')
    if HOLD: hold_back(a, EXIT, skip='s_cmp_eq_u32 0, 1')
    team_setup(a)
    cu_stats_setup(a, 124928)
    a(f'''s_load_dwordx2 s[36:37], s[0:1], 80
    s_load_dwordx2 s[48:49], s[0:1], 88
    v_lshrrev_b32 v4, 1, v7
    v_mul_u32_u24 v4, 896, v4
    v_and_b32 v8, 1, v7
    v_lshl_add_u32 v4, v8, 4, v4
    v_min_u32 v8, 13, v2
    v_lshlrev_b32 v8, 7, v8
    s_mul_i32 s31, s{S_W}, 28672
    v_lshlrev_b32 v9, 8, v3
    v_and_b32 v2, 15, v7
    v_lshl_add_u32 v9, v2, 3, v9
    v_add_u32 v9, s31, v9
    s_mov_b32 s38, {1792*896}
    s_mov_b32 s39, 0x20000
    s_mov_b32 s50, {2048*896}
    s_mov_b32 s51, 0x20000
    s_and_b32 s24, s{S_T}, 0xfe
    s_lshl_b32 s24, s24, 5
    s_and_b32 s25, s{S_W}, 1
    s_mul_i32 s25, s25, {28*32*896}
    s_add_u32 s24, s24, s25
    s_waitcnt lgkmcnt(0)''')
    for rr in range(2):
        a(f's_mov_b32 s23, s31\ns_add_u32 s22, s24, {32*rr}')
        for k in range(28):
            a(f'''s_mov_b32 m0, s23
            s_add_u32 s23, s23, 1024
            buffer_load_dwordx4 v4, s[36:39], s22 offen lds
            s_add_u32 s22, s22, {32*896}''')
        for k in range(28):
            if k % 4 == 0: a(f's_waitcnt vmcnt({24-k}) lgkmcnt(0)')
            for jh in range(2): a(f'ds_read_b64_tr_b16 {ar(4*(28*rr+k)+2*jh,2)}, v9 offset:{k*1024+jh*128}')
        a('s_waitcnt lgkmcnt(0)')
    all_done(a, EXIT)
    mode_fn(16, 17, 28 if LAYOUT else 32)
    sent4(a, XP)
    LF = a.label('Lpf'); LFD = a.label('Lpfd')
    a(f's_mov_b32 s{S_K}, 0\n{LF}:')
    merged_task(a, D_B2, LFD)
    a(f'''s_add_u32 s{S_K}, s{S_K}, 1
    s_cmp_eq_u32 s{S_L}, 0
    s_cbranch_scc0 {LF}
    s_mul_i32 s23, s{S_S}, 28672
    s_add_u32 s25, s23, {XN + 64*XN_SEG}
    s_add_u32 s26, s23, {X2}
    buffer_store_dwordx4 {vr(XP,4)}, v5, {SRD}, s25 offen sc1
    buffer_store_dwordx4 {vr(XP,4)}, v5, {SRD}, s26 offen sc1
    s_waitcnt vmcnt(32)
    s_branch {LF}
    {LFD}:
    s_and_b32 s31, s{S_W}, 1
    s_mul_i32 s31, s31, {28*1024}
    v_add_u32 v9, s31, v1
    v_add_u32 v171, 57344, v9
    s_lshr_b32 s25, s{S_W}, 1
    s_mul_i32 s25, s25, {56*1024}
    s_add_u32 s31, s31, s25
    s_lshl_b32 s25, s{S_W}, 11
    s_add_u32 s25, s25, 114688
    v_add_u32 v172, s25, v1
    v_xor_b32 v173, 2048, v172
    s_mov_b32 s{S_K}, 0''')
    st = Stamps(a, stamps)
    LOOP = a.label('Lb2'); LD = a.label('Lld'); REDO = a.label('Lredo')
    def nxt():
        NE = a.label('Lne')
        merged_task(a, D_B2, NE, S_NL, S_NS, S_NLS)
        flag_off(a, 29, F_H, S_NLS)
        a(f'buffer_load_dword v4, v8, {SRD}, s29 offen sc1\n{NE}:')
    nxt()
    a(f'''s_waitcnt vmcnt(0)
    {LOOP}:
    s_mov_b32 s{S_L}, s{S_NL}
    s_mov_b32 s{S_S}, s{S_NS}
    s_mov_b32 s{S_LS}, s{S_NLS}
    v_cmp_eq_u32 vcc, 0, v4
    s_cbranch_vccz {LD}''')
    def hsrc():
        a(f'''s_mul_i32 s22, s{S_LS}, {HF_SEG}
        s_add_u32 s22, s22, {HF}
        s_add_u32 s22, s22, s31
        s_mov_b32 s23, s31''')
    def chunk(c):
        out = [f's_mov_b32 m0, s23', f's_add_u32 s23, s23, 4096']
        out += [f'buffer_load_dwordx4 v1, {SRD}, s22 offen offset:{i*1024} sc1 lds' for i in range(4)]
        out += [f's_add_u32 s22, s22, 4096']
        return out
    if SPEC & 8:
        a('s_barrier')
        wait_spec(a, 8, 29, 4, EXIT, hsrc, lambda: [a(x) for x in chunk(0)+chunk(1)], 8)
        a(f's_branch {LD}_j')
    else: wait_flags(a, 8, 29, 4, EXIT)
    a(f'{LD}:\ns_barrier')
    st.mark()
    hsrc()
    for x in chunk(0)+chunk(1): a(x)
    a(f'{LD}_j:')
    for x in chunk(2): a(x)
    a(f'''s_mul_i32 s26, s{S_LS}, 28672
    s_add_u32 s26, s26, {YN}
    s_add_u32 s27, s26, 14336
    s_lshl_b32 s24, s{S_S}, 13
    s_add_u32 s24, s24, {ST + 64*ST_SEG}''')
    extra = [f'buffer_load_dwordx2 {vr(RSv,2)}, v6, {SRD}, s26 offen sc1', f'buffer_load_dwordx2 {vr(RSv+2,2)}, v6, {SRD}, s27 offen sc1',
             f'buffer_load_dwordx4 {vr(G,4)}, v13, {SRD}, s24 offen sc1', f'buffer_load_dwordx4 {vr(G+4,4)}, v170, {SRD}, s24 offen sc1']
    def rd(k): return [f'ds_read_b128 {vr(hr+8*(k%4),4)}, v9 offset:{k*1024}', f'ds_read_b128 {vr(hr+8*(k%4)+4,4)}, v171 offset:{k*1024}']
    ACC = lambda tt, rt: AC + 8*tt + 4*rt
    for c in range(7):
        younger = 4*(min(c+2, 6)-c) + (4 if c >= 5 else 0)
        a(f's_waitcnt vmcnt({younger})\ns_barrier')
        if c == 0: st.mark()
        k0 = 4*c
        ex = chunk(c+3) if c+3 < 7 else (extra if c == 4 else [])
        for k in range(k0, k0+3):
            for ins in rd(k): a(ins)
        main = []; lanes = []
        for k in range(k0, k0+4):
            b = 4*(k-k0)
            main += [mf(vr(ACC(tt, rt),4), W(tt, k), vr(hr+8*(k%4)+4*rt,4), 0 if k == 0 else None) for rt in range(2) for tt in range(2)]
            lanes.append((b-1, 1, [f's_waitcnt lgkmcnt({(4, 4, 2, 0)[k-k0]})']))
            lanes.append((b+2, 1, [chk2(m, hr+8*(k%4), hr+8*(k%4)+4, k == 0)]))
        lanes.append((0, 1, rd(k0+3)))
        pos = [2, 4, 5, 8, 9, 12, 13]
        if ex and c == 4: pos = [4, 8, 12, 14]
        for p, x in zip(pos, ex): lanes.append((p, 1, [x]))
        sched(a, main, lanes)
    st.mark()
    KH = a.label('Lkh'); KJ = a.label('Lkj')
    a(f'''s_add_u32 s{S_K}, s{S_K}, 1
    s_bitcmp1_b32 s{S_W}, 0
    s_nop 3
    ds_write_b32 v168, v{m} offset:1024
    s_cbranch_scc1 {KH}
    ds_write_b128 v172, {vr(ACC(1,0),4)}
    ds_write_b128 v172, {vr(ACC(1,1),4)} offset:1024
    s_branch {KJ}
    {KH}:
    ds_write_b128 v172, {vr(ACC(0,0),4)}
    ds_write_b128 v172, {vr(ACC(0,1),4)} offset:1024''')
    for r in range(8): a(f'v_mov_b32 v{ACC(0,0)+r}, v{ACC(1,0)+r}')
    a(f'''{KJ}:
    s_waitcnt vmcnt(0) lgkmcnt(0)
    s_barrier
    ds_read_b128 {vr(A,4)}, v173
    ds_read_b128 {vr(A+4,4)}, v173 offset:1024
    ds_read2st64_b32 v[2:3], v169 offset0:4 offset1:5''')
    res_valid(a, RSv, 26, EXIT, t=m)
    a(f'''s_waitcnt lgkmcnt(0)
    v_max_u32 v2, v2, v3
    v_cmp_eq_u32 vcc, -1, v2
    s_cbranch_vccnz {REDO}''')
    for r in range(4): a(f'v_pk_add_f32 {vr(A+2*r,2)}, {vr(A+2*r,2)}, {vr(ACC(0,0)+2*r,2)}')
    add_residual(a, A, RSv, XP)
    L1 = a.label('Lb2l1'); LE = a.label('Lb2e'); LS = a.label('Lsl'); L = a.label('Lst')
    a(f'''s_mul_i32 s23, s{S_S}, 28672
    s_cmp_eq_u32 s{S_L}, 0
    s_cbranch_scc0 {L1}''')
    q = G+28
    stats_partial(a, A, q)
    cu_stats(a, q)
    a(f'''s_cmp_eq_u32 s{S_FAST}, 1
    s_cbranch_scc0 {LS}
    buffer_store_dword v{q}, v12, {SRD}, s24 offen
    s_branch {L}
    {LS}:
    buffer_store_dword v{q}, v12, {SRD}, s24 offen sc1
    {L}:
    buffer_load_dwordx4 {vr(G,4)}, v13, {SRD}, s24 offen sc1
    buffer_load_dwordx4 {vr(G+4,4)}, v170, {SRD}, s24 offen sc1
    s_sub_u32 s{S_TO}, s{S_TO}, 1
    s_cbranch_scc1 {EXIT}
    s_waitcnt vmcnt(0)
    v_max_u32 v2, v{G}, v{G+4}
    v_cmp_eq_u32 vcc, -1, v2
    s_cbranch_vccnz {L}''')
    nxt()
    stats_finish(a, G, None, ((0, 1),))
    for rt in range(2):
        x = A+4*rt
        for r in range(4): a(f'v_sub_f32 v{x+r}, v{x+r}, v{G+2*rt}')
        for r in range(4): a(f'v_mul_f32 v{x+r}, v{x+r}, v{G+2*rt+1}')
        a(f'v_cvt_pk_bf16_f32 v{YP+2*rt}, v{x}, v{x+1}\nv_cvt_pk_bf16_f32 v{YP+2*rt+1}, v{x+2}, v{x+3}')
    guard(a, XP, 4); guard(a, YP, 4)
    pair_swap(a, YP)
    a(f's_add_u32 s25, s23, {XN + 64*XN_SEG}\nbuffer_store_dwordx4 {vr(YP,4)}, v5, {SRD}, s25 offen sc1')
    hint(a, F_XN, S_P, add=64)
    pair_swap(a, XP)
    a(f's_add_u32 s26, s23, {X2}\nbuffer_store_dwordx4 {vr(XP,4)}, v5, {SRD}, s26 offen sc1')
    a(f's_waitcnt vmcnt(3)\ns_branch {LE}\n{L1}:')
    nxt()
    pair_swap(a, XP)
    a(f'buffer_store_dwordx4 {vr(XP,4)}, v11, s[48:51], s23 offen {"sc1" if OUTSC else ""}\ns_waitcnt vmcnt(1)\n{LE}:')
    st.mark()
    st.flush(2, 20, S_LS)
    a(f's_cmp_lt_u32 s{S_NS}, 64\ns_cbranch_scc1 {LOOP}\n{DONE}:')
    if stamps: stamp_dump(a, EXIT)
    else: a(f's_branch {EXIT}')
    a(f'{REDO}:\ns_sub_u32 s{S_K}, s{S_K}, 1\ns_sub_u32 s{S_TO}, s{S_TO}, 64\ns_cbranch_scc1 {EXIT}\ns_branch {LD}')

def pv_role(a, EXIT, stamps=0):
    a('; ================= PV role =================')
    DONE = a.label('Ldone')
    vx, vm, pr, A, RS, XP, AC, q, m = 32, 96, 112, 16, 24, 28, 144, 160, 166
    WD = a.label('Lpvd')
    a(f'''s_branch {WD}
    {chain.PV_ENTRY}:
    s_cmp_ge_u32 s{S_P}, 7
    s_cselect_b32 s{S_U}, 4, 3
    s_cselect_b32 s20, 7, 0
    s_sub_u32 s{S_P}, s{S_P}, s20
    {WD}:''')
    common_setup(a)
    sched_setup(a, 'PV')
    team_setup(a)
    cu_stats_setup(a, 49152)
    a(f'''s_load_dwordx2 s[36:37], s[0:1], 0
    v_lshlrev_b32 v8, 7, v2
    v_mov_b32 v13, v8
    v_and_b32 v4, 1, v7
    s_lshl_b32 s20, s{S_P}, 1
    v_add_u32 v4, s20, v4
    v_lshlrev_b32 v4, 7, v4
    s_mov_b32 s38, {2048*896}
    s_mov_b32 s39, 0x20000
    s_mov_b32 s{S_K}, 0
    s_waitcnt lgkmcnt(0)''')
    sent4(a, XP)
    LF = a.label('Lpf'); LFD = a.label('Lpfd')
    a(f'{LF}:')
    merged_task(a, D_PV, LFD)
    a(f'''s_add_u32 s{S_K}, s{S_K}, 1
    s_mul_i32 s25, s{S_LS}, 28672
    s_add_u32 s25, s25, {YN}
    buffer_store_dwordx4 {vr(XP,4)}, v5, {SRD}, s25 offen sc1
    s_waitcnt vmcnt(32)
    s_branch {LF}
    {LFD}:
    s_mov_b32 s{S_K}, 0''')
    st = Stamps(a, stamps)
    LOOP = a.label('Lpv'); L1 = a.label('Lpv1'); LJ = a.label('Lpvj'); REDO = a.label('Lredo'); RUN = a.label('Lrun'); NR_ = a.label('Lnr')
    def nxt():
        NE = a.label('Lne')
        merged_task(a, D_PV, NE, S_NL, S_NS, S_NLS)
        flag_off(a, 26, F_VX, S_NLS); flag_off(a, 27, F_P, S_NLS); flag_off(a, 28, F_VM, S_NLS)
        a(f'''buffer_load_dword v9, v8, {SRD}, s26 offen sc1
        buffer_load_dword v164, v13, {SRD}, s27 offen sc1
        buffer_load_dword v165, v4, {SRD}, s28 offen sc1
        {NE}:''')
    all_done(a, EXIT)
    nxt()
    a(f'''s_waitcnt vmcnt(0)
    {LOOP}:
    s_mov_b32 s{S_L}, s{S_NL}
    s_mov_b32 s{S_S}, s{S_NS}
    s_mov_b32 s{S_LS}, s{S_NLS}''')
    def need(v, voff, soff):
        LOK = a.label('Lok')
        a(f'v_cmp_eq_u32 vcc, 0, v{v}\ns_cbranch_vccz {LOK}')
        wait_flags(a, voff, soff, v, EXIT)
        a(f'{LOK}:')
    a('s_waitcnt vmcnt(2)')
    need(9, 8, 26)
    st.mark()
    def vxl():
        LA = a.label('La'); LB = a.label('Lb')
        a(f'''s_mul_i32 s22, s{S_LS}, {VX_SEG}
        s_lshl_b32 s23, s{S_T}, 10
        s_add_u32 s22, s22, s23
        s_add_u32 s22, s22, {VX}''')
        for h in range(16):
            a(f'buffer_load_dwordx4 {vr(vx+4*h,4)}, v1, {SRD}, s22 offen sc1')
            if h < 15: a('s_add_u32 s22, s22, 28672')
        a(f'''s_mul_i32 s32, s{S_S}, 28672
        s_cmp_eq_u32 s{S_L}, 0
        s_cbranch_scc0 {LA}
        s_add_u32 s33, s32, 14336
        buffer_load_dwordx2 {vr(RS,2)}, v10, s[36:39], s32 offen
        buffer_load_dwordx2 {vr(RS+2,2)}, v10, s[36:39], s33 offen
        s_branch {LB}
        {LA}:
        s_add_u32 s32, s32, {X2}
        s_add_u32 s33, s32, 14336
        buffer_load_dwordx2 {vr(RS,2)}, v6, {SRD}, s32 offen sc1
        buffer_load_dwordx2 {vr(RS+2,2)}, v6, {SRD}, s33 offen sc1
        {LB}:''')
    def pdma():
        a(f'''s_mul_i32 s22, s{S_LS}, {PF_SEG}
        s_mul_i32 s23, s{S_W}, 10240
        s_add_u32 s22, s22, s23
        s_add_u32 s22, s22, {PF}''')
        dma_frags(a, 10, 22, 23)
    def vml():
        a(f'''s_mul_i32 s22, s{S_LS}, {VM_SEG}
        s_lshl_b32 s23, s{S_T}, 10
        s_add_u32 s22, s22, s23
        s_add_u32 s22, s22, {VM}''')
        for hq in range(4):
            a(f'buffer_load_dwordx4 {vr(vm+4*hq,4)}, v1, {SRD}, s22 offen sc1')
            if hq < 3: a('s_add_u32 s22, s22, 28672')
    JIT = a.label('Ljit')
    a(f'''s_mul_i32 s25, s{S_LS}, 28672
    s_add_u32 s25, s25, {YN}
    s_lshl_b32 s24, s{S_L}, 7
    s_add_u32 s24, s24, s{S_S}
    s_lshl_b32 s24, s24, 13
    s_add_u32 s24, s24, {ST}
    v_min_u32 v2, v164, v165
    v_cmp_eq_u32 vcc, 0, v2
    s_cbranch_vccnz {JIT}''')
    pdma(); vxl(); vml()
    st.mark()
    a(f's_mov_b32 s29, 1\ns_waitcnt vmcnt(22)\ns_branch {RUN}\n{JIT}:')
    st.n -= 1
    vxl()
    if SPEC & 16:
        wait_spec(a, 13, 27, 164, EXIT, lambda: None, pdma, 10)
        st.mark()
    else:
        need(164, 13, 27)
        st.mark()
        pdma()
    a(f'''buffer_load_dword v165, v4, {SRD}, s28 offen sc1
    s_mov_b32 s29, 0
    s_waitcnt vmcnt(0)
    v_cmp_eq_u32 vcc, 0, v165
    s_cbranch_vccnz {RUN}''')
    vml()
    a(f'''s_mov_b32 s29, 1
    {RUN}:
    s_barrier''')
    st.mark()
    NR = 8
    def rd(i): return f'ds_read_b128 {vr(pr+4*(i%NR),4)}, v1 offset:{i*1024}'
    for i in range(6): a(rd(i))
    for i in range(40):
        if i == 32:
            VOK = a.label('Lvok')
            a(f's_cmp_eq_u32 s29, 1\ns_cbranch_scc1 {VOK}')
            need(165, 4, 28)
            vml()
            a(f's_mov_b32 s29, 1\n{VOK}:\ns_waitcnt vmcnt(0)')
        if i % 2 == 0: a(f's_waitcnt lgkmcnt({max(0, min(4, 38-i))})' + (f' vmcnt({21-i//2})' if i < 32 else ''))
        rt = i & 1; par = (i >> 1) & 1
        Aop = vx+4*(i >> 1) if i < 32 else vm+4*((i-32) >> 1)
        a(mf(vr(AC+8*rt+4*par,4), vr(Aop,4), vr(pr+4*(i%NR),4), 0 if i < 4 else None))
        a(chk2(m, pr+4*(i%NR), pr+4*(i%NR)+2, i == 0))
        if i+6 < 40: a(rd(i+6))
    st.mark()
    redo_if_bad(a, m, REDO, EXIT)
    a(f's_cmp_eq_u32 s{S_L}, 0\ns_cbranch_scc1 {NR_}')
    res_valid(a, RS, 32, EXIT)
    a(f'{NR_}:\ns_add_u32 s{S_K}, s{S_K}, 1')
    nxt()
    for rt in range(2):
        for r in range(4): a(f'v_add_f32 v{A+4*rt+r}, v{AC+8*rt+r}, v{AC+8*rt+4+r}')
    st.mark(2)
    add_residual(a, A, RS, XP)
    guard(a, XP, 4)
    pair_swap(a, XP)
    a(f'buffer_store_dwordx4 {vr(XP,4)}, v5, {SRD}, s25 offen sc1')
    st.mark(2)
    stats_partial(a, A, q)
    cu_stats(a, q)
    a(f'''buffer_store_dword v{q}, v12, {SRD}, s24 offen sc1''')
    st.mark()
    st.flush(2, 20, S_LS)
    a(f's_cmp_lt_u32 s{S_NS}, 64\ns_cbranch_scc1 {LOOP}\n{DONE}:')
    if stamps: stamp_dump(a, EXIT)
    else: a(f's_branch {EXIT}')
    a(f'{REDO}:\ns_sub_u32 s{S_TO}, s{S_TO}, 64\ns_cbranch_scc1 {EXIT}\ns_barrier')
    pdma()
    a(f's_waitcnt vmcnt(0)\ns_branch {RUN}')
```

```python
from asmlib import *
from layout import *

SRD = 's[8:11]'
S_W, S_SLOT, S_L, S_P, S_FAST, S_STEP, S_TO, S_U = 12, 13, 14, 15, 16, 17, 18, 19
NSTEP = 64
P_ENTRY, PV_ENTRY = 'Lp_from_k', 'Lpv_from_v'
HANDOVER = True
OPT = dict(mem2=True, p2=True, xk3late=False, stag=2, pcan=False, fpos=9, novx=False, nost=False, noxk=False, mgearly=0, pre=4, gw=0, npf=0, kpf=0, vdel=0, note=0, fnext=0, post=0, cvo=0, kdel=14, pdel=2, lw=0, early=0, m3=0, wsl=2, k64=1, vpre=1, vsl=2, v64=1, kpre=1, ksl=2, ppre=1, psl=2, jobs=0, two=0, ninf=0)
STAMP_OP = 's_memtime'
DPP = 'row_mask:0xf bank_mask:0xf'

def wreg(G, nA, vbase):
    return ar(8*G, 8) if G < nA else vr(vbase + 8*(G-nA), 8)
def wreg4(G, half, nA, vbase):
    return ar(8*G+4*half, 4) if G < nA else vr(vbase + 8*(G-nA) + 4*half, 4)

class Stamps:
    def __init__(self, a, on, base=60):
        self.a, self.on, self.base, self.n = a, on, base, 0
    def mark(self, lvl=1):
        if self.on >= lvl:
            self.a(f'{STAMP_OP} s[{self.base+2*self.n}:{self.base+2*self.n+1}]'); self.n += 1
    def flush(self, vt0, soff, sstep=S_STEP):
        if not self.on: return
        a = self.a
        a(f"""s_waitcnt lgkmcnt(0)
        s_lshl_b32 s{soff}, s{S_W}, 7
        s_add_u32 s{soff}, s{soff}, s{sstep}
        s_lshl_b32 s{soff}, s{soff}, 5
        s_add_u32 s{soff}, s{soff}, {STL}
        v_mov_b32 v{vt0}, s{soff}""")
        for k in range(0, self.n, 2):
            a(f'v_mov_b32 v{vt0+1}, s{self.base+2*k}')
            a(f'ds_write_b16 v{vt0}, v{vt0+1} offset:{2*k}')
            if k+1 < self.n:
                a(f'v_mov_b32 v{vt0+1}, s{self.base+2*k+2}')
                a(f'ds_write_b16 v{vt0}, v{vt0+1} offset:{2*k+2}')
        self.n = 0

STL = 147456
def stamp_dump(a, EXIT):
    a(f"""s_memrealtime s[22:23]
    s_waitcnt lgkmcnt(0)
    v_and_b32 v1, 63, v0
    v_lshlrev_b32 v1, 4, v1
    s_lshl_b32 s20, s{S_W}, 12
    s_add_u32 s21, s20, {STL}
    v_mov_b32 v2, s21
    v_mov_b32 v3, s98
    ds_write_b16 v2, v3 offset:24
    v_mov_b32 v3, s100
    ds_write_b16 v2, v3 offset:26
    v_mov_b32 v3, s22
    ds_write_b16 v2, v3 offset:28
    v_add_u32 v2, s21, v1
    s_lshl_b32 s21, s{S_SLOT}, 14
    s_add_u32 s20, s20, s21
    s_add_u32 s20, s20, {STAMP}""")
    for k in range(4):
        a(f"""ds_read_b128 v[4:7], v2 offset:{k*1024}
        s_waitcnt lgkmcnt(0)
        buffer_store_dwordx4 v[4:7], v1, {SRD}, s20 offen offset:{k*1024}
        s_nop 1""")
    if EXIT: a(f's_branch {EXIT}')
    else: a(f's_add_u32 s{S_SLOT}, s{S_SLOT}, 256\ns_waitcnt vmcnt(0)')

def poll_mem(a, soff, d, t, EXIT, MEMS, d2, work=None, d3=None):
    L = a.label('Lpm'); OK = a.label('Lpmok')
    def issue(r):
        a(f"""buffer_load_dwordx4 {vr(r[0],4)}, v2, {SRD}, s{soff} offen sc1
        buffer_load_dwordx4 {vr(r[1],4)}, v3, {SRD}, s{soff} offen sc1""")
    def check(r, n=2):
        p, q = r
        a(f"""s_waitcnt vmcnt({n})
        v_max3_u32 v{t}, v{p}, v{p+1}, v{p+2}
        v_max3_u32 v{t+1}, v{p+3}, v{q}, v{q+1}
        v_max3_u32 v{t}, v{t}, v{q+2}, v{q+3}
        v_max_u32 v{t}, v{t}, v{t+1}
        v_cmp_eq_u32 vcc, -1, v{t}""")
        if not OPT['lw']: wr(r)
    def wr(r):
        a(f'ds_write_b128 v2, {vr(r[0],4)} offset:{MEMS}\nds_write_b128 v3, {vr(r[1],4)} offset:{MEMS}')
    if not OPT['mem2']:
        a(f'{L}:')
        issue(d)
        a(f's_sub_u32 s{S_TO}, s{S_TO}, 1\ns_cbranch_scc1 {EXIT}')
        check(d, 0)
        a(f's_cbranch_vccnz {L}')
        return
    if d3:
        issue(d); work(); issue(d2); work(1)
        a(f'{L}:')
        issue(d3); check(d, 4); a(f's_cbranch_vccz {OK}')
        issue(d); a(f's_sub_u32 s{S_TO}, s{S_TO}, 1\ns_cbranch_scc1 {EXIT}'); check(d2, 4); a(f's_cbranch_vccz {OK}')
        issue(d2); check(d3, 4); a(f's_cbranch_vccnz {L}\n{OK}:')
        return
    issue(d)
    work()
    a(f'{L}:')
    issue(d2)
    check(d)
    a(f's_cbranch_vccz {OK}')
    issue(d)
    a(f"""s_sub_u32 s{S_TO}, s{S_TO}, 1
    s_cbranch_scc1 {EXIT}""")
    check(d2)
    a(f's_cbranch_vccnz {L}')
    if OPT['lw']:
        wr(d2); a(f's_branch {OK}_j\n{OK}:'); wr(d); a(f'{OK}_j:')
    else: a(f'{OK}:')

def mem_addr_setup(a):
    a(f'''v_and_b32 v7, 63, v0
    v_lshlrev_b32 v1, 4, v7
    s_mul_i32 s20, s{S_W}, 112
    v_add_u32 v2, s20, v7
    v_min_u32 v3, 47, v7
    s_add_u32 s20, s20, 64
    v_add_u32 v3, s20, v3
    v_lshlrev_b32 v2, 4, v2
    v_lshlrev_b32 v3, 4, v3
    v_and_b32 v8, 8, v7
    v_cmp_eq_u32 vcc, 0, v8
    v_mov_b32 v6, 0xeeee
    v_mov_b32 v8, 0x4444
    v_cndmask_b32 v6, v6, v8, vcc''')

def wait_flags(a, voff, soff, vd, EXIT):
    L = a.label('Lwf'); Lok = a.label('Lwfok')
    a(f'''{L}:
    buffer_load_dword v{vd}, v{voff}, {SRD}, s{soff} offen sc1
    s_sub_u32 s{S_TO}, s{S_TO}, 1
    s_cbranch_scc1 {EXIT}
    s_waitcnt vmcnt(0)
    v_cmp_eq_u32 vcc, 0, v{vd}
    s_cbranch_vccz {Lok}
    s_sleep {OPT['wsl']}
    s_branch {L}
    {Lok}:''')

PREP = True
def wait_done(a, voff, vd, EXIT, off=0):
    if not PREP: return
    L = a.label('Lwd'); OK = a.label('Lwdok')
    a(f"""s_mov_b32 s20, {DONEF}
    {L}:
    buffer_load_dwordx2 {vr(vd,2)}, v{voff}, {SRD}, s20 offen offset:{off} sc1
    s_sub_u32 s{S_TO}, s{S_TO}, 1
    s_cbranch_scc1 {EXIT}
    s_waitcnt vmcnt(0)
    v_xor_b32 v{vd}, s78, v{vd}
    v_xor_b32 v{vd+1}, s79, v{vd+1}
    v_or_b32 v{vd}, v{vd}, v{vd+1}
    v_cmp_ne_u32 vcc, 0, v{vd}
    s_cbranch_vccz {OK}
    s_sleep 2
    s_branch {L}
    {OK}:""")

def peek_done(a, voff, vd):
    if PREP: a(f's_mov_b32 s20, {DONEF}\nbuffer_load_dwordx2 {vr(vd,2)}, v{voff}, {SRD}, s20 offen sc1')
def after_peek(a, voff, vd, n, EXIT):
    if not PREP: return
    OK = a.label('Lpk')
    a(f"""s_waitcnt vmcnt({n})
    v_xor_b32 v{vd}, s78, v{vd}
    v_xor_b32 v{vd+1}, s79, v{vd+1}
    v_or_b32 v{vd}, v{vd}, v{vd+1}
    v_cmp_ne_u32 vcc, 0, v{vd}
    s_cbranch_vccz {OK}""")
    wait_done(a, voff, vd, EXIT)
    a(f'{OK}:')

def job_line(a, t):
    if not OPT['jobs']:
        a(f"""v_mul_u32_u24 v{t+1}, 9363, v{t}
        v_lshrrev_b32 v{t+1}, 16, v{t+1}
        v_mul_u32_u24 v{t+2}, 7, v{t+1}
        v_sub_u32 v{t}, v{t}, v{t+2}
        v_lshrrev_b32 v{t+2}, 3, v{t+1}
        v_mul_u32_u24 v{t+2}, 7, v{t+2}
        v_add_u32 v{t}, v{t}, v{t+2}
        v_and_b32 v{t+1}, 7, v{t+1}
        v_lshl_add_u32 v{t}, v{t}, 3, v{t+1}
        v_lshlrev_b32 v{t}, 7, v{t}""")
        return
    a(f"""v_lshrrev_b32 v{t+1}, 5, v{t}
    v_and_b32 v{t}, 31, v{t}
    v_lshl_add_u32 v{t}, v{t}, 3, v{t+1}
    v_add_u32 v{t}, 1, v{t}
    v_lshlrev_b32 v{t}, 7, v{t}""")

def need_head(a, typ, EXIT, t=16, off=0):
    if OPT['gw']: return all_done(a, EXIT, t)
    if not PREP: return
    a(f"""s_mul_i32 s20, s{S_P}, 7
    s_add_u32 s20, s20, {112*typ}
    v_and_b32 v{t}, 7, v0
    v_min_u32 v{t}, 6, v{t}
    v_add_u32 v{t}, s20, v{t}""")
    job_line(a, t)
    wait_done(a, t, t+2, EXIT, off)

def need_cols(a, EXIT, t=16, off=0):
    if OPT['gw']: return all_done(a, EXIT, t)
    if not PREP: return
    a(f"""v_and_b32 v{t}, 15, v0
    v_mul_u32_u24 v{t}, 7, v{t}
    s_lshr_b32 s20, s{S_P}, 1
    s_add_u32 s20, s20, 112
    v_add_u32 v{t}, s20, v{t}""")
    job_line(a, t)
    wait_done(a, t, t+2, EXIT, off)

def all_done(a, EXIT, t=16):
    if not PREP: return
    a(f'v_lshlrev_b32 v{t}, 7, v0')
    wait_done(a, t, t+2, EXIT)
    a('s_barrier')

def hold_back(a, EXIT, t=16, skip=f's_cmp_eq_u32 s{S_L}, 0'):
    if not PREP: return
    L = a.label('Lhb')
    a(f'{skip}\ns_cbranch_scc1 {L}')
    all_done(a, EXIT, t)
    a(f'v_and_b32 v{t}, 15, v0\nv_lshlrev_b32 v{t}, 7, v{t}\ns_mov_b32 s21, {flag_base(F_VX)}')
    wait_flags(a, t, 21, t+2, EXIT)
    a(f'{L}:')

def ring_off(a, dst, step_plus, seg, base_s):
    sh = seg.bit_length()-1
    a(f'''s_add_u32 s{dst}, s{S_STEP}, {step_plus & 3}
    s_and_b32 s{dst}, s{dst}, 3
    s_lshl_b32 s{dst}, s{dst}, {sh}
    s_add_u32 s{dst}, s{dst}, s{base_s}''')

def k_cu(a, EXIT, stamps=0, mode_fn=None):
    MEMS, TIMG, PART = 0, 8192, 24576
    SW = 2048
    nA, vb = 32, 120
    memA, tb, sc, pd, tmp = 16, 60, 92, 92, 112
    X, Mx = 60, 112
    D2 = (60, 100)
    ACC = [44, 48, 52, 56, 44, 48, 64]
    mk, mk2, tb2 = 116, 52, 56
    XKR = {(0, 0): 68, (0, 1): 70, (1, 0): 72, (1, 1): 76, (2, 0): 80, (2, 1): 84, (3, 0): 104, (3, 1): 108}
    S_D = 36
    S_FS = 40
    S_MEM, S_PM, S_XN, S_FX, S_T0, S_T1, S_XP, S_XS, S_MB, S_PB, S_RA = 24, 25, 26, 27, 28, 29, 30, 31, 32, 33, 34
    DONE = a.label('Ldone')
    hold_back(a, EXIT)
    need_head(a, 0, EXIT, off=16*OPT['two'])
    mem_addr_setup(a)
    a(f'''s_mul_i32 s20, s{S_P}, 28
    s_mul_i32 s21, s{S_W}, 7
    s_add_u32 s20, s20, s21
    s_and_b32 s22, s{S_W}, 1
    s_add_u32 s21, s20, s22
    s_mul_i32 s21, s21, 14336
    s_add_u32 s21, s21, {WA}
    s_xor_b32 s22, s22, 1
    s_mul_i32 s22, s22, 6
    s_add_u32 s20, s20, s22
    s_mul_i32 s20, s20, 14336
    s_add_u32 s20, s20, {WA}''')
    a('s_mov_b32 s24, s20\ns_mov_b32 s25, s21')
    n = 0
    for lo, hi in ((0, 4), (4, 14)):
        if lo: after_peek(a, 16, 18, 16, EXIT)
        for u in range(7):
            if not lo and u == 3: peek_done(a, 16, 18)
            for ks in range(lo, hi):
                if ks == lo or (ks & 3) == 0: a(f's_add_u32 s22, s{24 if u == 0 else 25}, {max(u-1, 0)*14336 + (ks & ~3)*1024}')
                a(f'buffer_load_dwordx4 {wreg4(u*7 + ks//2, ks & 1, nA, vb)}, v1, {SRD}, s22 offen offset:{(ks & 3)*1024} sc1')
                n += 1
                if lo and n >= 76 and n % 8 == 0: a('s_waitcnt vmcnt(40)')
    a(f'''v_mov_b32 v114, v7
    v_and_b32 v112, 15, v114
    v_lshrrev_b32 v113, 4, v114
    s_mul_i32 s20, s{S_W}, 3584
    s_add_u32 s20, s20, {TIMG}
    v_lshlrev_b32 v8, 3, v114
    v_add_u32 v8, s20, v8
    v_lshlrev_b32 v7, 5, v112
    v_lshl_add_u32 v7, v113, 3, v7
    v_add_u32 v7, s20, v7
    s_mul_i32 s20, s{S_W}, 7
    s_add_u32 s20, s20, 1
    s_lshr_b32 s20, s20, 1
    s_lshr_b32 s21, s{S_W}, 1
    s_mul_i32 s21, s21, 7
    s_add_u32 s21, s21, 3
    s_lshl_b32 s{S_XP}, s20, 10
    s_lshl_b32 s{S_XS}, s21, 10
    s_and_b32 s22, s{S_W}, 1
    v_and_b32 v115, 7, v114
    v_lshlrev_b32 v116, 4, v115
    v_lshrrev_b32 v117, 1, v113
    v_lshl_add_u32 v116, v117, 8, v116
    v_and_b32 v117, 1, v113
    v_lshl_add_u32 v116, v117, 3, v116
    s_lshl_b32 s20, s20, 9
    s_add_u32 s20, s20, {MEMS}
    v_add_u32 v9, s20, v116
    v_add_u32 v4, 1024, v9
    s_lshl_b32 s21, s21, 9
    s_lshl_b32 s23, s22, 2
    s_add_u32 s21, s21, s23
    s_add_u32 s21, s21, {MEMS}
    v_add_u32 v10, s21, v116
    s_lshl_b32 s22, s22, 3
    v_add_u32 v12, s22, v1''')
    a(f'''s_lshl_b32 s20, s{S_W}, 11
    s_add_u32 s20, s20, {PART}
    v_bfe_u32 v117, v114, 3, 1
    v_lshl_add_u32 v118, v117, 2, v113
    v_mul_u32_u24 v13, 144, v118
    v_lshl_add_u32 v13, v115, 4, v13
    v_add_u32 v13, s20, v13
    v_lshl_add_u32 v118, v113, 1, v117
    v_mul_u32_u24 v5, 80, v118
    v_lshl_add_u32 v5, v115, 3, v5
    s_add_u32 s20, s20, 1152
    v_add_u32 v5, s20, v5''')
    a(f'''v_and_b32 v115, 31, v114
    v_lshrrev_b32 v116, 5, v114
    s_lshl_b32 s20, s{S_W}, 1
    v_add_u32 v116, s20, v116
    v_lshrrev_b32 v117, 1, v115
    v_and_b32 v118, 1, v115
    v_mul_u32_u24 v14, 144, v117
    v_lshl_add_u32 v14, v116, 4, v14
    v_lshl_add_u32 v14, v118, 3, v14
    v_min_u32 v119, 19, v115
    v_subrev_u32 v119, 16, v119
    v_mul_u32_u24 v119, 80, v119
    v_lshl_add_u32 v119, v116, 3, v119
    v_add_u32 v119, 1152, v119
    v_cmp_gt_u32 vcc, 16, v115
    s_nop 1
    v_cndmask_b32 v14, v119, v14, vcc
    v_add_u32 v14, {PART}, v14''')
    a(f'''s_lshr_b32 s20, s{S_P}, 1
    s_lshl_b32 s20, s20, 10
    s_and_b32 s21, s{S_P}, 1
    s_lshl_b32 s22, s21, 7
    s_add_u32 s20, s20, s22
    v_and_b32 v119, 3, v117
    v_lshlrev_b32 v15, 8, v119
    v_lshl_add_u32 v15, v116, 4, v15
    v_lshl_add_u32 v15, v118, 2, v15
    v_lshrrev_b32 v119, 3, v115
    v_lshl_add_u32 v15, v119, 3, v15
    v_add_u32 v15, s20, v15
    s_lshr_b32 s20, s{S_P}, 2
    s_lshl_b32 s20, s20, 9
    s_add_u32 s20, s20, 8192
    s_lshl_b32 s21, s21, 3
    s_add_u32 s20, s20, s21
    s_and_b32 s21, s{S_P}, 2
    s_lshl_b32 s21, s21, 7
    s_add_u32 s20, s20, s21
    v_and_b32 v119, 1, v117
    v_lshlrev_b32 v119, 7, v119
    v_lshl_add_u32 v119, v116, 4, v119
    v_lshl_add_u32 v119, v118, 2, v119
    v_add_u32 v119, s20, v119
    v_cndmask_b32 v15, v119, v15, vcc
    v_cmp_gt_u32 vcc, 20, v115
    v_mov_b32 v117, 0x7f000000
    v_mov_b32 v118, 0xff800000
    v_mov_b32 v119, 0x7f800000
    v_cndmask_b32 v15, v117, v15, vcc
    v_cndmask_b32 v90, v118, v119, vcc
    v_and_b32 v91, 7, v114
    v_min_u32 v91, 6, v91
    v_lshlrev_b32 v91, 7, v91
    v_mov_b32 v88, -1''')
    a(f'''s_lshl_b32 s{S_MB}, s{S_L}, 15
    s_add_u32 s{S_MB}, s{S_MB}, {MEMF}
    s_lshl_b32 s{S_PB}, s{S_L}, 16
    s_add_u32 s{S_PB}, s{S_PB}, {PM}
    s_lshl_b32 s20, s{S_L}, 6
    s_mul_i32 s{S_XN}, s20, {XN_SEG}
    s_add_u32 s{S_XN}, s{S_XN}, {XN}
    s_mul_i32 s{S_FX}, s20, {flag_seg(F_XN)}
    s_add_u32 s{S_FX}, s{S_FX}, {flag_base(F_XN)}
    s_mul_i32 s{S_FS}, s{S_L}, {flag_seg(F_XN)}
    s_cmp_eq_u32 s{S_L}, 0
    s_cselect_b32 s{S_FX}, {ST+7168}, s{S_FX}
    s_mov_b32 s{S_STEP}, 0
    s_mov_b32 s{S_MEM}, s{S_MB}
    s_mov_b32 s{S_PM}, s{S_PB}
    s_add_u32 s{S_RA}, s{S_PB}, {3*PM_SEG}
    s_lshl_b32 s42, s{S_L}, 7
    s_lshl_b32 s20, s{S_P}, 2
    s_add_u32 s42, s42, s20
    s_add_u32 s42, s42, {CNT+2048}
    s_lshl_b32 s20, s{S_P}, 2
    s_add_u32 s20, s20, s{S_W}
    s_mul_i32 s20, s20, 7168
    v_and_b32 v11, 63, v0
    v_min_u32 v11, 55, v11
    v_lshlrev_b32 v11, 7, v11
    v_add_u32 v11, s20, v11
    s_lshl_b32 s43, s{S_L}, 6
    s_mul_i32 s43, s43, {VX_SEG}
    s_add_u32 s43, s43, {VX}
    s_lshl_b32 s20, s{S_W}, 8
    s_add_u32 m0, s20, 40960''')
    def xk_setup():
        if OPT['noxk']: a(f's_sub_u32 s{S_XN}, s{S_XN}, {XN_SEG}')
        a(f"""s_add_u32 s{S_D}, s{S_XN}, s{S_XP}
        s_add_u32 s{S_D+1}, s{S_XN}, s{S_XS}
        s_add_u32 s{S_D+2}, s{S_D}, 14336
        s_add_u32 s{S_D+3}, s{S_D+1}, 14336
        s_add_u32 s{S_XN}, s{S_XN}, {XN_SEG}
        s_add_u32 s{S_FX}, s{S_FX}, s{S_FS}""")
    def xk_load(unit, kt):
        if unit == 0:
            return f'buffer_load_dwordx2 {vr(XKR[(0,kt)],2)}, v12, {SRD}, s{S_D+1+2*kt} offen sc1'
        return f'buffer_load_dwordx4 {vr(XKR[(unit,kt)],4)}, v1, {SRD}, s{S_D+2*kt} offen offset:{(unit-1)*1024} sc1'
    FLAGLD = f'buffer_load_dword v89, v91, {SRD}, s{S_FX} offen sc1'
    all_done(a, EXIT)
    if mode_fn: mode_fn(92, 93)
    wait_flags(a, 91, S_FX, 89, EXIT)
    xk_setup()
    for u in range(4):
        for kt in range(2): a(xk_load(u, kt))
    a(FLAGLD)
    a('s_waitcnt vmcnt(0)')
    LS = a.label('Lkslow')
    a(f's_cmp_eq_u32 s{S_FAST}, 1\ns_cbranch_scc0 {LS}')
    def loop(sc1):
        st = Stamps(a, stamps)
        LOOP = a.label('Lk'); Lok = a.label('Lkf')
        KB = a.label('Lkb'); KC = a.label('Lkc')
        a(f'{LOOP}:\ns_waitcnt vmcnt(1)\n{KC}:')
        a(f"""v_max3_u32 v{tmp}, v68, v70, v72
        v_max3_u32 v{tmp+1}, v76, v80, v84
        v_max3_u32 v{tmp}, v{tmp}, v104, v108
        v_max_u32 v{tmp}, v{tmp}, v{tmp+1}
        v_cmp_eq_u32 vcc, -1, v{tmp}
        s_cbranch_vccnz {KB}
        v_cmp_eq_u32 vcc, 0, v89
        s_cbranch_vccz {Lok}""")
        wait_flags(a, 91, S_FX, 89, EXIT)
        a(f'{Lok}:')
        def kwork():
            xk_setup()
            ring_off(a, S_PM, 0, PM_SEG, S_PB)
            a(f's_add_u32 s43, s43, {VX_SEG}')
            for u in ((0, 1, 6) if OPT['m3'] else (0, 1, 2, 3, 6)):
                if OPT['k64']: a(f'v_mov_b64 {vr(ACC[u],2)}, 0\nv_mov_b64 {vr(ACC[u]+2,2)}, 0')
                else:
                    for r in range(4): a(f'v_mov_b32 v{ACC[u]+r}, 0')
        if OPT['kpre']: kwork()
        if OPT['kdel']: a(f"s_sleep {OPT['kdel']}")
        st.mark()
        poll_mem(a, S_MEM, (pd, pd+4), tmp, EXIT, MEMS, D2, lambda k=0: (None if OPT['kpre'] or k else kwork(), a(f"s_sleep {OPT['ksl']}") if OPT['ksl'] else None), (52, 56) if OPT['m3'] else None)
        st.mark(2)
        a('s_waitcnt lgkmcnt(0)\ns_barrier')
        st.mark(2)
        for b in range(7): a(f'ds_read_b128 {vr(memA+4*b,4)}, v1 offset:{MEMS+1024*b}')
        main = []
        for u in range(7):
            for b in range(7):
                main.append(f'v_smfmac_f32_16x16x64_bf16 {vr(ACC[u],4)}, {vr(memA+4*b,4)}, {wreg(u*7+b, nA, vb)}, v6')
        F = {}
        def add(slot, *ins): F.setdefault(slot, []).extend(ins)
        def spread(slot, ins, step=1):
            for k, x in enumerate(ins): add(slot+k*step, x)
        [add(b-1, f's_waitcnt lgkmcnt({6-b})') for b in range(7)]
        def mkread(unit, R):
            if unit == 0: return [f'ds_read2_b32 {vr(R,2)}, v10 offset0:0 offset1:32']
            p = unit-1
            ar_, o = (9, p*128) if p < 2 else (4, 0)
            return [f'ds_read2_b32 {vr(R,2)}, v{ar_} offset0:{o} offset1:{o+32}', f'ds_read2_b32 {vr(R+2,2)}, v{ar_} offset0:{o+1} offset1:{o+33}']
        def tail_tile(u, half, tb=tb):
            A = ACC[u]; t = tmp+2*half
            return [f'v_cvt_pk_bf16_f32 v{t}, v{A}, v{A+1}', f'v_cvt_pk_bf16_f32 v{t+1}, v{A+2}, v{A+3}',
                    f'ds_write_b64 v7, {vr(t,2)} offset:{u*512}', f'ds_read_b64_tr_b16 {vr(tb+2*half,2)}, v8 offset:{u*512}']
        def score(unit, mkr=mk, tb=tb):
            K = [XKR[(unit, 0)], XKR[(unit, 1)], mkr]
            if unit == 0:
                return [f'v_mfma_f32_16x16x16_bf16 {vr(sc+4*k,4)}, {vr(K[k],2)}, {vr(tb,2)}, 0' for k in range(3)]
            return [f'v_mfma_f32_16x16x32_bf16 {vr(sc+4*k,4)}, {vr(K[k],4)}, {vr(tb,4)}, {vr(sc+4*k,4)}' for k in range(3)]
        def put_score(slot, sc_ins, fill):
            add(slot, 's_waitcnt lgkmcnt(0)')
            for k in range(3):
                add(slot, sc_ins[k])
                if k < len(fill): add(slot, fill[k])
        def z(u): return [f'v_mov_b64 {vr(ACC[u],2)}, 0', f'v_mov_b64 {vr(ACC[u]+2,2)}, 0']
        spread(7, mkread(0, mk)); add(10, FLAGLD)
        if OPT['kpf']: add(OPT['kpf'], f'buffer_load_dword v11, {SRD}, s43 offen lds')
        add(8, f'buffer_store_dword v88, v15, {SRD}, s{S_RA} offen {sc1}')
        if OPT['m3']:
            add(7, 's_waitcnt vmcnt(0)'); spread(9, z(2)[:1]); spread(11, z(2)[1:] + z(3))
        else: add(13, f"s_waitcnt vmcnt({3 if 0 < OPT['kpf'] <= 13 else 2})")
        spread(14, tail_tile(0, 0))
        spread(18, z(4))
        t1 = tail_tile(1, 0); spread(20, t1[:2])
        put_score(22, score(0), [t1[2], xk_load(0, 0), t1[3]])
        spread(23, mkread(1, mk)); spread(25, z(5)); add(27, xk_load(0, 1))
        spread(28, tail_tile(2, 1))
        spread(32, mkread(3, mk2))
        t3 = tail_tile(3, 0); add(35, t3[0]); add(36, t3[1])
        put_score(36, score(1), [t3[2], xk_load(1, 0), t3[3]])
        spread(37, mkread(2, mk)); add(40, xk_load(1, 1))
        if OPT['note']:
            add(OPT['note']-2, f's_add_u32 s41, s{S_STEP}, 1'); add(OPT['note']-1, 'v_mov_b32 v11, s41')
            add(OPT['note'], f'buffer_store_dword v11, off, {SRD}, s42 {sc1}')
        t4 = tail_tile(4, 1); spread(42, t4)
        t5 = tail_tile(5, 0, tb2)
        add(48, t5[0])
        put_score(48, score(2), [t5[1], t5[2], t5[3]])
        for ins in interleave(main, F): a(ins)
        st.mark(2)
        t6 = tail_tile(6, 1, tb2)
        for ins in t6: a(ins)
        a(xk_load(2, 0)); ring_off(a, S_MEM, 1, MEM_SEG, S_MB); a(xk_load(2, 1))
        a('s_waitcnt lgkmcnt(0)')
        s3 = score(3, mk2, tb2)
        for ins in (s3[2], s3[0], s3[1]): a(ins)
        st.mark(2)
        if OPT['xk3late']: a(f's_mov_b32 s{S_RA}, s{S_PM}\ns_nop 4')
        else: a(xk_load(3, 0)); a(f's_mov_b32 s{S_RA}, s{S_PM}'); a(xk_load(3, 1)); a('s_nop 2')
        for q in range(2):
            a(f'v_add_f32_dpp v{Mx+q}, v{sc+8+q}, v{sc+8+q} row_ror:8 row_mask:0xf bank_mask:0x3')
            a(f'v_add_f32_dpp v{Mx+q}, v{sc+10+q}, v{sc+10+q} row_ror:8 row_mask:0xf bank_mask:0xc')
        a(f'ds_write_b64 v5, {vr(Mx,2)}')
        for r in range(4):
            a(f'v_add_f32_dpp v{X+r}, v{sc+r}, v{sc+r} row_ror:8 row_mask:0xf bank_mask:0x3')
            a(f'v_add_f32_dpp v{X+r}, v{sc+4+r}, v{sc+4+r} row_ror:8 row_mask:0xf bank_mask:0xc')
        a(f'ds_write_b128 v13, {vr(X,4)}')
        a('s_waitcnt lgkmcnt(0)\ns_barrier')
        st.mark(2)
        R = 44
        for w in range(4): a(f'ds_read_b64 {vr(R+2*w,2)}, v14 offset:{w*SW}')
        a(f"""s_waitcnt lgkmcnt(2)
        v_pk_add_f32 {vr(R,2)}, {vr(R,2)}, {vr(R+2,2)}
        s_waitcnt lgkmcnt(0)
        v_pk_add_f32 {vr(R+4,2)}, {vr(R+4,2)}, {vr(R+6,2)}
        v_pk_add_f32 {vr(R,2)}, {vr(R,2)}, {vr(R+4,2)}
        v_min_f32 v{R}, v{R}, v90
        v_min_f32 v{R+1}, v{R+1}, v90
        v_max_f32 v{R+4}, v{R}, v{R+1}""")
        st.mark(2)
        for k in (8, 4, 2, 1):
            a(f's_nop 1\nv_max_f32_dpp v{R+4}, v{R+4}, v{R+4} row_ror:{k} {DPP}')
        a(f"""v_mov_b32 v{R+5}, v{R+4}
        s_nop 1
        v_permlane16_swap_b32 v{R+4}, v{R+5}
        v_max_f32 v{R+4}, v{R+4}, v{R+5}
        v_sub_f32 v{R}, v{R}, v{R+4}
        v_sub_f32 v{R+1}, v{R+1}, v{R+4}
        v_exp_f32 v{R}, v{R}
        v_exp_f32 v{R+1}, v{R+1}
        s_nop 0
        v_add_f32 v{R+4}, v{R}, v{R+1}""")
        for k in (8, 4, 2, 1):
            a(f's_nop 1\nv_add_f32_dpp v{R+4}, v{R+4}, v{R+4} row_ror:{k} {DPP}')
        a(f"""v_mov_b32 v{R+5}, v{R+4}
        s_nop 1
        v_permlane16_swap_b32 v{R+4}, v{R+5}
        v_add_f32 v{R+4}, v{R+4}, v{R+5}
        v_rcp_f32 v{R+4}, v{R+4}
        s_add_u32 s{S_STEP}, s{S_STEP}, 1
        v_mul_f32 v{R}, v{R}, v{R+4}
        v_mul_f32 v{R+1}, v{R+1}, v{R+4}
        v_cvt_pk_bf16_f32 v{R}, v{R}, v{R+1}
        v_min_u32 v{R}, 0xfffffffe, v{R}
        buffer_store_dword v{R}, v15, {SRD}, s{S_PM} offen {sc1}""")
        st.mark(2)
        st.flush(tmp, 20)
        a(f"""s_cmp_ge_u32 s{S_STEP}, {NSTEP-1}
        s_cbranch_scc1 {DONE}""")
        if OPT['xk3late']: a(xk_load(3, 0)); a(xk_load(3, 1)); a('s_waitcnt vmcnt(0)')
        a(f's_branch {LOOP}')
        a(f'{KB}:\ns_sub_u32 s{S_TO}, s{S_TO}, 1\ns_cbranch_scc1 {EXIT}')
        for u in range(4):
            for kt in range(2): a(xk_load(u, kt))
        a(f's_waitcnt vmcnt(0)\ns_branch {KC}')
    loop('')
    a(f'{LS}:')
    loop('sc1')
    a(f'{DONE}:')
    if stamps: stamp_dump(a, None)
    if HANDOVER: a(f's_waitcnt vmcnt(0) lgkmcnt(0)\ns_barrier\ns_cmp_eq_u32 s{S_L}, 0\ns_cbranch_scc1 {P_ENTRY}')
    a(f's_branch {EXIT}')

def v_cu(a, EXIT, stamps=0, mode_fn=None):
    MEMS, PART, WL = 0, 8192, 16384
    nA, vb = 32, 176
    memA, acc, wr, vx, pf, vmf, oa, pd, fl, tmp = 16, 44, 76, 92, 124, 136, 144, 160, 168, 170
    S_MEM, S_PM, S_VX, S_FV, S_T0, S_MG, S_VM, S_FM, S_MB, S_PB, S_RA, S_MN, S_MGN, S_VMN = 24, 25, 26, 27, 28, 29, 30, 31, 32, 33, 34, 35, 40, 41
    DONE = a.label('Ldone')
    hold_back(a, EXIT)
    need_cols(a, EXIT, off=16*OPT['two'])
    mem_addr_setup(a)
    a(f'''s_mul_i32 s20, s{S_W}, 28672
    s_add_u32 s20, s20, {WL}
    s_mul_i32 s21, s{S_W}, 112
    s_lshl_b32 s{S_T0}, s{S_P}, 1
    s_add_u32 s21, s21, s{S_T0}
    s_mul_i32 s21, s21, 14336
    s_add_u32 s21, s21, {WV}''')
    a('s_mov_b32 s24, s20\ns_mov_b32 s25, s21')
    n = 0
    for lo, hi in ((0, 4), (4, 14)):
        if lo: after_peek(a, 16, 18, 16, EXIT)
        for hh in (3, 0, 1, 2):
            if not lo and hh == 1: peek_done(a, 16, 18)
            for t in range(2):
                for ks in range(lo, hi):
                    if (ks & 3) == 0:
                        a(f's_add_u32 s{S_T0}, s25, {(hh*28+t)*14336 + ks*1024}')
                        if hh == 3: a(f's_add_u32 m0, s24, {t*14336 + ks*1024}\ns_nop 0')
                    if hh == 3: a(f'buffer_load_dwordx4 v1, {SRD}, s{S_T0} offen offset:{(ks&3)*1024} sc1 lds')
                    else: a(f'buffer_load_dwordx4 {wreg4((hh*2+t)*7 + ks//2, ks & 1, nA, vb)}, v1, {SRD}, s{S_T0} offen offset:{(ks&3)*1024} sc1')
                    n += 1
                    if lo and n >= 80 and n % 8 == 0: a('s_waitcnt vmcnt(40)')
    a('s_mov_b32 s20, s24')
    a(f'''v_mov_b32 v14, v7
    v_add_u32 v7, s20, v1
    v_and_b32 v15, 7, v14
    v_lshrrev_b32 v{tmp}, 4, v14
    v_bfe_u32 v{tmp+1}, v14, 3, 1
    v_lshrrev_b32 v{tmp+2}, 5, v14
    s_lshl_b32 s20, s{S_W}, 11
    v_add_u32 v8, s20, v1
    v_lshlrev_b32 v9, 7, v{tmp}
    v_lshl_add_u32 v9, v15, 4, v9
    v_lshl_add_u32 v10, v{tmp+1}, 9, v9
    s_lshl_b32 s20, s{S_W}, 10
    s_add_u32 s20, s20, {PART}
    v_add_u32 v10, s20, v10
    s_lshl_b32 s21, s{S_W}, 9
    s_add_u32 s21, s21, 8192
    {f'v_and_b32 v9, 1, v{tmp}' if OPT['cvo'] else ''}
    {f'v_lshl_add_u32 v9, v{tmp+1}, 1, v9' if OPT['cvo'] else ''}
    {f'v_lshlrev_b32 v9, 7, v9' if OPT['cvo'] else ''}
    {f'v_lshl_add_u32 v9, v15, 4, v9' if OPT['cvo'] else ''}
    v_add_u32 v9, s21, v9
    v_and_b32 v11, 15, v14
    v_lshlrev_b32 v11, 4, v11
    v_lshl_add_u32 v11, v{tmp}, 10, v11
    s_lshl_b32 s20, s{S_W}, 8
    s_add_u32 s20, s20, {PART}
    v_add_u32 v11, s20, v11
    v_lshlrev_b32 v12, 4, v15
    v_lshl_add_u32 v4, v{tmp+1}, 3, v12
    v_lshl_add_u32 v4, v{tmp+2}, 2, v4
    s_lshl_b32 s20, s{S_P}, 2
    s_add_u32 s20, s20, s{S_W}
    s_lshl_b32 s21, s20, 7
    v_add_u32 v4, s21, v4
    v_lshl_add_u32 v12, v{tmp+2}, 7, v12
    v_lshl_add_u32 v12, v{tmp+1}, 2, v12
    s_lshr_b32 s21, s20, 1
    s_lshl_b32 s21, s21, 8
    s_and_b32 s20, s20, 1
    s_lshl_b32 s20, s20, 3
    s_add_u32 s21, s21, s20
    v_add_u32 v12, s21, v12
    v_and_b32 v13, 3, v14
    s_lshl_b32 s20, s{S_W}, 2
    v_add_u32 v13, s20, v13
    v_lshlrev_b32 v13, 7, v13
    v_mov_b32 v5, -1
    v_cmp_eq_u32 vcc, 0, v0
    v_mov_b32 v14, 0x7f000000
    v_mov_b32 v15, 1
    v_cndmask_b32 v14, v14, 0, vcc''')
    a(f'''s_lshl_b32 s{S_MB}, s{S_L}, 15
    s_add_u32 s{S_MB}, s{S_MB}, {MEMF}
    s_lshl_b32 s{S_PB}, s{S_L}, 16
    s_add_u32 s{S_PB}, s{S_PB}, {PM}
    s_lshl_b32 s20, s{S_L}, 6
    s_lshl_b32 s{S_MGN}, s20, 13
    s_add_u32 s{S_MGN}, s{S_MGN}, {MEMG+MEM_SEG}
    s_mov_b32 s{S_MG}, {DUMMY}
    s_mul_i32 s{S_VX}, s20, {VX_SEG}
    s_mul_i32 s21, s{S_W}, 112
    s_lshl_b32 s{S_T0}, s{S_P}, 1
    s_add_u32 s21, s21, s{S_T0}
    s_lshl_b32 s21, s21, 10
    s_add_u32 s{S_VX}, s{S_VX}, s21
    s_add_u32 s{S_VX}, s{S_VX}, {VX}
    s_mul_i32 s{S_VM}, s20, {VM_SEG}
    s_mul_i32 s21, s{S_W}, 28
    s_add_u32 s21, s21, s{S_T0}
    s_lshl_b32 s21, s21, 10
    s_add_u32 s{S_VM}, s{S_VM}, s21
    s_add_u32 s{S_VMN}, s{S_VM}, {VM}
    s_mov_b32 s{S_VM}, {DUMMY}
    s_mul_i32 s{S_FV}, s20, {flag_seg(F_VX)}
    s_add_u32 s{S_MN}, s{S_FV}, {flag_base(F_VM)}
    s_add_u32 s{S_FV}, s{S_FV}, {flag_base(F_VX)}
    s_lshl_b32 s21, s{S_P}, 7
    s_add_u32 s{S_MN}, s{S_MN}, s21
    s_mov_b32 s{S_FM}, {DUMMY}
    s_mov_b32 s{S_STEP}, 0
    s_mov_b32 s{S_MEM}, s{S_MB}
    s_mov_b32 s{S_PM}, s{S_PB}
    s_add_u32 s{S_RA}, s{S_MB}, {3*MEM_SEG}
    v_mov_b32 v{fl}, 0''')
    all_done(a, EXIT)
    if mode_fn: mode_fn(pd, pd+1)
    S_X = 36
    S_FC = 42
    a(f's_lshl_b32 s45, s{S_L}, 7\ns_add_u32 s45, s45, {CNT+2048}\nv_lshrrev_b32 v{tmp+5}, 5, v13')
    S_F2 = 44
    a(f's_mov_b32 s{S_F2}, {DUMMY}')
    a('s_mov_b32 s43, 0')
    a(f's_mov_b32 s{S_T0}, 0x7f000000')
    a('s_mov_b32 s56, s4\ns_mov_b32 s57, s5\ns_mov_b32 s58, 0\ns_mov_b32 s59, 0x20000')
    D2 = (16, 20)
    LS = a.label('Lvslow')
    a(f's_cmp_eq_u32 s{S_FAST}, 1\ns_cbranch_scc0 {LS}')
    def loop(sc1):
        st = Stamps(a, stamps)
        LOOP = a.label('Lv'); LAST = a.label('Lvlast'); Lok = a.label('Lvf')
        a(f"""{LOOP}:
        v_cmp_eq_u32 vcc, 0, v{fl}
        s_mov_b32 s{S_FC}, s{S_FV}
        s_cbranch_vccz {LOOP}_f
        buffer_load_dword v{fl}, v13, {SRD}, s{S_FV} offen sc1
        {LOOP}_f:""")
        def vwork():
            for hh in range(4): a(f's_add_u32 s{S_X+hh}, s{S_VX}, {hh*28672}')
            if OPT['v64']:
                for r in range(16): a(f'v_mov_b64 {vr(acc+2*r,2)}, 0')
            else:
                for r in range(32): a(f'v_mov_b32 v{acc+r}, 0')
        if OPT['vpre']: vwork()
        if OPT['vdel']: a(f"s_sleep {OPT['vdel']}")
        st.mark()
        poll_mem(a, S_MEM, (pd, pd+4), tmp, EXIT, MEMS, D2, lambda: (None if OPT['vpre'] else vwork(), a(f"s_sleep {OPT['vsl']}") if OPT['vsl'] else None))
        st.mark(2)
        X = '' if OPT['nost'] else 'sc1'
        a(f'v_cmp_eq_u32 vcc, 0, v{fl}')
        VL = lambda srd: [f'buffer_load_dwordx4 {vr(vx+8*hh+4*t,4)}, v1, {srd}, s{S_X+hh} offen offset:{t*1024} sc1' for hh in range(4) for t in range(2)]
        if OPT['pre'] or OPT['post']:
            a('s_nop 0\ns_cmp_eq_u64 vcc, 0\ns_cselect_b32 s58, 0x10000000, 0')
            if OPT['post']:
                NP = a.label('Lnp')
                a(f's_cmp_lg_u32 s43, 0\ns_cbranch_scc1 {NP}')
                for x in VL('s[56:59]')[:OPT['post']]: a(x)
                a(f'{NP}:')
            for x in VL('s[56:59]')[OPT['post']:OPT['post']+OPT['pre']]: a(x)
        a(f"""buffer_store_dword v{tmp+2}, v{14 if OPT['mgearly'] else 4}, {SRD}, s{S_T0 if OPT['mgearly'] else S_MG} offen {X}
        buffer_store_dwordx4 {vr(vmf,4)}, v1, {SRD}, s{S_VM} offen {X}
        buffer_store_dwordx4 {vr(vmf+4,4)}, v1, {SRD}, s{S_VM} offen offset:1024 {X}
        s_cmp_eq_u64 vcc, 0
        s_cselect_b32 s58, 0x10000000, 0
        s_mov_b32 s{S_VM}, s{S_VMN}
        s_add_u32 s{S_VMN}, s{S_VMN}, {VM_SEG}
        s_add_u32 s{S_VX}, s{S_VX}, {VX_SEG}
        s_add_u32 s{S_FV}, s{S_FV}, {flag_seg(F_VX)}
        s_waitcnt lgkmcnt(0)
        s_barrier""")
        st.mark(2)
        def wread(i):
            o = i*2048; R = wr+8*(i & 1)
            return [f'ds_read_b128 {vr(R,4)}, v7 offset:{o}', f'ds_read_b128 {vr(R+4,4)}, v7 offset:{o+1024}']
        VL = lambda srd: [f'buffer_load_dwordx4 {vr(vx+8*hh+4*t,4)}, v1, {srd}, s{S_X+hh} offen offset:{t*1024} sc1' for hh in range(4) for t in range(2)]
        V = VL('s[56:59]')[OPT['post']+OPT['pre']:]
        V = [f'buffer_load_dword v{fl}, v13, {SRD}, s{S_FV} offen sc1'] + V
        V += [f'buffer_store_dword v5, v12, {SRD}, s{S_RA} offen {sc1}']
        fi = OPT['fpos']
        if OPT['fnext']:
            fi = 99
            V.insert(1, f'buffer_store_dword v15, v14, {SRD}, s{S_F2} offen sc1')
        if OPT['novx']: V = [x if 'dwordx4' not in x else f'buffer_load_dword v{tmp+3}, v14, {SRD}, s{S_RA} offen' for x in V]
        while len(V) < fi and fi < 99: V.append('')
        nb = len([x for x in V[:fi] if x])
        V.insert(fi, f's_waitcnt vmcnt({nb})\ns_barrier\nbuffer_store_dword v15, v14, {SRD}, s{S_FM} offen sc1' if fi < 99 else '')
        a(f's_waitcnt vmcnt({3+OPT["pre"]})')
        for b in range(7): a(f'ds_read_b128 {vr(memA+4*b,4)}, v1 offset:{MEMS+1024*b}')
        for ins in wread(0) + wread(1): a(ins)
        a('s_waitcnt lgkmcnt(4)')
        regs = [(ui, b) for ui in range(6) for b in range(7)]
        k = 0
        for i in range(14):
            for q in range(3):
                ui, b = regs[k]; k += 1
                a(f'v_smfmac_f32_16x16x64_bf16 {vr(acc+4*ui,4)}, {vr(memA+4*b,4)}, {wreg(ui*7+b, nA, vb)}, v6')
                if i > 0 and i+1 < 14 and q < 2: a(wread(i+1)[q])
                if q == 2: a(f's_waitcnt lgkmcnt({2 if i < 13 else 0})')
            a(f'v_smfmac_f32_16x16x64_bf16 {vr(acc+4*(6+i//7),4)}, {vr(memA+4*(i%7),4)}, {vr(wr+8*(i&1),8)}, v6')
            if i < len(V): a(V[i])
        st.mark(2)
        a(f"""s_mov_b32 s{S_RA}, s{S_MEM}
        s_mov_b32 s{S_F2}, s{S_FM}
        s_mov_b32 s{S_FM}, s{S_MN}
        s_add_u32 s{S_MN}, s{S_MN}, {flag_seg(F_VM)}
        s_nop 0""")
        ring_off(a, S_MEM, 1, MEM_SEG, S_MB)
        def pack(t):
            for lo in range(2):
                A0 = acc+4*(lo*2+t); A1 = acc+4*((lo+2)*2+t)
                for r in range(4): a(f'v_permlane32_swap_b32 v{A0+r}, v{A1+r}')
                for r in range(4): a(f'v_add_f32 v{A0+r}, v{A0+r}, v{A1+r}')
                a(f'v_cvt_pk_bf16_f32 v{vmf+4*t+2*lo}, v{A0}, v{A0+1}')
                a(f'v_cvt_pk_bf16_f32 v{vmf+4*t+2*lo+1}, v{A0+2}, v{A0+3}')
        if OPT['cvo']:
            for t in range(2):
                for hh in range(4):
                    A0 = acc+4*(hh*2+t)
                    a(f'v_cvt_pk_bf16_f32 v{wr+8*t+2*hh}, v{A0}, v{A0+1}\nv_cvt_pk_bf16_f32 v{wr+8*t+2*hh+1}, v{A0+2}, v{A0+3}')
        else:
            pack(0)
            if OPT['ppre']: pack(1)
        a(f"""s_cmp_ge_u32 s{S_STEP}, {NSTEP-1}
        s_cbranch_scc1 {LAST}
        s_cmp_lg_u32 s58, 0
        s_cbranch_scc1 {Lok}""")
        wait_flags(a, 13, S_FC, tmp+3, EXIT)
        for x in VL(SRD): a(x)
        a(f'{Lok}:')
        st.mark(2)
        if stamps >= 3: a('s_waitcnt vmcnt(3)')
        st.mark(3)
        if stamps >= 3: a('s_waitcnt vmcnt(1)')
        st.mark(3)
        if stamps >= 3: a('s_waitcnt vmcnt(0)')
        st.mark(3)
        L = a.label('Lpp'); UA = a.label('LuA'); UB = a.label('LuB'); J = a.label('LuJ')
        OA = lambda t, ab: oa+8*t+4*ab
        pf2 = memA
        def issue(r):
            a(f"""buffer_load_dwordx4 {vr(r,4)}, v8, {SRD}, s{S_PM} offen sc1
            buffer_load_dwordx4 {vr(r+4,4)}, v8, {SRD}, s{S_PM} offen offset:1024 sc1
            buffer_load_dwordx4 {vr(r+8,4)}, v9, {SRD}, s{S_PM} offen sc1""")
        mf = lambda D, A, B, C: f'v_mfma_f32_16x16x32_bf16 {vr(D,4)}, {vr(A,4)}, {vr(B,4)}, {C}'
        def use(p, o=3):
            a(f's_waitcnt vmcnt({o+2})')
            a(mf(OA(0,0), vx, p, 0)); a(f'v_max3_u32 v{tmp}, v{p}, v{p+1}, v{p+2}')
            a(mf(OA(0,1), vx+8, p, 0)); a(mf(OA(1,0), vx+4, p, 0)); a(mf(OA(1,1), vx+12, p, 0))
            a(f's_waitcnt vmcnt({o+1})')
            a(mf(OA(0,1), vx+24, p+4, vr(OA(0,1),4))); a(f'v_max3_u32 v{tmp+1}, v{p+3}, v{p+4}, v{p+5}')
            a(mf(OA(1,1), vx+28, p+4, vr(OA(1,1),4))); a(f'v_max3_u32 v{tmp}, v{tmp}, v{p+6}, v{p+7}')
            a(mf(OA(0,0), vx+16, p+4, vr(OA(0,0),4))); a(mf(OA(1,0), vx+20, p+4, vr(OA(1,0),4)))
            a(f"""s_waitcnt vmcnt({o})
            v_max3_u32 v{tmp+1}, v{tmp+1}, v{p+8}, v{p+9}
            v_max3_u32 v{tmp}, v{tmp}, v{p+10}, v{p+11}
            v_max_u32 v{tmp}, v{tmp}, v{tmp+1}
            v_cmp_eq_u32 vcc, -1, v{tmp}""")
            if OPT['cvo']:
                for ab in (1, 0):
                    for t in range(2): a(mf(OA(t,ab), wr+8*t+4*ab, p+8, vr(OA(t,ab),4)))
            else:
                a(mf(OA(0,0), vmf, p+8, vr(OA(0,0),4))); a(mf(OA(1,0), vmf+4, p+8, vr(OA(1,0),4)))
        if OPT['note']:
            NL = a.label('Lnote')
            a(f"""{NL}:
            buffer_load_dword v{tmp+4}, v{tmp+5}, {SRD}, s45 offen sc1
            s_sub_u32 s{S_TO}, s{S_TO}, 1
            s_cbranch_scc1 {EXIT}
            s_waitcnt vmcnt(0)
            v_cmp_ge_u32 vcc, s{S_STEP}, v{tmp+4}
            s_cbranch_vccnz {NL}""")
        elif OPT['pdel']: a(f"s_sleep {OPT['pdel']}")
        if OPT['pcan']:
            C = a.label('Lcan'); CO = a.label('Lcok')
            def cl(r): a(f'buffer_load_dwordx4 {vr(r,4)}, v9, {SRD}, s{S_PM} offen sc1')
            def cc(r): a(f"""s_waitcnt vmcnt(1)
                v_max3_u32 v{tmp}, v{r}, v{r+1}, v{r+2}
                v_max_u32 v{tmp}, v{tmp}, v{r+3}
                v_cmp_eq_u32 vcc, -1, v{tmp}""")
            cl(pf2); a('s_nop 15\ns_nop 15')
            a(f'{C}:'); cl(pf2+4); cc(pf2); a(f's_cbranch_vccz {CO}'); cl(pf2)
            a(f's_sub_u32 s{S_TO}, s{S_TO}, 1\ns_cbranch_scc1 {EXIT}')
            cc(pf2+4); a(f's_cbranch_vccnz {C}\n{CO}:')
        if OPT['pcan'] or not OPT['p2']:
            a(f'{L}:')
            issue(pf)
            a(f's_sub_u32 s{S_TO}, s{S_TO}, 1\ns_cbranch_scc1 {EXIT}')
            use(pf, 0)
            a(f's_cbranch_vccnz {L}')
        else:
            if OPT['early']:
                UA = a.label('LuA'); UB = a.label('LuB')
                def chk(p):
                    a(f"""s_waitcnt vmcnt(5)
                    v_max3_u32 v{tmp}, v{p}, v{p+1}, v{p+2}
                    s_waitcnt vmcnt(4)
                    v_max3_u32 v{tmp+1}, v{p+3}, v{p+4}, v{p+5}
                    v_max3_u32 v{tmp}, v{tmp}, v{p+6}, v{p+7}
                    s_waitcnt vmcnt(3)
                    v_max3_u32 v{tmp+1}, v{tmp+1}, v{p+8}, v{p+9}
                    v_max3_u32 v{tmp}, v{tmp}, v{p+10}, v{p+11}
                    v_max_u32 v{tmp}, v{tmp}, v{tmp+1}
                    v_cmp_eq_u32 vcc, -1, v{tmp}""")
                    a(mf(OA(0,0), vx, p, 0)); a(mf(OA(0,1), vx+8, p, 0))
                def rest(p):
                    for x in (mf(OA(1,0), vx+4, p, 0), mf(OA(1,1), vx+12, p, 0), mf(OA(0,1), vx+24, p+4, vr(OA(0,1),4)), mf(OA(1,1), vx+28, p+4, vr(OA(1,1),4)),
                              mf(OA(0,0), vx+16, p+4, vr(OA(0,0),4)), mf(OA(1,0), vx+20, p+4, vr(OA(1,0),4)), mf(OA(0,0), vmf, p+8, vr(OA(0,0),4)), mf(OA(1,0), vmf+4, p+8, vr(OA(1,0),4))): a(x)
                issue(pf)
                if OPT['psl']: a(f"s_sleep {OPT['psl']}")
                a(f'{L}:'); issue(pf2); chk(pf); a(f's_cbranch_vccz {UA}')
                issue(pf); a(f's_sub_u32 s{S_TO}, s{S_TO}, 1\ns_cbranch_scc1 {EXIT}'); chk(pf2); a(f's_cbranch_vccnz {L}')
                rest(pf2); a(f's_branch {J}\n{UA}:'); rest(pf); a('s_nop 0')
            else:
                issue(pf)
                if not OPT['ppre']: pack(1)
                if OPT['psl']: a(f"s_sleep {OPT['psl']}")
                a(f'{L}:')
                issue(pf2)
                use(pf)
                a(f's_cbranch_vccz {J}')
                issue(pf)
                a(f"""s_sub_u32 s{S_TO}, s{S_TO}, 1
                s_cbranch_scc1 {EXIT}""")
                use(pf2)
                a(f's_cbranch_vccnz {L}')
        a(f'{J}:')
        st.mark(2)
        R = pd if OPT['cvo'] else acc
        a('s_nop 5')
        for r in range(4):
            a(f'v_add_f32_dpp v{R+4+r}, v{OA(0,1)+r}, v{OA(0,0)+r} row_ror:8 row_mask:0xf bank_mask:0x3')
        for r in range(4):
            a(f'v_add_f32_dpp v{R+4+r}, v{OA(1,0)+r}, v{OA(1,1)+r} row_ror:8 row_mask:0xf bank_mask:0xc')
        a(f'ds_write_b128 v10, {vr(R+4,4)}')
        a(f's_add_u32 s{S_STEP}, s{S_STEP}, 1')
        a('s_waitcnt lgkmcnt(0)\ns_barrier')
        st.mark(2)
        a(f"""ds_read_b128 {vr(R,4)}, v11
        s_waitcnt lgkmcnt(0)
        v_permlane32_swap_b32 v{R}, v{R+2}
        v_permlane32_swap_b32 v{R+1}, v{R+3}
        v_add_f32 v{R}, v{R}, v{R+2}
        v_add_f32 v{R+1}, v{R+1}, v{R+3}
        s_nop 1
        v_permlane16_swap_b32 v{R}, v{R+1}
        v_add_f32 v{R}, v{R}, v{R+1}
        v_mov_b32 v{R+1}, v{R}
        s_nop 1
        v_permlane16_swap_b32 v{R}, v{R+1}
        v_cvt_pk_bf16_f32 v{tmp+2}, v{R}, v{R+1}
        v_min_u32 v{tmp+2}, 0xfffffffe, v{tmp+2}
        buffer_store_dword v{tmp+2}, v12, {SRD}, s{S_MEM} offen {sc1}
        s_mov_b32 s{S_MG}, s{S_MGN}
        s_add_u32 s{S_MGN}, s{S_MGN}, {MEM_SEG}""")
        if OPT['mgearly']: a(f'buffer_store_dword v{tmp+2}, v4, {SRD}, s{S_MG} offen sc1')
        st.mark(2)
        st.flush(tmp, 20)
        if OPT['post']:
            a(f'v_cmp_eq_u32 vcc, 0, v{fl}')
            for hh in range(4): a(f's_add_u32 s{S_X+hh}, s{S_VX}, {hh*28672}')
            a(f's_cmp_eq_u64 vcc, 0\ns_cselect_b32 s58, 0x10000000, 0\ns_mov_b32 s43, s58')
            for x in VL('s[56:59]')[:OPT['post']]: a(x)
        ring_off(a, S_PM, 0, PM_SEG, S_PB)
        if OPT['cvo']: pack(0); pack(1)
        a(f"""s_branch {LOOP}
        {LAST}:""")
        if OPT['cvo']: pack(0); pack(1)
        elif not OPT['ppre']: pack(1)
        a(f"""buffer_store_dwordx4 {vr(vmf,4)}, v1, {SRD}, s{S_VM} offen sc1
        buffer_store_dwordx4 {vr(vmf+4,4)}, v1, {SRD}, s{S_VM} offen offset:1024 sc1
        s_waitcnt vmcnt(0)
        s_barrier
        buffer_store_dword v15, v14, {SRD}, s{S_FM} offen sc1
        buffer_store_dword v15, v14, {SRD}, s{S_F2} offen sc1
        s_branch {DONE}""")
    loop('')
    a(f'{LS}:')
    loop('sc1')
    a(f'{DONE}:')
    if stamps: stamp_dump(a, None)
    if HANDOVER: a(f's_waitcnt vmcnt(0) lgkmcnt(0)\ns_barrier\ns_cmp_eq_u32 s{S_L}, 0\ns_cbranch_scc1 {PV_ENTRY}')
    a(f's_branch {EXIT}')


def pf_cu(a, EXIT, stamps=0):
    a('; ================= chain prefetch CU =================')
    n = OPT['npf']
    all_done(a, EXIT)
    a(f"""v_and_b32 v1, 63, v0
    v_lshlrev_b32 v2, 7, v1
    s_lshl_b32 s20, s{S_P}, 2
    s_add_u32 s20, s20, s{S_W}
    s_mul_i32 s20, s20, {7*8192}
    v_add_u32 v2, s20, v2
    v_and_b32 v3, 31, v1
    v_cmp_gt_u32 vcc, 16, v3
    v_lshlrev_b32 v3, 7, v3
    v_mov_b32 v4, {flag_base(F_VX)}
    v_mov_b32 v5, {flag_base(F_VM) - 3*flag_seg(F_VM) - 2048}
    v_min_u32 v3, {29*128}, v3
    v_cndmask_b32 v4, v5, v4, vcc
    v_add_u32 v3, v3, v4
    s_lshl_b32 s24, s{S_L}, 6
    s_add_u32 s24, s24, 3
    s_mul_i32 s25, s24, {VX_SEG}
    s_add_u32 s25, s25, {VX}
    s_mul_i32 s24, s24, {flag_seg(F_VX)}
    s_mov_b32 s{S_STEP}, 3""")
    L = a.label('Lpfc')
    a(f'{L}:')
    wait_flags(a, 3, 24, 6, EXIT)
    for k in range(n): a(f's_add_u32 s26, s25, {k*8192}\nbuffer_load_dword v{8+k}, v2, {SRD}, s26 offen')
    a(f"""s_add_u32 s25, s25, {VX_SEG}
    s_add_u32 s24, s24, {flag_seg(F_VX)}
    s_add_u32 s{S_STEP}, s{S_STEP}, 1
    s_cmp_lt_u32 s{S_STEP}, 63
    s_cbranch_scc1 {L}
    s_branch {EXIT}""")
```

```python
import sys
from asmlib import *
from layout import *
import chain, workers
from chain import SRD, S_W, S_SLOT, S_L, S_P, S_FAST, S_STEP, S_TO

KN = 'interleave_layers__memory_aug_recurrent_mem_tr__glu_gated_glu__prompt'
R_IDLE, R_K, R_V, R_P, R_VX, R_B1, R_B2, R_PV, R_PF = range(9)

def role_table():
    T = [R_IDLE]*256
    def enc(role, l=0, p=0, u=0): return role | (l << 4) | (p << 8) | (u << 16)
    for l in range(2):
        for r in range(16): T[l*32+r] = enc(R_K, l, r)
        for r in range(14): T[l*32+16+r] = enc(R_V, l, r)
        if chain.OPT['npf']:
            for r in range(2): T[l*32+30+r] = enc(R_PF, l, r)
    free = {x: list(range(x*32, x*32+32)) for x in range(2, 8)}
    if not workers.LAYOUT:
        for h in range(16):
            x = 2 + h % 6
            for u in range(workers.N_P): T[free[x].pop(0)] = enc(R_P, 0, h, u)
            for u in range(3): T[free[x].pop(0)] = enc(R_VX, 0, h, u)
        teams = [(R_B2, u) for u in range(4)] + [(R_PV, u) for u in range(3)]
        for (r, u), x in zip(teams, [2, 3, 4, 5, 6, 6, 7]):
            for c in range(7): T[free[x].pop(0)] = enc(r, 0, c, u)
        slots = free[6] + free[7] + free[2] + free[3] + free[4] + free[5]
        for k in range(28): T[slots[k]] = enc(R_B1, 0, k // 2, k % 2)
        return T
    for l in range(2):
        x = 2 + l
        for c in range(14): T[free[x].pop(0)] = enc(R_B1, 0, c, l)
        for u in range(2):
            for c in range(7): T[free[x].pop(0)] = enc(R_B2, 0, c, 2*l+u)
    for h in range(16):
        x = 4 + h % 4
        for u in range(workers.N_P): T[free[x].pop(0)] = enc(R_P, 0, h, u)
        for u in range(3): T[free[x].pop(0)] = enc(R_VX, 0, h, u)
    slots = [s for x in range(2, 8) for s in free[x]]
    for k in range(21): T[slots[k]] = enc(R_PV, 0, k % 7, k // 7)
    return T

def kd(name, vgpr=512, sgpr=102, acc=256):
    return f'''.amdhsa_kernel {name}
  .amdhsa_next_free_vgpr {vgpr}
  .amdhsa_next_free_sgpr {sgpr}
  .amdhsa_accum_offset {acc}
  .amdhsa_group_segment_fixed_size 0
  .amdhsa_kernarg_size 112
  .amdhsa_user_sgpr_count 2
  .amdhsa_user_sgpr_kernarg_segment_ptr 1
  .amdhsa_system_sgpr_workgroup_id_x 1
.end_amdhsa_kernel
'''

DS = 's[80:83]'
PSTAMP = 0
NOCH = False
NOW = False
def main_kernel(a, name, roles, stamps=False, force_slow=False, with_prep=True):
    EXIT = f'{name}_exit'
    a(f'.globl {name}\n.p2align 8\n.type {name},@function\n{name}:')
    a(f"""s_cmp_ge_u32 s2, 256
    s_cbranch_scc1 {EXIT}
    s_memrealtime s[78:79]
    s_load_dwordx2 s[4:5], s[0:1], 104
    s_load_dwordx2 s[80:81], s[0:1], 96
    s_load_dwordx4 s[40:43], s[0:1], 0
    s_load_dwordx4 s[44:47], s[0:1], 16
    s_load_dwordx4 s[48:51], s[0:1], 32
    s_load_dwordx4 s[52:55], s[0:1], 64
    s_load_dwordx2 s[56:57], s[0:1], 80
    s_getreg_b32 s7, hwreg(HW_REG_XCC_ID)
    s_and_b32 s7, s7, 7
    v_lshrrev_b32 v1, 6, v0
    s_mov_b32 s82, 256
    v_readfirstlane_b32 s{S_W}, v1
    s_mov_b32 s83, 0x20000
    s_mov_b32 s10, 0x10000000
    s_mov_b32 s11, 0x20000
    s_getpc_b64 s[22:23]
    s_waitcnt lgkmcnt(0)
    s_mov_b32 s8, s4
    s_mov_b32 s9, s5
    s_and_b32 s78, s78, 0xfffffff0
    s_lshl_b32 s20, s7, 1
    s_or_b32 s78, s78, s20
    s_or_b32 s78, s78, 1
    {'s_mov_b32 s98, s78' if stamps else ''}""")
    Lw = a.label('Lra'); Lnat = a.label('Lnat'); Lov = a.label('Lov'); Lov2 = a.label('Lov2'); Lov3 = a.label('Lov3')
    TL = a.label('Ltouch'); TJ = a.label('Ltj')
    a(f"""s_cmp_eq_u32 s{S_W}, 0
    s_cbranch_scc1 {TL}
    s_cmp_lg_u32 s{S_W}, 1
    s_cbranch_scc1 {TJ}
    s_bfe_u32 s20, s2, 0x50003
    s_lshl_b32 s20, s20, 11
    v_and_b32 v1, 15, v0
    v_lshlrev_b32 v1, 7, v1
    v_add_u32 v1, s20, v1
    v_min_u32 v2, {name}_tab-{name}-256, v1
    global_load_dword v250, v2, s[22:23]
    s_branch {TJ}
    {TL}:
    s_cmp_lg_u32 s2, 248
    s_cbranch_scc1 {TJ}
    s_mov_b64 exec, 0x1ff
    v_lshlrev_b32 v1, 7, v0
    v_mov_b32 v2, 0
    s_mov_b32 s21, {RANK}
    buffer_store_dword v2, v1, {SRD}, s21 offen sc1
    v_mov_b32 v2, s78
    v_mov_b32 v3, s79
    s_mov_b64 exec, 1
    s_waitcnt vmcnt(0)
    buffer_store_dwordx2 v[2:3], v1, {DS}, 0 offen offset:128 sc1
    s_mov_b64 exec, -1
    {TJ}:
    s_mov_b32 s6, 0""")
    def take_rank(vr_, sn):
        a(f"""s_mov_b64 exec, 1
        s_bfe_u32 s21, s{sn}, 0x30001
        s_sub_u32 s7, s7, s21
        s_and_b32 s7, s7, 7
        s_lshl_b32 s21, s7, 7
        s_add_u32 s21, s21, {RANK}
        v_mov_b32 v{vr_+1}, 0
        v_mov_b32 v{vr_}, 1
        buffer_atomic_add v{vr_}, v{vr_+1}, {SRD}, s21 offen sc0 sc1
        s_mov_b64 exec, -1
        s_mov_b32 s6, 1""")
    def hook(k, vr_=40, vn=42):
        if k == 1: return f'buffer_load_dwordx2 v[42:43], v44, {DS}, 0 offen offset:128 sc1'
        L = a.label('Lhk')
        if k == 3:
            a(f"""s_barrier
            s_cmp_lg_u32 s6, 1
            s_cbranch_scc1 {L}
            s_lshl_b32 s21, s2, 7
            s_add_u32 s21, s21, {DONEF+16}
            s_mov_b64 exec, 1
            buffer_store_dwordx2 v[42:43], v44, {SRD}, s21 offen sc1
            s_mov_b64 exec, -1
            {L}:""")
            return
        a(f"""s_cmp_lg_u32 s{S_W}, 0
        s_cbranch_scc1 {L}
        v_readfirstlane_b32 s88, v{vn}
        v_readfirstlane_b32 s89, v{vn+1}
        s_cmp_eq_u64 s[88:89], 0
        s_cbranch_scc1 {L}""")
        take_rank(vr_, 88)
        a(f'{L}:')
    if with_prep: prep.prep_body(a, a.label('Lprep_end'), hook, PSTAMP or stamps)
    a(f"""s_mov_b32 s{S_TO}, 0x80000
    s_mov_b32 s{S_FAST}, 1
    s_waitcnt vmcnt(0)
    s_barrier
    s_cmp_lg_u32 s{S_W}, 0
    s_cbranch_scc1 {Lw}
    s_mov_b64 s[78:79], s[88:89]
    s_cmp_eq_u32 s6, 1
    s_cbranch_scc1 {Lw}_r
    v_mov_b32 v1, 0
    {Lw}_n:
    buffer_load_dwordx2 v[2:3], v1, {DS}, 0 offen offset:128 sc1
    s_sub_u32 s{S_TO}, s{S_TO}, 1
    s_cbranch_scc1 {EXIT}
    s_waitcnt vmcnt(0)
    v_readfirstlane_b32 s78, v2
    v_readfirstlane_b32 s79, v3
    s_cmp_eq_u64 s[78:79], 0
    s_cbranch_scc1 {Lw}_n""")
    take_rank(40, 78)
    a(f"""{Lw}_r:
    s_mov_b64 exec, 1
    v_mov_b32 v1, 0
    v_mov_b32 v2, s78
    v_mov_b32 v3, s79
    s_lshl_b32 s21, s2, 7
    s_add_u32 s21, s21, {DONEF}
    buffer_store_dwordx2 v[2:3], v1, {SRD}, s21 offen sc1
    buffer_store_dwordx2 v[2:3], v1, {SRD}, s21 offen offset:16 sc1
    s_waitcnt vmcnt(2)
    v_readfirstlane_b32 s6, v40
    s_lshl_b32 s{S_SLOT}, s7, 5
    s_add_u32 s{S_SLOT}, s{S_SLOT}, s6
    s_cmp_lt_u32 s6, 32
    s_cbranch_scc1 {Lnat}
    v_mov_b32 v2, 1
    s_mov_b32 s21, {RANK}
    buffer_atomic_add v2, v1, {SRD}, s21 offen offset:1024 sc0 sc1
    s_waitcnt vmcnt(0)
    v_readfirstlane_b32 s22, v2
    s_mov_b64 exec, 0xff
    v_mbcnt_lo_u32_b32 v1, -1, 0
    v_lshlrev_b32 v1, 7, v1""")
    a(f'''
    {Lov}:
    buffer_load_dword v2, v1, {SRD}, s21 offen sc1
    s_sub_u32 s{S_TO}, s{S_TO}, 1
    s_cbranch_scc1 {EXIT}
    s_waitcnt vmcnt(0)
    s_mov_b32 s23, 0''')
    for x in range(8):
        a(f'v_readlane_b32 s24, v2, {x}\ns_add_u32 s23, s23, s24')
    a(f'''s_cmp_lt_u32 s23, 256
    s_cbranch_scc1 {Lov}
    s_mov_b32 s23, 0
    {Lov2}:
    v_readlane_b32 s24, v2, s23
    s_min_u32 s24, s24, 32
    s_sub_u32 s25, 32, s24
    s_cmp_lt_u32 s22, s25
    s_cbranch_scc1 {Lov3}
    s_sub_u32 s22, s22, s25
    s_add_u32 s23, s23, 1
    s_cmp_lt_u32 s23, 8
    s_cbranch_scc1 {Lov2}
    s_mov_b32 s{S_SLOT}, {role_table().index(0, 64)}
    s_branch {Lnat}
    {Lov3}:
    s_lshl_b32 s{S_SLOT}, s23, 5
    s_add_u32 s{S_SLOT}, s{S_SLOT}, s24
    s_add_u32 s{S_SLOT}, s{S_SLOT}, s22
    {Lnat}:
    s_mov_b64 exec, -1
    v_mov_b32 v1, 0
    v_mov_b32 v2, s{S_SLOT}
    v_mov_b32 v3, s78
    v_mov_b32 v4, s79
    ds_write_b96 v1, v[2:4]
    s_waitcnt lgkmcnt(0)
    {Lw}:
    s_barrier
    v_mov_b32 v1, 0
    ds_read_b96 v[2:4], v1
    s_getpc_b64 s[20:21]
    {name}_pc:
    s_add_u32 s20, s20, {name}_tab-{name}_pc
    s_addc_u32 s21, s21, 0
    s_waitcnt lgkmcnt(0)
    v_readfirstlane_b32 s{S_SLOT}, v2
    v_readfirstlane_b32 s78, v3
    v_readfirstlane_b32 s79, v4
    s_and_b32 s{S_SLOT}, s{S_SLOT}, 255
    s_lshl_b32 s22, s{S_SLOT}, 2
    s_load_dword s22, s[20:21], s22
    s_barrier
    s_waitcnt lgkmcnt(0)
    s_bfe_u32 s{S_L}, s22, 0x10004
    s_bfe_u32 s{S_P}, s22, 0x80008
    s_bfe_u32 s19, s22, 0x80010
    s_and_b32 s22, s22, 15
    {'s_memrealtime s[100:101]' if stamps else ''}''')
    labels = {r: a.label(f'Lrole{r}') for r in roles}
    Lch = a.label('Lch')
    for r in roles:
        a(f's_cmp_eq_u32 s22, {r}\ns_cbranch_scc1 {labels[r]}')
    a(f'{EXIT}:\ns_endpgm')
    def chain_mode(va, vd, need=30):
        L = a.label('Lcm'); Ld = a.label('Lcmd')
        a(f'''v_and_b32 v{va}, 7, v0
        v_lshlrev_b32 v{va}, 7, v{va}
        s_mov_b32 s21, {RANK}
        {L}:
        buffer_load_dword v{vd}, v{va}, {SRD}, s21 offen sc1
        s_sub_u32 s{S_TO}, s{S_TO}, 1
        s_cbranch_scc1 {EXIT}
        s_waitcnt vmcnt(0)
        s_lshr_b32 s23, s{S_SLOT}, 5
        s_nop 3
        v_readlane_b32 s22, v{vd}, s23
        s_cmp_ge_u32 s22, {need}
        s_cbranch_scc1 {Ld}
        s_mov_b32 s23, 0''')
        for x in range(8):
            a(f'v_readlane_b32 s22, v{vd}, {x}\ns_add_u32 s23, s23, s22')
        a(f'''s_cmp_lt_u32 s23, 256
        s_cbranch_scc1 {L}
        s_mov_b32 s{S_FAST}, 0
        {Ld}:''')
        if force_slow: a(f's_mov_b32 s{S_FAST}, 0')
    for r in roles:
        a(f'{labels[r]}:')
        if r in (R_K, R_V, R_B2, R_B1): roles[r](a, EXIT, (0 if (NOCH and r in (R_K, R_V)) or (NOW and r not in (R_K, R_V)) else stamps), chain_mode)
        else: roles[r](a, EXIT, 0 if NOW else stamps)
    a(f'.p2align 2\n.type {name}_tab,@object\n{name}_tab:')
    T = role_table()
    for i in range(0, 256, 8):
        a('.long ' + ', '.join(f'0x{x:x}' for x in T[i:i+8]))

import workers, prep
ALL = {R_K: chain.k_cu, R_V: chain.v_cu, R_P: workers.p_role, R_VX: workers.vx_role, R_B1: workers.b1_role, R_B2: workers.b2_role, R_PV: workers.pv_role, R_PF: chain.pf_cu}

HEADER = open('cdna_kernels/' + KN + '.s.ref').read().split('; Override launch geometry')[0]


DOC = """;
"""

def build(roles=None, stamps=0, force_slow=False, with_prep=True):
    a = Asm()
    a(HEADER)
    name = KN + '_kernel'
    a('; @launch grid=(256,1,1) block=(256,1,1) lds=163840')
    a(DOC)
    a('.amdgcn_target "amdgcn-amd-amdhsa--gfx950"\n.text')
    chain.HANDOVER = False
    chain.PREP = with_prep
    main_kernel(a, name, {r: ALL[r] for r in (ALL if roles is None else roles)}, stamps, force_slow, with_prep)
    a('.section .rodata,"a"\n.p2align 6')
    a(kd(name))
    return a.text()

def with_timeout_diag(txt):
    lines = txt.split('\n'); out = []; stubs = []; n = 0
    for i, ln in enumerate(lines):
        if ln.strip() == f's_cbranch_scc1 {KN}_kernel_exit' and lines[i-1].strip().startswith('s_sub_u32 s18'):
            n += 1
            out.append(f'    s_cbranch_scc1 Lto_{n}   ; site {n}')
            stubs.append(f'Lto_{n}:\n    s_mov_b32 s99, {n}\n    s_branch Lto_common')
        elif ln.startswith(f'.type {KN}_kernel_tab') :
            out.pop()
            out += stubs
            out.append(f"""Lto_common:
    s_mov_b64 exec, 1
    s_lshl_b32 s20, s13, 2
    s_add_u32 s20, s20, s12
    s_lshl_b32 s20, s20, 4
    s_add_u32 s20, s20, {STAMP+0x900000}
    v_mov_b32 v1, 0
    v_mov_b32 v4, s99
    v_mov_b32 v5, s17
    v_mov_b32 v6, s44
    v_mov_b32 v7, s47
    buffer_store_dwordx4 v[4:7], v1, s[8:11], s20 offen
    s_endpgm
.p2align 2""")
            out.append(ln)
        else: out.append(ln)
    return '\n'.join(out).replace('s_mov_b32 s18, 0x80000', 's_mov_b32 s18, 0x4000')

if __name__ == '__main__':
    E = 'exp/'
    open(E+'chain1.s', 'w').write(build([R_K, R_V], 1, with_prep=False))
    open(E+'chain2.s', 'w').write(build([R_K, R_V], 2, with_prep=False))
    open(E+'prep.s', 'w').write(build([]))
    for nm, r in (('p', R_P), ('vx', R_VX), ('b1', R_B1), ('b2', R_B2), ('pv', R_PV)):
        open(E+f'r_{nm}.s', 'w').write(build([r], 1, with_prep=False))
    open(E+'full.s', 'w').write(build())
    open(E+'full_to.s', 'w').write(with_timeout_diag(build()))
    open(E+'slow_to.s', 'w').write(with_timeout_diag(build(force_slow=True)))
    open(E+'full_cy.s', 'w').write(build(stamps=1))
    NOW = True
    open(E+'chn_cy.s', 'w').write(build(stamps=3))
    NOW = False
    chain.STAMP_OP = 's_memrealtime'
    open(E+'chain3.s', 'w').write(build([R_K, R_V], 2, with_prep=False))
    open(E+'full_st.s', 'w').write(build(stamps=1))
    NOCH = True
    open(E+'full_sw.s', 'w').write(build(stamps=1))
    NOCH = False
    open(E+'prep_st.s', 'w').write(build([], stamps=1))
```

```python
from asmlib import *
from layout import *
from workers import gather_pairs, mf
SRD = 's[8:11]'
SCALE = 0x3db8aa3b
WST = 'sc1'
NT = ''
FMID = 0
import chain
TOUCH = 3

def prep_body(a, END, hook, stamps=0):
    n_st = [0]
    def mark():
        if stamps:
            a(f's_memrealtime s[{60+2*n_st[0]}:{61+2*n_st[0]}]'); n_st[0] += 1
    def dump():
        if stamps == 9: a('s_memrealtime s[74:75]\ns_waitcnt vmcnt(0)\ns_memrealtime s[76:77]\ns_waitcnt lgkmcnt(0)')
        if not stamps or stamps == 9: return
        a(f'''s_waitcnt vmcnt(0)
        s_memrealtime s[76:77]
        s_waitcnt lgkmcnt(0)
        s_lshl_b32 s20, s2, 2
        s_add_u32 s20, s20, s12
        s_lshl_b32 s20, s20, 6
        s_add_u32 s20, s20, {STAMP+0x800000}
        v_mov_b32 v2, 0''')
        for k in range(9):
            a(f'v_mov_b32 v3, s{60+2*k}\nbuffer_store_dword v3, v2, s[8:11], s20 offen offset:{4*k}')
    EXIT = END
    mark()
    a(f'''v_and_b32 v7, 63, v0
    v_lshlrev_b32 v1, 4, v7
    v_lshlrev_b32 v2, 4, v0
    v_mov_b32 v16, -1
    v_mov_b32 v17, -1
    v_mov_b32 v18, -1
    v_mov_b32 v19, -1
    v_mov_b32 v20, 0
    v_mov_b32 v21, 0
    v_mov_b32 v22, 0
    v_mov_b32 v23, 0''')
    if TOUCH & 2:
        a(f'''s_cmp_lt_u32 s12, 2
        s_cselect_b32 s24, s44, s48
        s_cselect_b32 s25, s45, s49
        s_cselect_b32 s28, s46, s50
        s_cselect_b32 s29, s47, s51
        s_bitcmp1_b32 s12, 0
        s_cselect_b32 s24, s28, s24
        s_cselect_b32 s25, s29, s25
        s_mov_b32 s26, {448*8192}
        s_mov_b32 s27, 0x20000
        s_mul_i32 s20, s2, 14336
        v_lshlrev_b32 v8, 7, v7
        v_min_u32 v9, 47, v7
        v_lshlrev_b32 v9, 7, v9
        s_add_u32 s21, s20, 8192
        buffer_load_dword v251, v8, s[24:27], s20 offen
        buffer_load_dword v251, v9, s[24:27], s21 offen''')
        if TOUCH & 4: a('s_waitcnt vmcnt(0)\ns_barrier')
    LN = a.label('Lln')
    def touch_b():
        if not TOUCH & 8: return
        a(f'''s_cmp_eq_u32 s12, 1
        s_cselect_b64 s[20:21], s[54:55], s[52:53]
        s_cmp_ge_u32 s12, 2
        s_cselect_b64 s[20:21], s[56:57], s[20:21]
        s_mul_i32 s22, s2, 6272
        v_min_u32 v45, 48, v7
        v_lshlrev_b32 v45, 7, v45
        v_add_u32 v45, s22, v45
        global_load_dword v46, v45, s[20:21]''')
    def fills(a=a):
        nb = (SENT1-SENT0)//8192
        skip = [0, 4, (MEMG-SENT0)//8192, (MEMG-SENT0)//8192+64]
        OOBS = 0x70000000
        for rnd in range(2):
            a(f's_lshl_b32 s20, s2, 13\ns_add_u32 s20, s20, {SENT0 + 256*8192*rnd}')
            if rnd == 0:
                for b in skip: a(f's_cmp_eq_u32 s2, {b}\ns_cselect_b32 s20, {OOBS}, s20')
            else:
                a(f's_cmp_ge_u32 s2, {nb-256}\ns_cselect_b32 s20, {OOBS}, s20')
            a(f'''s_add_u32 s21, s20, 4096
            buffer_store_dwordx4 v[16:19], v2, {SRD}, s20 offen {WST}
            buffer_store_dwordx4 v[16:19], v2, {SRD}, s21 offen {WST}''')
        a(f's_mul_i32 s20, s2, 20480\ns_add_u32 s20, s20, {PF}')
        for k in range(5): a(f'buffer_store_dwordx4 v[16:19], v2, {SRD}, s20 offen {WST}\ns_add_u32 s20, s20, 4096')
        nz = (ZERO1-ZERO0)//4096
        assert (ZERO1-ZERO0) % 4096 == 0 and 256 <= nz <= 512
        for rnd in range(2):
            a(f's_lshl_b32 s20, s2, 12\ns_add_u32 s20, s20, {ZERO0 + 256*4096*rnd}')
            if rnd: a(f's_cmp_ge_u32 s2, {nz-256}\ns_cselect_b32 s20, {OOBS}, s20')
            a(f'buffer_store_dwordx4 v[20:23], v2, {SRD}, s20 offen {WST}')
    if chain.OPT['jobs']: a(f's_and_b32 s22, s2, 7\ns_cmp_eq_u32 s22, 0\ns_cbranch_scc1 {LN}')
    else: a(f's_cmp_ge_u32 s2, 224\ns_cbranch_scc1 {LN}')
    LV = a.label('Lfv'); LJ = a.label('Lfj')
    if chain.OPT['jobs']: a('''s_sub_u32 s22, s22, 1
    s_lshl_b32 s22, s22, 5
    s_lshr_b32 s20, s2, 3
    s_add_u32 s20, s20, s22
    s_mul_i32 s13, s20, 9363
    s_lshr_b32 s13, s13, 16
    s_mul_i32 s22, s13, 7
    s_sub_u32 s14, s20, s22
    s_and_b32 s15, s13, 15''')
    else: a('''s_lshr_b32 s20, s2, 3
    s_mul_i32 s21, s20, 37
    s_lshr_b32 s21, s21, 8
    s_mul_i32 s22, s21, 7
    s_sub_u32 s14, s20, s22
    s_and_b32 s22, s2, 7
    s_lshl_b32 s21, s21, 3
    s_add_u32 s13, s21, s22
    s_and_b32 s15, s13, 15''')
    a(f'''    s_lshl_b32 s16, s14, 2
    s_add_u32 s16, s16, s12
    v_and_b32 v3, 15, v7
    v_lshrrev_b32 v4, 4, v7
    v_lshrrev_b32 v5, 2, v3
    v_and_b32 v6, 3, v3
    v_lshl_add_u32 v5, v5, 3, v6
    v_lshlrev_b32 v5, 13, v5
    v_lshl_add_u32 v5, v4, 4, v5
    s_lshl_b32 s17, s15, 9
    s_lshl_b32 s37, s12, 13
    s_mov_b32 s26, {448*8192}
    s_mov_b32 s27, 0x20000
    s_mov_b32 s30, {448*8192}
    s_mov_b32 s31, 0x20000
    s_cmp_ge_u32 s13, 16
    s_cbranch_scc1 {LV}
    s_mov_b32 s24, s44
    s_mov_b32 s25, s45
    s_mov_b32 s28, s46
    s_mov_b32 s29, s47
    v_lshrrev_b32 v24, 2, v7
    v_lshlrev_b32 v24, 13, v24
    v_and_b32 v25, 3, v7
    v_lshl_add_u32 v24, v25, 7, v24
    s_lshl_b32 s21, s16, 17
    s_add_u32 s21, s21, s17
    {'buffer_load_dword v251, v24, s[24:27], s21 offen' if TOUCH & 1 else ''}
    s_mov_b32 s32, {SCALE}
    s_mov_b32 s33, {WA}
    s_lshr_b32 s20, s16, 1
    s_lshl_b32 s20, s20, 5
    s_and_b32 s21, s16, 1
    s_lshl_b32 s21, s21, 2
    s_add_u32 s20, s20, s21
    s_lshl_b32 s20, s20, 13
    s_add_u32 s20, s20, s17''')
    for kd in range(8):
        a(f's_add_u32 m0, s37, {kd*1024 - kd*64}\ns_nop 0\nbuffer_load_dwordx4 v5, s[28:31], s20 offen offset:{kd*64} {NT} lds')
    a(f"""s_branch {LJ}
    {LV}:
    s_mov_b32 s24, s48
    s_mov_b32 s25, s49
    s_mov_b32 s28, s50
    s_mov_b32 s29, s51
    v_lshrrev_b32 v24, 2, v7
    v_lshlrev_b32 v24, 13, v24
    v_and_b32 v25, 3, v7
    v_lshl_add_u32 v24, v25, 7, v24
    s_lshl_b32 s21, s16, 17
    s_add_u32 s21, s21, s17
    {'buffer_load_dword v251, v24, s[24:27], s21 offen' if TOUCH & 1 else ''}
    s_mov_b32 s32, 1.0
    s_mov_b32 s33, {WV}
    v_lshrrev_b32 v8, 1, v7
    v_mul_u32_u24 v8, 896, v8
    v_and_b32 v9, 1, v7
    v_lshl_add_u32 v8, v9, 4, v8
    s_mul_i32 s21, s15, {256*896}
    s_lshl_b32 s20, s16, 5
    s_add_u32 s21, s21, s20""")
    for kd in range(8):
        a(f's_add_u32 m0, s37, {kd*1024}\ns_add_u32 s20, s21, {kd*32*896}\nbuffer_load_dwordx4 v8, s[28:31], s20 offen {NT} lds')
    a(f'{LJ}:')
    mark()
    AF = lambda n, ab, kd: 64*(n & 1) + 32*ab + 4*kd
    a(f"""v_lshrrev_b32 v24, 3, v7
    v_and_b32 v25, 7, v7
    v_bfe_u32 v26, v7, 4, 1
    v_xor_b32 v25, v25, v26
    v_lshlrev_b32 v24, 13, v24""")
    for rg in range(4):
        a(f"""v_xor_b32 v26, {2*rg}, v25
        v_lshl_add_u32 v{10+rg}, v26, 4, v24
        v_add_u32 v{10+rg}, {rg*8*8192}, v{10+rg}""")
    a(f"""s_lshl_b32 s38, s12, 15
    s_add_u32 s38, s38, 32768
    v_lshrrev_b32 v24, 2, v3
    v_lshlrev_b32 v14, 10, v24
    v_lshl_add_u32 v14, v6, 7, v14
    v_lshlrev_b32 v24, 1, v24
    v_lshrrev_b32 v25, 1, v6
    v_or_b32 v24, v24, v25
    v_xor_b32 v24, v24, v4
    v_lshl_add_u32 v14, v24, 4, v14
    v_add_u32 v14, s38, v14
    v_xor_b32 v15, 64, v14""")
    def adma(n):
        a(f"""s_add_u32 s34, s12, {4*n}
        s_lshl_b32 s34, s34, 18
        s_add_u32 s34, s34, s17""")
        for cg in range(4):
            for rg in range(4):
                a(f's_add_u32 m0, s38, {(n&1)*16384 + (cg*4+rg)*1024 - cg*128}\ns_nop 0\nbuffer_load_dwordx4 v{10+rg}, s[24:27], s34 offen offset:{cg*128} {NT} lds')
    def aread(n):
        for ab in range(2):
            for kd in range(8):
                a(f'ds_read_b128 {ar(AF(n,ab,kd),4)}, v{14+(kd&1)} offset:{(n&1)*16384 + (kd>>1)*4096 + ab*512}')
    adma(0); adma(1)
    if not FMID: fills()
    nf = 0 if FMID else 11
    a(f'v_mov_b32 v44, 0\ns_waitcnt vmcnt({32+nf})')
    a('s_barrier')
    mark()
    LB = a.label('Lfb'); LC = a.label('Lfc')
    a(f's_cmp_ge_u32 s13, 16\ns_cbranch_scc1 {LB}')
    for i in range(32): a(f'ds_read_b128 {vr(128+4*i,4)}, v1 offset:{i*1024}')
    a(f"""s_branch {LC}
    {LB}:
    v_lshlrev_b32 v9, 8, v4
    v_lshl_add_u32 v9, v3, 3, v9""")
    for i in range(32):
        for jh in range(2): a(f'ds_read_b64_tr_b16 {vr(128+4*i+2*jh,2)}, v9 offset:{i*1024+jh*128}')
        if i % 4 == 3: a('s_waitcnt lgkmcnt(4)')
    a(f"""{LC}:
    s_mul_i32 s36, s15, 28
    s_lshl_b32 s20, s14, 2
    s_add_u32 s36, s36, s20
    s_mul_i32 s36, s36, 14336
    s_add_u32 s36, s36, s33
    s_lshl_b32 s20, s12, 10
    s_add_u32 s36, s36, s20""")
    AC = 64
    def adma_list(n):
        out = [f's_add_u32 s34, s12, {4*n}', 's_lshl_b32 s34, s34, 18', 's_add_u32 s34, s34, s17']
        for cg in range(4):
            for rg in range(4):
                out += [f's_add_u32 m0, s38, {(n&1)*16384 + (cg*4+rg)*1024 - cg*128}', f'buffer_load_dwordx4 v{10+rg}, s[24:27], s34 offen offset:{cg*128} {NT} lds', '']
        return out
    def epi(n):
        A0 = AC + 32*(n & 1); out = []
        for tt in range(4):
            O = 24+4*tt
            for ab in range(2):
                A = A0+16*ab+4*tt
                out += [f'v_mul_f32 v{A+r}, s32, v{A+r}' for r in range(4)]
                out += [f'v_cvt_pk_bf16_f32 v{O+2*ab}, v{A}, v{A+1}', f'v_cvt_pk_bf16_f32 v{O+2*ab+1}, v{A+2}, v{A+3}']
            out += [f's_add_u32 s20, s36, {tt*14336 + n*4096}\nbuffer_store_dwordx4 {vr(O,4)}, v1, {SRD}, s20 offen {WST}']
        return out
    a(f's_waitcnt vmcnt({16+nf})')
    touch_b()
    aread(0)
    for n in range(4):
        if n == 3: a(f's_cmp_ge_u32 s12, 2\ns_cbranch_scc1 {EXIT}_e2')
        a('s_waitcnt lgkmcnt(0)')
        if n == 2: hook(2)
        mark()
        main = [mf(vr(AC+32*(n&1)+16*ab+4*tt,4), ar(AF(n,ab,kd),4), vr(128+4*(tt*8+kd),4), 0 if kd == 0 else None)
                for kd in range(8) for ab in range(2) for tt in range(4)]
        F = {}
        if n < 2:
            for k, x in enumerate(adma_list(n+2)): F.setdefault(k, []).append(x)
        if n >= 1:
            for k, x in enumerate(epi(n-1)): F.setdefault(8+k, []).append(x)
        if n == 0: F.setdefault(60, []).append(hook(1))
        if n == 2 and FMID:
            t = Asm(); fills(t); grp = []
            for x in t.lines:
                x = x.strip().replace('s20', 's52').replace('s21', 's53')
                if x.startswith('s_cselect'): grp[-1] += '\n' + x
                else: grp.append(x)
            k = 0
            for x in grp:
                F.setdefault(k, []).append(x); k += 3 if x.startswith('buffer') else 1
            assert k < 70, k
        for x in interleave(main, F): a(x)
        if n < 3:
            a(f's_waitcnt vmcnt({(17+nf+(1 if TOUCH & 8 else 0), 20, 15-nf)[n]})')
            aread(n+1)
            if n == 2: hook(3)
    a('s_nop 7')
    for x in epi(3): a(x)
    a(f's_branch {EXIT}_f\n{EXIT}_e2:\ns_nop 7')
    for x in epi(2): a(x)
    a(f'{EXIT}_f:')
    a(f'{EXIT}_d:')
    dump()
    a(f's_branch {END}')
    n_st[0] = 1
    X = 24
    a(f'''{LN}:
    {'s_lshr_b32 s13, s2, 3' if chain.OPT['jobs'] else 's_sub_u32 s13, s2, 224'}
    s_lshl_b32 s14, s13, 2
    s_add_u32 s14, s14, s12
    s_mov_b32 s24, s40
    s_mov_b32 s25, s41
    s_mov_b32 s26, {2048*896}
    s_mov_b32 s27, 0x20000
    v_and_b32 v3, 15, v7
    v_lshrrev_b32 v4, 4, v7
    v_mul_u32_u24 v5, 896, v3
    v_lshl_add_u32 v5, v4, 4, v5
    s_mul_i32 s16, s14, 14336''')
    for ks in range(14): a(f'buffer_load_dwordx4 {vr(X+4*ks,4)}, v5, s[24:27], s16 offen offset:{ks*64} {NT}')
    fills()
    LM = a.label('Lm0')
    a(f'''s_cmp_ge_u32 s13, 2
    s_cbranch_scc1 {LM}
    s_mov_b32 s28, s42
    s_mov_b32 s29, s43
    s_mov_b32 s30, 7168
    s_mov_b32 s31, 0x20000
    s_lshl_b32 s21, s13, 15
    s_add_u32 s21, s21, {MEMF}
    s_lshl_b32 s22, s13, 19
    s_add_u32 s22, s22, {MEMG}''')
    for rnd in range(2):
        a(f'''v_add_u32 v8, {256*rnd}, v0
        v_min_u32 v8, 447, v8
        v_and_b32 v9, 7, v8
        v_mul_u32_u24 v10, 896, v9
        v_lshrrev_b32 v11, 3, v8
        v_lshl_add_u32 v10, v11, 4, v10
        buffer_load_dwordx4 v[12:15], v10, s[28:31], 0 offen
        v_lshlrev_b32 v10, 4, v8
        v_lshrrev_b32 v11, 4, v8
        v_lshlrev_b32 v11, 8, v11
        v_lshl_add_u32 v11, v9, 4, v11
        v_bfe_u32 v9, v8, 3, 1
        v_lshl_add_u32 v11, v9, 3, v11
        s_waitcnt vmcnt(0)''')
        for r in range(4): a(f'v_min_u32 v{12+r}, 0xfffffffe, v{12+r}')
        a(f'''buffer_store_dwordx4 v[12:15], v10, {SRD}, s22 offen sc1
        buffer_store_dword v12, v11, {SRD}, s21 offen sc1
        buffer_store_dword v13, v11, {SRD}, s21 offen offset:128 sc1
        buffer_store_dword v14, v11, {SRD}, s21 offen offset:4 sc1
        buffer_store_dword v15, v11, {SRD}, s21 offen offset:132 sc1
        s_nop 1''')
    a(f'{LM}:\ns_waitcnt vmcnt(0)')
    a('v_mov_b32 v44, 0') if False else None
    a('v_mov_b32 v210, 0\n' + hook(1).replace('v[42:43], v44', 'v[208:209], v210'))
    mark()
    U = 96
    for i in range(56):
        a(f'v_lshlrev_b32 v{U+2*i}, 16, v{X+i}\nv_and_b32 v{U+2*i+1}, 0xffff0000, v{X+i}')
    a('v_mov_b32 v8, 0\nv_mov_b32 v9, 0\nv_mov_b32 v10, 0\nv_mov_b32 v11, 0')
    for i in range(56):
        a(f'v_pk_add_f32 v[8:9], v[8:9], {vr(U+2*i,2)}\nv_pk_fma_f32 v[10:11], {vr(U+2*i,2)}, {vr(U+2*i,2)}, v[10:11]')
    a('v_add_f32 v8, v8, v9\nv_add_f32 v9, v10, v11')
    for sw in ('16', '32'):
        a(f'''v_mov_b32 v10, v8
        v_mov_b32 v11, v9
        s_nop 1
        v_permlane{sw}_swap_b32 v8, v10
        v_permlane{sw}_swap_b32 v9, v11
        v_add_f32 v8, v8, v10
        v_add_f32 v9, v9, v11''')
    a('s_waitcnt vmcnt(0)')
    hook(2, 212, 208)
    a(f'''s_mov_b32 s22, 0x3b124925
    s_mov_b32 s23, 0x3727c5ac
    v_mul_f32 v8, s22, v8
    v_mul_f32 v9, s22, v9
    v_fma_f32 v9, -v8, v8, v9
    v_max_f32 v9, 0, v9
    v_add_f32 v9, s23, v9
    v_rsq_f32 v10, v9
    s_add_u32 s20, s16, {XN}
    v_mul_f32 v8, v8, v10
    v_mov_b32 v11, v10
    v_sub_f32 v8, 0, v8
    v_mov_b32 v9, v8''')
    for ks in range(14):
        for d in range(4):
            i = 4*ks+d
            a(f'v_pk_fma_f32 {vr(U+2*i,2)}, {vr(U+2*i,2)}, v[10:11], v[8:9]\nv_cvt_pk_bf16_f32 v{X+i}, v{U+2*i}, v{U+2*i+1}\nv_min_u32 v{X+i}, 0xfffffffe, v{X+i}')
        a(f'buffer_store_dwordx4 {vr(X+4*ks,4)}, v1, {SRD}, s20 offen offset:{(ks&3)*1024} {WST}')
        if (ks & 3) == 3: a('s_add_u32 s20, s20, 4096')
    a('s_waitcnt vmcnt(14)\nv_mov_b32 v40, v212')
    dump()
    a(f'{END}:')
```

```python
from asmlib import *
from layout import *
from chain import SRD, S_W, S_SLOT, S_L, S_P, S_TO, S_U, wait_flags, need_head, all_done, hold_back, Stamps, stamp_dump, DPP
import chain

S_K, S_S, S_LS = 42, 43, 44
OOB = 0x7f000000
D_V, D_PV, D_B2, D_B1, D_P = 17, 15, 15, 15, 15
N_PV, N_B2, N_B1, N_P = 3, 4, 2, 4
DEC = 147392
ONES = ST + 7168
ZEROS = CNT + 1152
S_NL, S_NS, S_NLS, S_HAVE, S_PEND, S_BUF = 45, 46, 47, 52, 53, 54
SRD2 = 's[56:59]'
S_FAST = chain.S_FAST

def w4(i, nA=64, vb=120):
    return ar(4*i, 4) if i < nA else vr(vb + 4*(i-nA), 4)

def load_frags(a, n, sreg, dst, voff=1, start=0):
    for i in range(n):
        a(f'buffer_load_dwordx4 {dst(i)}, v{voff}, {SRD}, s{sreg} offen offset:{(i & 3)*1024} sc1')
        if (i & 3) == 3: a(f's_add_u32 s{sreg}, s{sreg}, 4096')
        if start+i >= 47 and (start+i) % 8 == 7: a('s_waitcnt vmcnt(40)')

S_SCH = 70
S0_P, S0_PV, S0_B1, S0_B2, S1_V = 38, 37, 36, 56, 21
MERGE = {'PV': 10}
def sched_table(role):
    if role == 'VX': return [(S1_V//3, 0, 3, 0, 1, 2, 0), (S1_V//3, 0, 3, 1, 1, 2, 1), (S1_V//3, 0, 3, 2, 0, 1, S1_V)]
    if role == 'B2': return [(32, 0, 2, 0, 1, 4, S0_B2), (32, 0, 2, 1, 1, 4, S0_B2+1), (S0_B2//2, 1, 2, 0, 1, 4, S0_B2+2), (S0_B2//2, 1, 2, 1, 1, 4, S0_B2+3)]
    if role == 'P': return [(32, 0, 2, 0, 1, 4, 64), (32, 0, 2, 1, 1, 4, 64), (32, 1, 2, 0, 1, 4, 64), (32, 1, 2, 1, 1, 4, 64)]
    if role == 'PV' and N_PV == 4: return [(32, 0, 2, 0, 1, 4, 64), (32, 0, 2, 1, 1, 4, 64), (32, 1, 2, 0, 1, 4, 64), (32, 1, 2, 1, 1, 4, 64)]
    if role == 'B1': return [(64, 0, 1, 0, 1, 1, 64), (64, 1, 1, 0, 1, 1, 64)]
    S0, N = {'P': (S0_P, 4), 'PV': (S0_PV, 5), 'B1': (S0_B1, 3)}[role]
    return [(32, 0, 2, 0, 1, N, S0+1), (32, 0, 2, 1, 1, N, S0+2), (S0, 1, 1, 0, 1, N, S0)] + [(0, 1, 1, 0, 1, N, S0+u) for u in range(3, N)]
def task_list(role, u):
    if role in MERGE:
        D = MERGE[role]; out = []
        for k in range(u, 128, 3):
            if k < D: out.append(k)
            elif k >= 128-D: out.append(k)
            else:
                kk = k-D; l = kk & 1; out.append(64*l + (kk >> 1) + (1-l)*D)
        return out
    c1, l1, t1, b1, l2, t2, b2 = sched_table(role)[u]
    out = []; k = 0
    while True:
        l, s = (l1, b1+t1*k) if k < c1 else (l2, b2+t2*(k-c1))
        if s >= 64: return out
        out.append(64*l+s); k += 1
CUR_ROLE = [None]
def sched_setup(a, role):
    CUR_ROLE[0] = role
    if role in MERGE: return
    T = sched_table(role)
    J = a.label('Lsj')
    for u, row in enumerate(T):
        N = a.label('Lsn')
        if u < len(T)-1: a(f's_cmp_eq_u32 s{S_U}, {u}\ns_cbranch_scc0 {N}')
        for i, v in enumerate(row): a(f's_mov_b32 s{S_SCH+i}, {v}')
        if u < len(T)-1: a(f's_branch {J}\n{N}:')
    a(f'{J}:')

def task_calc(S_L, S_S, S_LS):
    return [f's_sub_u32 s20, s{S_K}, s{S_SCH}\ns_cselect_b32 s20, s{S_K}, s20\ns_cselect_b32 s{S_L}, s{S_SCH+1}, s{S_SCH+4}\n'
            f's_cselect_b32 s21, s{S_SCH+2}, s{S_SCH+5}\ns_cselect_b32 s{S_S}, s{S_SCH+3}, s{S_SCH+6}',
            's_mul_i32 s20, s20, s21', f's_add_u32 s{S_S}, s{S_S}, s20', f's_lshl_b32 s{S_LS}, s{S_L}, 6', f's_add_u32 s{S_LS}, s{S_LS}, s{S_S}']

def merged_task(a, D, DONE, S_L=S_L, S_S=S_S, S_LS=S_LS):
    if CUR_ROLE[0] in MERGE:
        D = MERGE[CUR_ROLE[0]]
        L2 = a.label('Lm2'); LD = a.label('Lmd')
        a(f'''s_mul_i32 s21, s{S_K}, 3
        s_add_u32 s21, s21, s{S_U}
        s_mov_b32 s{S_L}, 0
        s_mov_b32 s{S_S}, s21
        s_cmp_lt_u32 s21, {D}
        s_cbranch_scc1 {LD}
        s_cmp_ge_u32 s21, {128-D}
        s_cbranch_scc1 {L2}
        s_sub_u32 s20, s21, {D}
        s_and_b32 s{S_L}, s20, 1
        s_lshr_b32 s{S_S}, s20, 1
        s_xor_b32 s20, s{S_L}, 1
        s_mul_i32 s20, s20, {D}
        s_add_u32 s{S_S}, s{S_S}, s20
        s_branch {LD}
        {L2}:
        s_mov_b32 s{S_L}, 1
        s_sub_u32 s{S_S}, s21, 64
        {LD}:
        s_lshl_b32 s{S_LS}, s{S_L}, 6
        s_add_u32 s{S_LS}, s{S_LS}, s{S_S}
        s_cmp_ge_u32 s{S_S}, 64
        s_cbranch_scc1 {DONE}''')
        return
    a(f'''s_sub_u32 s20, s{S_K}, s{S_SCH}
    s_cselect_b32 s20, s{S_K}, s20
    s_cselect_b32 s{S_L}, s{S_SCH+1}, s{S_SCH+4}
    s_cselect_b32 s21, s{S_SCH+2}, s{S_SCH+5}
    s_cselect_b32 s{S_S}, s{S_SCH+3}, s{S_SCH+6}
    s_mul_i32 s20, s20, s21
    s_add_u32 s{S_S}, s{S_S}, s20
    s_lshl_b32 s{S_LS}, s{S_L}, 6
    s_add_u32 s{S_LS}, s{S_LS}, s{S_S}
    s_cmp_ge_u32 s{S_S}, 64
    s_cbranch_scc1 {DONE}''')

def flag_off(a, dst, kind, ls=S_LS):
    a(f's_mul_i32 s{dst}, s{ls}, {flag_seg(kind)}\ns_add_u32 s{dst}, s{dst}, {flag_base(kind)}')

def pend_flag(a, kind, sidx, ls=S_LS, add=0):
    a(f"""s_mul_i32 s{S_PEND}, s{ls}, {flag_seg(kind)}
    s_lshl_b32 s20, s{sidx}, 7
    s_add_u32 s{S_PEND}, s{S_PEND}, s20
    s_add_u32 s{S_PEND}, s{S_PEND}, {flag_base(kind) + add*flag_seg(kind)}""")

def flush(a, cnt=0):
    a(f"""s_waitcnt vmcnt({cnt})
    s_barrier
    buffer_store_dword v15, v14, {SRD}, s{S_PEND} offen sc1
    s_mov_b32 s{S_PEND}, {DUMMY}""")

def pipe_setup(a, vdw, vdr):
    a(f"""s_lshl_b32 s20, s{S_W}, 2
    s_add_u32 s20, s20, {DEC}
    v_mov_b32 v{vdw}, s20
    v_mov_b32 v{vdr}, {DEC}
    s_mov_b32 s56, s4
    s_mov_b32 s57, s5
    s_mov_b32 s58, 0
    s_mov_b32 s59, 0x20000
    s_mov_b32 s{S_HAVE}, 0
    s_mov_b32 s{S_PEND}, {DUMMY}
    s_mov_b32 s{S_BUF}, 0""")

def mid_sync(a, vfl, vdw, vdr, vt):
    a(f"""s_waitcnt vmcnt(0)
    v_cmp_eq_u32 vcc, 0, v{vfl}
    s_nop 1
    v_mov_b32 v{vt}, vcc_lo
    v_or_b32 v{vt}, vcc_hi, v{vt}
    ds_write_b32 v{vdw}, v{vt}
    s_waitcnt lgkmcnt(0)
    s_barrier
    ds_read_b32 v{vt}, v{vdr}
    buffer_store_dword v15, v14, {SRD}, s{S_PEND} offen sc1
    s_mov_b32 s{S_PEND}, {DUMMY}
    s_waitcnt lgkmcnt(0)
    v_readfirstlane_b32 s20, v{vt}
    s_cmp_eq_u32 s20, 0
    s_cselect_b32 s{S_HAVE}, 1, 0
    s_cselect_b32 s58, 0x10000000, 0""")

def dma_list(n, s_src, s_lds, srd=SRD, flags='sc1'):
    out = []
    for i in range(n):
        pre = []
        if (i & 3) == 0:
            if i: pre.append(f's_add_u32 s{s_src}, s{s_src}, 4096')
            pre.append(f's_mov_b32 m0, s{s_lds}')
            pre.append(f's_add_u32 s{s_lds}, s{s_lds}, 4096')
        out.append((pre, f'buffer_load_dwordx4 v1, {srd}, s{s_src} offen offset:{(i&3)*1024} {flags} lds'))
    return out

def set_flag(a, kind, sidx, vz=14, v1_=15, st=20):
    a(f'''s_mul_i32 s{st}, s{S_LS}, {flag_seg(kind)}
    s_lshl_b32 s{st+1}, s{sidx}, 7
    s_add_u32 s{st}, s{st}, s{st+1}
    s_add_u32 s{st}, s{st}, {flag_base(kind)}
    s_waitcnt vmcnt(0)
    s_barrier
    buffer_store_dword v{v1_}, v{vz}, {SRD}, s{st} offen sc1''')

def common_setup(a):
    a(f'''v_and_b32 v7, 63, v0
    v_lshlrev_b32 v1, 4, v7
    v_cmp_eq_u32 vcc, 0, v0
    v_mov_b32 v14, {OOB}
    v_mov_b32 v15, 1
    v_cndmask_b32 v14, v14, 0, vcc''')

def dma_frags(a, n, s_src, lds_base_s, flags='sc1'):
    for i in range(n):
        if (i & 3) == 0:
            a(f's_mov_b32 m0, s{lds_base_s}\ns_add_u32 s{lds_base_s}, s{lds_base_s}, 4096')
        a(f'buffer_load_dwordx4 v1, {SRD}, s{s_src} offen offset:{(i&3)*1024} {flags} lds')
        if (i & 3) == 3: a(f's_add_u32 s{s_src}, s{s_src}, 4096')

def gather_pairs(a, batches, T0=64, dst='a'):
    P = [[e for e in b if not isinstance(e, str)] for b in batches]
    def issue(b):
        k = 0
        for e in batches[b]:
            if isinstance(e, str): a(e); continue
            a(e[0].format(T0+32*(b % 2)+2*k)); a(e[1].format(T0+32*(b % 2)+2*k+1)); k += 1
    def fin(b):
        for k, (lo, hi, d) in enumerate(P[b]):
            t = T0+32*(b % 2)+2*k
            if dst == 'a': a(f'v_lshl_or_b32 v{t}, v{t+1}, 16, v{t}\nv_accvgpr_write_b32 a{d}, v{t}')
            else: a(f'v_lshl_or_b32 v{d}, v{t+1}, 16, v{t}')
    n = len(batches)
    for b in range(n+1):
        if b < n: issue(b)
        if b >= 1:
            a(f's_waitcnt vmcnt({2*len(P[b]) if b < n else 0})')
            fin(b-1)

def mf(D, A, B, C=None):
    return f'v_mfma_f32_16x16x32_bf16 {D}, {A}, {B}, {D if C is None else C}'


def hint(a, kind, sidx, add=0, sc='sc1'):
    a(f"""s_mul_i32 s21, s{S_LS}, {flag_seg(kind)}
    s_lshl_b32 s20, s{sidx}, 7
    s_add_u32 s21, s21, s20
    s_add_u32 s21, s21, {flag_base(kind) + add*flag_seg(kind)}
    s_barrier
    buffer_store_dword v15, v14, {SRD}, s21 offen {sc}""")

def guard(a, r, n):
    for i in range(n): a(f'v_min_u32 v{r+i}, 0xfffffffe, v{r+i}')

def vote(a, vfl, vdw, vdr, vt, cnt):
    a(f"""s_waitcnt vmcnt({cnt})
    v_cmp_eq_u32 vcc, 0, v{vfl}
    s_nop 1
    v_mov_b32 v{vt}, vcc_lo
    v_or_b32 v{vt}, vcc_hi, v{vt}
    ds_write_b32 v{vdw}, v{vt}
    s_waitcnt lgkmcnt(0)
    s_barrier
    ds_read_b32 v{vt}, v{vdr}
    s_waitcnt lgkmcnt(0)
    v_readfirstlane_b32 s20, v{vt}
    s_cmp_eq_u32 s20, 0
    s_cselect_b32 s{S_HAVE}, 1, 0
    s_cselect_b32 s58, 0x10000000, 0""")

def chk4(m, r, first=False):
    if first: return [f'v_max3_u32 v{m}, v{r}, v{r+1}, v{r+2}', f'v_max_u32 v{m}, v{m}, v{r+3}']
    return [f'v_max3_u32 v{m}, v{m}, v{r}, v{r+1}', f'v_max3_u32 v{m}, v{m}, v{r+2}, v{r+3}']

def redo_if_bad(a, m, REDO, EXIT):
    a(f"""v_cmp_eq_u32 vcc, -1, v{m}
    s_cbranch_vccnz {REDO}""")

def vote_pre(a, vfl, vdw, vt):
    a(f"""v_cmp_eq_u32 vcc, 0, v{vfl}
    s_nop 1
    v_mov_b32 v{vt}, vcc_lo
    v_or_b32 v{vt}, vcc_hi, v{vt}
    ds_write_b32 v{vdw}, v{vt}
    s_waitcnt lgkmcnt(0)""")

def vote_post(a, vdr, vt, between=()):
    a(f'ds_read_b32 v{vt}, v{vdr}')
    for x in between: a(x)
    a(f"""s_waitcnt lgkmcnt({len([x for x in between if x.startswith('ds_')])})
    v_readfirstlane_b32 s20, v{vt}
    s_cmp_eq_u32 s20, 0
    s_cselect_b32 s{S_HAVE}, 1, 0
    s_cselect_b32 s58, 0x10000000, 0""")

def chk2(m, r0, r1, first=False):
    return f'v_max_u32 v{m}, v{r0}, v{r1}' if first else f'v_max3_u32 v{m}, v{m}, v{r0}, v{r1}'

def sched(a, main, lanes):
    F = {}
    for start, step, ins in lanes:
        for k, x in enumerate(ins): F.setdefault(start+k*step, []).append(x)
    for x in interleave(main, F): a(x)

SPEC = 0
def wait_spec(a, voff, soff, vd, EXIT, setup, loads, n):
    L = a.label('Lws')
    a(f'{L}:')
    setup()
    a(f'buffer_load_dword v{vd}, v{voff}, {SRD}, s{soff} offen sc1')
    loads()
    a(f"""s_sub_u32 s{S_TO}, s{S_TO}, 1
    s_cbranch_scc1 {EXIT}
    s_waitcnt vmcnt({n})
    v_cmp_eq_u32 vcc, 0, v{vd}
    s_cbranch_vccnz {L}""")

HOLD = 0
OUTSC = 0
HLOC = 1
WBL = 0
PRET = 0
LAYOUT = 0
PSLEEP = 4
BSLEEP = 0
VXFIRST = 0
def vx_role(a, EXIT, stamps=0):
    a('; ================= VX role =================')
    acc, xr, o, m = 16, 72, 96, 106
    common_setup(a)
    sched_setup(a, 'VX')
    need_head(a, 1, EXIT)
    a(f'''s_mul_i32 s20, s{S_P}, 28
    s_mul_i32 s21, s{S_W}, 7
    s_add_u32 s30, s20, s21
    s_mul_i32 s20, s30, 14336
    s_add_u32 s20, s20, {WV}''')
    load_frags(a, 98, 20, w4)
    a(f'''s_lshl_b32 s30, s30, 10
    s_mul_i32 s31, s{S_W}, 7168
    v_and_b32 v8, 7, v7
    v_min_u32 v8, 6, v8
    v_lshlrev_b32 v8, 7, v8
    v_min_u32 v3, 55, v7
    v_lshlrev_b32 v3, 7, v3
    s_mov_b32 s{S_K}, 0''')
    all_done(a, EXIT)
    if VXFIRST and chain.PREP:
        a(f'''s_lshl_b32 s20, s{S_P}, 7
        s_add_u32 s20, s20, {DONEF+0x9000}
        v_mov_b32 v18, s78
        v_mov_b32 v19, s79
        buffer_store_dwordx2 v[18:19], v14, {SRD}, s20 offen sc1''')
    pipe_setup(a, 10, 11)
    merged_task(a, D_V, EXIT)
    st = Stamps(a, stamps)
    LOOP = a.label('Lvx'); NW = a.label('Lnw'); HV = a.label('Lhv'); GO = a.label('Lgo'); REDO = a.label('Lredo'); RUN = a.label('Lrun')
    def src(ls, buf_expr):
        a(f'''s_mul_i32 s22, s{ls}, {XN_SEG}
        s_add_u32 s22, s22, s31
        s_add_u32 s22, s22, {XN}
        {buf_expr}
        s_add_u32 s23, s23, s31''')
    def lookahead():
        NJ = a.label('Lnj')
        a(f's_add_u32 s{S_K}, s{S_K}, 1\ns_mov_b32 s25, {ZEROS}')
        merged_task(a, D_V, NJ, S_NL, S_NS, S_NLS)
        flag_off(a, 25, F_XN, S_NLS)
        a(f'''s_cmp_eq_u32 s{S_NL}, 0
        s_cselect_b32 s25, {ONES}, s25
        {NJ}:
        buffer_load_dword v9, v8, {SRD}, s25 offen sc1''')
    lookahead()
    a(f'{LOOP}:')
    st.mark()
    a(f's_cmp_eq_u32 s{S_HAVE}, 1\ns_cbranch_scc1 {HV}')
    flush(a)
    a(f's_cmp_eq_u32 s{S_L}, 0\ns_cbranch_scc1 {NW}')
    if SPEC & 2:
        flag_off(a, 26, F_XN)
        wait_spec(a, 8, 26, 12, EXIT, lambda: src(S_LS, f's_mov_b32 s23, s{S_BUF}'), lambda: dma_frags(a, 7, 22, 23), 7)
        a(f's_branch {NW}_j')
    else:
        flag_off(a, 22, F_XN)
        wait_flags(a, 8, 22, 12, EXIT)
    a(f'{NW}:')
    src(S_LS, f's_mov_b32 s23, s{S_BUF}')
    dma_frags(a, 7, 22, 23)
    a(f'{NW}_j:\nbuffer_load_dword v9, v8, {SRD}, s25 offen sc1')
    a(f's_waitcnt vmcnt(0)\ns_branch {GO}\n{HV}:\ns_waitcnt vmcnt(7)\n{GO}:')
    st.mark()
    a(f'''v_add_u32 v2, s{S_BUF}, v1
    s_mul_i32 s24, s{S_LS}, {VX_SEG}
    s_add_u32 s24, s24, s30
    s_add_u32 s24, s24, {VX}
    {RUN}:''')
    src(S_NLS, f's_xor_b32 s23, s{S_BUF}, 28672')
    vote_pre(a, 9, 10, 12)
    a('s_barrier')
    st.mark()
    def rd(ks): return [f'ds_read_b128 {vr(xr+8*(ks%3)+4*rt,4)}, v2 offset:{(rt*14+ks)*1024}' for rt in range(2)]
    vote_post(a, 11, 12, rd(0) + rd(1))
    main = []; lanes = []
    dl = dma_list(7, 22, 23, SRD2)
    for ks in range(14):
        b = 14*ks
        for t in range(7):
            for rt in range(2):
                main.append(mf(vr(acc+28*rt+4*t,4), vr(xr+8*(ks%3)+4*rt,4), w4(t*14+ks), 0 if ks == 0 else None))
        lanes.append((b-1, 1, [f's_waitcnt lgkmcnt({2 if ks < 13 else 0})']))
        if ks+2 < 14: lanes.append((b, 3, rd(ks+2)))
        lanes.append((b+1, 1, [chk2(m, xr+8*(ks%3), xr+8*(ks%3)+4, ks == 0)]))
        if ks < 7: lanes.append((b+6, 1, dl[ks][0] + [dl[ks][1]]))
    if PRET & 1:
        lanes.append((14*8+6, 1, [f's_mul_i32 s26, s{S_NLS}, {VX_SEG}', 's_add_u32 s26, s26, s30', f's_add_u32 s26, s26, {VX}', f'buffer_load_dword v107, v3, {SRD}, s26 offen']))
    lanes.append((14*5+4, 1, ['s_waitcnt vmcnt(5)\ns_barrier', f'buffer_store_dword v15, v14, {SRD}, s{S_PEND} offen sc1', f's_mov_b32 s{S_PEND}, {DUMMY}']))
    sched(a, main, lanes)
    st.mark()
    redo_if_bad(a, m, REDO, EXIT)
    pend_flag(a, F_VX, S_P)
    st.flush(104, 20, S_LS); st.n = 0
    a(f'''s_mov_b32 s{S_L}, s{S_NL}
    s_mov_b32 s{S_S}, s{S_NS}
    s_mov_b32 s{S_LS}, s{S_NLS}
    s_xor_b32 s{S_BUF}, s{S_BUF}, 28672
    s_mov_b32 s35, s{S_NS}''')
    lookahead()
    for t in range(7):
        O = o+4*(t & 1)
        for rt in range(2):
            A = acc+28*rt+4*t
            a(f'v_cvt_pk_bf16_f32 v{O+2*rt}, v{A}, v{A+1}\nv_cvt_pk_bf16_f32 v{O+2*rt+1}, v{A+2}, v{A+3}')
        a(f'buffer_store_dwordx4 {vr(O,4)}, v1, {SRD}, s24 offen offset:{(t&3)*1024} sc1')
        if t == 3: a('s_add_u32 s24, s24, 4096')
    st.mark()
    a(f's_cmp_lt_u32 s35, 64\ns_cbranch_scc1 {LOOP}')
    flush(a)
    if stamps: stamp_dump(a, EXIT)
    else: a(f's_branch {EXIT}')
    a(f'{REDO}:\ns_sub_u32 s{S_TO}, s{S_TO}, 64\ns_cbranch_scc1 {EXIT}\ns_barrier')
    src(S_LS, f's_mov_b32 s23, s{S_BUF}')
    dma_frags(a, 7, 22, 23)
    a(f's_waitcnt vmcnt(0)\ns_branch {RUN}')
    st.n = 0

def p_role(a, EXIT, stamps=0):
    a('; ================= P role =================')
    PART = 65536
    SW = 4096
    acc, qr, xk, s4, m, ninf = 16, 44, 84, 112, 116, 117
    TB = lambda rt, u: 56 + 14*rt + 2*u - (0 if u == 0 else 0)
    TBP = lambda rt, p: 56 + 14*rt + 2 + 4*p
    S_XP, S_XS, S_MP, S_MS = 30, 31, 32, 33
    CM = 82
    WD = a.label('Lpwd')
    a(f's_mov_b32 s23, 0\ns_branch {WD}\n{chain.P_ENTRY}:\ns_mov_b32 s{S_U}, 3\ns_mov_b32 s23, 1\n{WD}:')
    common_setup(a)
    sched_setup(a, 'P')
    a(f"""s_cmp_eq_u32 s23, 1
    s_cbranch_scc1 {WD}_skip""")
    if HOLD: hold_back(a, EXIT, skip=f's_cmp_lt_u32 s{S_U}, 2')
    if VXFIRST and chain.PREP:
        a(f's_lshl_b32 s20, s{S_P}, 7\ns_add_u32 s20, s20, 0x9000\nv_mov_b32 v16, s20')
        chain.wait_done(a, 16, 18, EXIT)
    need_head(a, 0, EXIT)
    a(f"""s_mul_i32 s20, s{S_P}, 28
    s_mul_i32 s21, s{S_W}, 7
    s_add_u32 s20, s20, s21
    s_and_b32 s22, s{S_W}, 1
    s_add_u32 s21, s20, s22
    s_mul_i32 s21, s21, 14336
    s_add_u32 s21, s21, {WA}
    s_xor_b32 s22, s22, 1
    s_mul_i32 s22, s22, 6
    s_add_u32 s20, s20, s22
    s_mul_i32 s20, s20, 14336
    s_add_u32 s20, s20, {WA}""")
    load_frags(a, 14, 20, w4)
    load_frags(a, 84, 21, lambda i: w4(14+i), start=14)
    a(f"""{WD}_skip:
    s_mul_i32 s20, s{S_W}, 7
    s_add_u32 s20, s20, 1
    s_lshr_b32 s20, s20, 1
    s_lshr_b32 s21, s{S_W}, 1
    s_mul_i32 s21, s21, 7
    s_add_u32 s21, s21, 3
    s_lshl_b32 s{S_XP}, s20, 10
    s_lshl_b32 s{S_XS}, s21, 10
    s_lshl_b32 s{S_MP}, s20, 9
    s_lshl_b32 s{S_MS}, s21, 9
    s_and_b32 s22, s{S_W}, 1
    s_lshl_b32 s34, s22, 3
    v_lshrrev_b32 v10, 4, v7
    v_and_b32 v11, 15, v7
    v_and_b32 v3, 7, v7
    v_min_u32 v8, 6, v3
    v_lshlrev_b32 v8, 7, v8
    v_lshlrev_b32 v3, 4, v3
    v_lshl_add_u32 v3, v10, 7, v3
    v_add_u32 v4, s34, v3
    v_mul_u32_u24 v5, 272, v10
    v_lshl_add_u32 v5, v11, 4, v5
    s_lshl_b32 s20, s{S_W}, 12
    s_add_u32 s20, s20, {PART}
    v_add_u32 v5, s20, v5
    s_lshl_b32 s20, s{S_W}, 2
    v_add_u32 v12, s20, v10
    v_min_u32 v6, 11, v11
    v_mul_u32_u24 v6, 272, v6
    v_lshl_add_u32 v6, v12, 4, v6
    v_add_u32 v6, {PART}, v6
    s_lshl_b32 s20, s{S_P}, 11
    v_and_b32 v13, 3, v11
    v_lshlrev_b32 v13, 8, v13
    v_lshl_add_u32 v13, v12, 4, v13
    v_lshrrev_b32 v9, 2, v11
    v_lshl_add_u32 v9, v9, 3, v13
    v_add_u32 v9, s20, v9
    s_lshr_b32 s20, s{S_P}, 2
    s_lshl_b32 s20, s20, 11
    s_add_u32 s20, s20, 32768
    s_and_b32 s21, s{S_P}, 2
    s_lshl_b32 s21, s21, 8
    s_add_u32 s20, s20, s21
    s_and_b32 s21, s{S_P}, 1
    s_lshl_b32 s21, s21, 3
    s_add_u32 s20, s20, s21
    v_add_u32 v13, s20, v13
    v_cmp_gt_u32 vcc, 8, v11
    v_cmp_gt_u32 s[22:23], 10, v11
    v_lshlrev_b32 v10, 2, v11
    v_cndmask_b32 v9, v13, v9, vcc
    v_mov_b32 v13, {OOB}
    v_cndmask_b32 v9, v13, v9, s[22:23]
    v_mov_b32 v13, 64
    v_cndmask_b32 v13, v13, 0, s[22:23]
    v_cndmask_b32 v10, v13, v10, vcc
    v_mov_b32 v{ninf}, 0xff800000""")
    for rt in range(2):
        for r in range(4):
            c = CM + 2*(4*rt+r)
            a(f"""v_add_u32 v13, {r}, v10
            v_cndmask_b32 v13, v10, v13, vcc
            v_add_u32 v2, {16*rt}, v12
            v_cmp_le_u32 s[{c}:{c+1}], v13, v2""")
    pipe_setup(a, 10, 11)
    a(f's_mul_i32 s29, s{S_W}, 7168\ns_mov_b32 s{S_K}, 0')
    all_done(a, EXIT)
    merged_task(a, D_P, EXIT)
    XK = lambda u, kt: xk + (2*kt if u == 0 else 4 + 8*(u-1) + 4*kt)
    def src(ls, buf_expr):
        a(f"""s_mul_i32 s22, s{ls}, {XN_SEG}
        s_add_u32 s22, s22, s29
        s_add_u32 s22, s22, {XN}
        {buf_expr}
        s_add_u32 s23, s23, s29""")
    def lookahead():
        NJ = a.label('Lnj')
        a(f's_add_u32 s{S_K}, s{S_K}, 1\ns_mov_b32 s36, {ZEROS}')
        merged_task(a, D_P, NJ, S_NL, S_NS, S_NLS)
        flag_off(a, 36, F_XN, S_NLS)
        a(f"""s_cmp_eq_u32 s{S_NL}, 0
        s_cselect_b32 s36, {ONES}, s36
        {NJ}:
        buffer_load_dword v12, v8, {SRD}, s36 offen sc1""")
    st = Stamps(a, stamps)
    LOOP = a.label('Lp'); NW = a.label('Lnw'); HV = a.label('Lhv'); REDO = a.label('Lredo')
    lookahead()
    a(f'{LOOP}:')
    st.mark()
    a(f's_cmp_eq_u32 s{S_HAVE}, 1\ns_cbranch_scc1 {HV}')
    a(f's_cmp_eq_u32 s{S_L}, 0\ns_cbranch_scc1 {NW}')
    flag_off(a, 22, F_XN)
    wait_flags(a, 8, 22, 118, EXIT)
    a(f'{NW}:')
    src(S_LS, f's_mov_b32 s23, s{S_BUF}')
    dma_frags(a, 7, 22, 23)
    a(f'buffer_load_dword v12, v8, {SRD}, s36 offen sc1\ns_waitcnt vmcnt(0)\n{HV}:')
    a(f"""v_add_u32 v13, s{S_BUF}, v1
    s_lshl_b32 s27, s{S_LS}, 13
    s_add_u32 s27, s27, {MEMG}
    s_add_u32 s28, s27, s{S_MS}
    s_add_u32 s27, s27, s{S_MP}
    s_mul_i32 s24, s{S_LS}, {PF_SEG}
    s_add_u32 s24, s24, {PF}
    v_add_u32 v2, s{S_XP}, v13
    v_add_u32 v7, s{S_XS}, v13
    v_add_u32 v7, s34, v7""")
    src(S_NLS, f's_xor_b32 s23, s{S_BUF}, 32768')
    a('s_waitcnt vmcnt(3)')
    vote_pre(a, 12, 10, 118)
    a('s_barrier')
    st.mark()
    def rd(i): return f'ds_read_b128 {vr(qr+4*(i%3),4)}, v13 offset:{i*1024}'
    vote_post(a, 11, 118, [rd(0), rd(1)])
    kl = []
    for kt in range(2):
        kl.append(f'ds_read_b64 {vr(XK(0,kt),2)}, v7 offset:{kt*14336}')
        kl += [f'ds_read_b128 {vr(XK(u,kt),4)}, v2 offset:{kt*14336+(u-1)*1024}' for u in range(1, 4)]
    MK = lambda u: (118, qr+8, qr, qr+4)[u]
    mkl = [f'buffer_load_dwordx2 {vr(MK(0),2)}, v4, {SRD}, s28 offen sc1'] + [f'buffer_load_dwordx4 {vr(MK(u),4)}, v3, {SRD}, s27 offen offset:{(u-1)*512} sc1' for u in range(1, 4)]
    def cvts(rt): return [x for u in range(7) for x in (f'v_cvt_pk_bf16_f32 v{TB(rt,u)}, v{acc+4*u}, v{acc+4*u+1}', f'v_cvt_pk_bf16_f32 v{TB(rt,u)+1}, v{acc+4*u+2}, v{acc+4*u+3}')]
    def score(D, D2, K, rt):
        return [mf(vr(D,4), vr(K(1),4), vr(TBP(rt,0),4), 0), f'v_mfma_f32_16x16x16_bf16 {vr(D2,4)}, {vr(K(0),2)}, {vr(TB(rt,0),2)}, 0',
                mf(vr(D,4), vr(K(2),4), vr(TBP(rt,1),4)), mf(vr(D,4), vr(K(3),4), vr(TBP(rt,2),4))]
    def stream(rt, extra):
        main = []; lanes = list(extra)
        for ks in range(14):
            i = 14*rt+ks; b = 7*ks
            main += [mf(vr(acc+4*u,4), w4(u*14+ks), vr(qr+4*(i%3),4), 0 if ks == 0 else None) for u in range(7)]
            lanes.append((b-1, 1, [f's_waitcnt lgkmcnt({0 if i == 27 else 1})']))
            if i+2 < 28: lanes.append((b+5, 1, [rd(i+2)]))
            lanes.append((b+1, 1, [f'v_mov_b32 v{m}, v{qr}' if i == 0 else f'v_max_u32 v{m}, v{m}, v{qr+4*(i%3)}']))
        sched(a, main, lanes)
    dl = dma_list(7, 22, 23, SRD2)
    ex = [(7*k+2, 1, [kl[k]]) for k in range(8)]
    for k in range(4): ex.append((7*(3*k+1)+3, 7, ['\n'.join(dl[k][0]) or 's_nop 0', dl[k][1]]))
    stream(0, ex)
    st.mark(2)
    a('s_nop 0')
    for x in cvts(0): a(x)
    s0 = [f'v_mfma_f32_16x16x16_bf16 {vr(s4,4)}, {vr(XK(0,0),2)}, {vr(TB(0,0),2)}, 0'] + [mf(vr(s4,4), vr(XK(u,0),4), vr(TBP(0,u-1),4)) for u in range(1, 4)]
    ex = [(2, 1, [s0[0]]), (16, 1, s0[1:]), (30, 1, [f'ds_write_b128 v5, {vr(s4,4)}'])]
    for k in range(4, 7): ex.append((7*(3*(k-4)+1)+3, 7, ['\n'.join(dl[k][0]) or 's_nop 0', dl[k][1]]))
    MK = lambda u: (118, qr+4, qr+8, qr)[u]
    mkl = [f'buffer_load_dwordx2 {vr(MK(0),2)}, v4, {SRD}, s28 offen sc1'] + [f'buffer_load_dwordx4 {vr(MK(u),4)}, v3, {SRD}, s27 offen offset:{(u-1)*512} sc1' for u in range(1, 4)]
    ex += [(7*12+2, 1, [mkl[0]]), (7*12+4, 1, [mkl[1]]), (7*13+2, 1, [mkl[2]]), (7*13+6, 1, [mkl[3]])]
    stream(1, ex)
    redo_if_bad(a, m, REDO, EXIT)
    for x in cvts(1): a(x)
    st.mark()
    d0, d1, e0, e1, t = acc, acc+4, acc+8, acc+12, s4
    sa = score(d0, e0, lambda u: XK(u, 0), 1); sb = score(d1, e1, lambda u: XK(u, 1), 1)
    for x, y in zip(sa, sb): a(x); a(y)
    a(f"""s_mov_b32 s37, s{S_LS}
    s_mov_b32 s{S_L}, s{S_NL}
    s_mov_b32 s{S_LS}, s{S_NLS}
    s_xor_b32 s{S_BUF}, s{S_BUF}, 32768
    s_mov_b32 s35, s{S_NS}""")
    lookahead()
    for r in range(4): a(f'v_add_f32 v{d0+r}, v{d0+r}, v{e0+r}')
    a(f'ds_write_b128 v5, {vr(d0,4)} offset:16384')
    for r in range(4): a(f'v_add_f32 v{d1+r}, v{d1+r}, v{e1+r}')
    a(f'ds_write_b128 v5, {vr(d1,4)} offset:{16384+1088}')
    L = a.label('Lpmk'); LC = a.label('Lpc')
    def check():
        a(f"""v_max3_u32 v{t}, v118, v119, v{qr}
        v_max3_u32 v{t+1}, v{qr+1}, v{qr+2}, v{qr+3}
        v_max3_u32 v{t}, v{t}, v{qr+4}, v{qr+5}
        v_max3_u32 v{t+1}, v{t+1}, v{qr+6}, v{qr+7}
        v_max3_u32 v{t}, v{t}, v{qr+8}, v{qr+9}
        v_max3_u32 v{t+1}, v{t+1}, v{qr+10}, v{qr+11}
        v_max_u32 v{t}, v{t}, v{t+1}
        v_cmp_eq_u32 vcc, -1, v{t}""")
    st.mark(2)
    a('s_waitcnt vmcnt(1)')
    check()
    a(f's_cbranch_vccz {LC}\n{L}:')
    if PSLEEP: a(f's_sleep {PSLEEP}')
    for x in mkl: a(x)
    a(f"""s_sub_u32 s{S_TO}, s{S_TO}, 1
    s_cbranch_scc1 {EXIT}
    s_waitcnt vmcnt(0)""")
    check()
    a(f's_cbranch_vccnz {L}\n{LC}:')
    st.mark()
    d0, d1, e0, e1 = acc+16, acc+20, acc+8, acc+12
    sa = score(d0, e0, MK, 0); sb = score(d1, e1, MK, 1)
    for x, y in zip(sa, sb): a(x); a(y)
    a(f"""s_mul_i32 s21, s37, {flag_seg(F_P)}
    s_lshl_b32 s20, s{S_P}, 7
    s_add_u32 s21, s21, s20
    s_add_u32 s21, s21, {flag_base(F_P)}
    s_nop 2""")
    for r in range(4): a(f'v_add_f32 v{d0+r}, v{d0+r}, v{e0+r}')
    a(f'ds_write_b128 v5, {vr(d0,4)} offset:2176')
    for r in range(4): a(f'v_add_f32 v{d1+r}, v{d1+r}, v{e1+r}')
    a(f'ds_write_b128 v5, {vr(d1,4)} offset:{16384+2176}')
    st.mark(2)
    a('s_waitcnt lgkmcnt(0)\ns_barrier')
    st.mark(2)
    RR = [56, 84]
    for rt in range(2):
        for w in range(4): a(f'ds_read_b128 {vr(RR[rt]+4*w,4)}, v6 offset:{rt*16384+w*SW}')
    for rt in range(2):
        R = RR[rt]
        a(f"""s_waitcnt lgkmcnt({4-4*rt})
        v_pk_add_f32 {vr(R,2)}, {vr(R,2)}, {vr(R+4,2)}
        v_pk_add_f32 {vr(R+2,2)}, {vr(R+2,2)}, {vr(R+6,2)}
        v_pk_add_f32 {vr(R+8,2)}, {vr(R+8,2)}, {vr(R+12,2)}
        v_pk_add_f32 {vr(R+10,2)}, {vr(R+10,2)}, {vr(R+14,2)}
        v_pk_add_f32 {vr(R,2)}, {vr(R,2)}, {vr(R+8,2)}
        v_pk_add_f32 {vr(R+2,2)}, {vr(R+2,2)}, {vr(R+10,2)}""")
        for r in range(4): a(f'v_cndmask_b32 v{R+r}, v{ninf}, v{R+r}, s[{CM+2*(4*rt+r)}:{CM+2*(4*rt+r)+1}]')
    st.mark(2)
    def both(f):
        for R in RR: a(f(R))
    both(lambda R: f'v_max3_f32 v{R+4}, v{R}, v{R+1}, v{R+2}')
    both(lambda R: f'v_max_f32 v{R+4}, v{R+4}, v{R+3}')
    for k in (8, 4, 2, 1):
        a('s_nop 0'); both(lambda R: f'v_max_f32_dpp v{R+4}, v{R+4}, v{R+4} row_ror:{k} {DPP}')
    for r in range(4): both(lambda R: f'v_sub_f32 v{R+r}, v{R+r}, v{R+4}')
    for r in range(4): both(lambda R: f'v_exp_f32 v{R+r}, v{R+r}')
    both(lambda R: f'v_add_f32 v{R+4}, v{R}, v{R+1}')
    both(lambda R: f'v_add_f32 v{R+5}, v{R+2}, v{R+3}')
    both(lambda R: f'v_add_f32 v{R+4}, v{R+4}, v{R+5}')
    for k in (8, 4, 2, 1):
        a('s_nop 0'); both(lambda R: f'v_add_f32_dpp v{R+4}, v{R+4}, v{R+4} row_ror:{k} {DPP}')
    both(lambda R: f'v_rcp_f32 v{R+4}, v{R+4}')
    a('s_nop 0')
    for rt, R in enumerate(RR):
        a(f"""v_pk_mul_f32 {vr(R,2)}, {vr(R+4,2)}, {vr(R,2)} op_sel_hi:[0,1]
        v_pk_mul_f32 {vr(R+2,2)}, {vr(R+4,2)}, {vr(R+2,2)} op_sel_hi:[0,1]
        v_cvt_pk_bf16_f32 v{s4+2*rt}, v{R}, v{R+1}
        v_cvt_pk_bf16_f32 v{s4+2*rt+1}, v{R+2}, v{R+3}
        v_min_u32 v{s4+2*rt}, 0xfffffffe, v{s4+2*rt}
        buffer_store_dwordx2 {vr(s4+2*rt,2)}, v9, {SRD}, s24 offen offset:{1024*rt} sc1""")
    a(f's_barrier\nbuffer_store_dword v15, v14, {SRD}, s21 offen sc1')
    st.mark()
    st.flush(118, 20, 37)
    a(f's_cmp_lt_u32 s35, 64\ns_cbranch_scc1 {LOOP}')
    if stamps: stamp_dump(a, EXIT)
    else: a(f's_branch {EXIT}')
    a(f'{REDO}:\ns_sub_u32 s{S_TO}, s{S_TO}, 64\ns_cbranch_scc1 {EXIT}\ns_waitcnt lgkmcnt(0)\ns_barrier\ns_branch {NW}')

def rscatter(a, q):
    a(f'''s_nop 1
    v_permlane32_swap_b32 v{q}, v{q+2}
    v_permlane32_swap_b32 v{q+1}, v{q+3}
    v_add_f32 v{q}, v{q}, v{q+2}
    v_add_f32 v{q+1}, v{q+1}, v{q+3}
    s_nop 1
    v_permlane16_swap_b32 v{q}, v{q+1}
    v_add_f32 v{q}, v{q}, v{q+1}''')

def stats_partial(a, A, q):
    for rt in range(2):
        x = A+4*rt
        a(f'''v_add_f32 v{q+2*rt}, v{x}, v{x+1}
        v_mul_f32 v{q+2*rt+1}, v{x}, v{x}
        v_add_f32 v{q+2*rt}, v{q+2*rt}, v{x+2}
        v_fmac_f32 v{q+2*rt+1}, v{x+1}, v{x+1}
        v_add_f32 v{q+2*rt}, v{q+2*rt}, v{x+3}
        v_fmac_f32 v{q+2*rt+1}, v{x+2}, v{x+2}
        v_fmac_f32 v{q+2*rt+1}, v{x+3}, v{x+3}''')
    rscatter(a, q)

def stats_loads(G, vg, s_st, srd=SRD):
    return [f'buffer_load_dwordx4 {vr(G+4*i,4)}, v{vg}, {srd}, s{s_st} offen offset:{256*i} sc1' for i in range(7)]

def stats_check(a, G, t):
    a(f'''v_max3_u32 v{t}, v{G}, v{G+4}, v{G+8}
    v_max3_u32 v{t+1}, v{G+12}, v{G+16}, v{G+20}
    v_max3_u32 v{t}, v{t}, v{t+1}, v{G+24}
    v_cmp_eq_u32 vcc, -1, v{t}''')

def stats_finish(a, G, keep=None, pairs=((0, 1), (2, 3), (4, 5), (0, 2), (4, 6), (0, 4))):
    for (i, j) in pairs:
        a(f'v_pk_add_f32 {vr(G+4*i,2)}, {vr(G+4*i,2)}, {vr(G+4*j,2)}\nv_pk_add_f32 {vr(G+4*i+2,2)}, {vr(G+4*i+2,2)}, {vr(G+4*j+2,2)}')
    rscatter(a, G)
    a(f'''v_mov_b32 v{G+1}, v{G}
    s_nop 1
    v_permlane16_swap_b32 v{G}, v{G+1}
    v_mov_b32 v{G+2}, v{G}
    v_mov_b32 v{G+3}, v{G+1}
    s_mov_b32 s20, 0x3b124925
    s_mov_b32 s21, 0x3727c5ac
    v_permlane32_swap_b32 v{G}, v{G+2}
    v_permlane32_swap_b32 v{G+1}, v{G+3}''')
    for rt in range(2):
        m = G+2*rt; v = m+1
        a(f'''v_mul_f32 v{m}, s20, v{m}
        v_mul_f32 v{v}, s20, v{v}
        v_fma_f32 v{v}, -v{m}, v{m}, v{v}
        v_max_f32 v{v}, 0, v{v}
        v_add_f32 v{v}, s21, v{v}''')
        if keep is not None: a(f'v_sqrt_f32 v{keep+rt}, v{v}')
        a(f'v_rsq_f32 v{v}, v{v}')
    a('s_nop 0')

def sent4(a, r):
    for i in range(4): a(f'v_mov_b32 v{r+i}, -1')

def b1_role(a, EXIT, stamps=0, mode_fn=None):
    a('; ================= B1 role =================')
    W = lambda tt, ks: ar(4*(tt*14+ks), 4)
    ACC = lambda rt, tt: 48+16*rt+4*tt
    yr, o, cs, GS, MS, m, PK, SN = 16, 40, 80, 96, 152, 158, 160, 176
    common_setup(a)
    sched_setup(a, 'B1')
    if HOLD: hold_back(a, EXIT, skip=f's_cmp_eq_u32 s{S_U}, 0')
    a(f'''s_load_dwordx4 s[24:27], s[0:1], 64
    s_lshl_b32 s20, s{S_P}, 2
    s_add_u32 s30, s20, s{S_W}
    v_lshrrev_b32 v2, 2, v7
    v_mul_u32_u24 v2, 3584, v2
    v_and_b32 v3, 3, v7
    v_lshl_add_u32 v2, v3, 4, v2
    v_lshrrev_b32 v4, 4, v7
    v_lshlrev_b32 v5, 9, v4
    v_bfe_u32 v6, v7, 2, 2
    v_lshl_add_u32 v5, v6, 6, v5
    v_lshl_add_u32 v5, v3, 4, v5
    s_mul_i32 s31, s{S_W}, 28672
    v_add_u32 v5, s31, v5
    v_and_b32 v6, 15, v7
    v_lshlrev_b32 v13, 4, v6
    v_lshl_add_u32 v13, v4, 9, v13
    v_add_u32 v6, 256, v13
    v_cmp_gt_u32 vcc, 3, v4
    v_mov_b32 v4, {OOB}
    v_mov_b32 v3, v6
    v_cndmask_b32 v6, v4, v3, vcc
    s_waitcnt lgkmcnt(0)
    s_mov_b32 s36, s24
    s_mov_b32 s37, s25
    s_mov_b32 s38, {448*3584}
    s_mov_b32 s39, 0x20000
    s_mov_b32 s48, s26
    s_mov_b32 s49, s27
    s_mov_b32 s50, {448*3584}
    s_mov_b32 s51, 0x20000
    s_lshl_b32 s22, s30, 6''')
    for rr in range(2):
        a(f's_mov_b32 s23, s31')
        for k in range(7):
            for mat in range(2):
                for hf in range(2):
                    a(f'''s_mov_b32 m0, s23
                    s_add_u32 s21, s22, {(32*(7*rr+k)+16*hf)*3584}
                    buffer_load_dwordx4 v2, s[{36+12*mat}:{39+12*mat}], s21 offen lds
                    s_add_u32 s23, s23, 1024''')
        for k in range(7):
            a(f's_waitcnt vmcnt({4*(6-k)})')
            for mat in range(2):
                for t2 in range(2):
                    for jh in range(2):
                        b = 4*((2*mat+t2)*14+7*rr+k)+2*jh
                        a(f'ds_read_b64_tr_b16 {ar(b,2)}, v5 offset:{k*4096+mat*2048+jh*256+t2*8}')
            a('s_waitcnt lgkmcnt(0)')
    a('s_barrier')
    for r in range(4): a(f'v_mov_b32 v{yr+r}, 0x3f803f80')
    sent4(a, SN)
    for ks in range(14):
        for tt in range(4): a(mf(vr(cs+4*tt,4), W(tt,ks), vr(yr,4), 0 if ks == 0 else None))
    a(f'''s_lshl_b32 s30, s30, 10
    s_mul_i32 s31, s{S_W}, 7168
    s_mov_b32 s33, 0xbfb8aa3b
    s_mov_b32 s34, 0x3b124925
    s_mov_b32 s35, 0x3727c5ac
    s_mov_b32 s{S_K}, 0''')
    all_done(a, EXIT)
    mode_fn(16, 17, 28 if LAYOUT else 32)
    def variant(SC):
        LF = a.label('Lpf'); LFD = a.label('Lpfd'); DONE = a.label('Ldone')
        a(f'{LF}:')
        merged_task(a, D_B1, LFD)
        a(f'''s_add_u32 s{S_K}, s{S_K}, 1
        s_mul_i32 s24, s{S_LS}, {HF_SEG}
        s_add_u32 s24, s24, s30
        s_add_u32 s24, s24, {HF}
        s_add_u32 s25, s24, {56*1024}
        buffer_store_dwordx4 {vr(SN,4)}, v1, {SRD}, s24 offen {SC}
        buffer_store_dwordx4 {vr(SN,4)}, v1, {SRD}, s25 offen {SC}
        s_cmp_lt_u32 s{S_K}, 4
        s_cbranch_scc1 {LF}
        {LFD}:
        s_mov_b32 s{S_K}, 0''')
        st = Stamps(a, stamps)
        G = GS; G2 = GS+8
        LOOP = a.label('Lb1'); LD = a.label('Lld'); SP = a.label('Lsp'); SOK = a.label('Lsok'); REDO = a.label('Lredo'); HV = a.label('Lhv'); GO = a.label('Lgo')
        pipe_setup(a, 10, 11)
        def nxt_calc():
            return task_calc(S_NL, S_NS, S_NLS) + [f's_lshl_b32 s27, s{S_NL}, 6', f's_add_u32 s27, s27, s{S_NLS}', 's_lshl_b32 s27, s27, 13', f's_add_u32 s27, s27, {ST}',
                    f's_mul_i32 s38, s{S_NLS}, {XN_SEG}', 's_add_u32 s38, s38, s31', f's_add_u32 s38, s38, {YN}']
        def sl(G, s, srd): return [f'buffer_load_dwordx4 {vr(G,4)}, v13, {srd}, s{s} offen sc1', f'buffer_load_dwordx4 {vr(G+4,4)}, v6, {srd}, s{s} offen sc1']
        a(f's_mov_b32 s{S_BUF}, 32768')
        for x in nxt_calc(): a(x)
        a(f'{LOOP}:')
        st.mark()
        a(f"""s_mov_b32 s{S_LS}, s{S_NLS}
        s_mov_b32 s26, s27
        s_add_u32 s29, s{S_BUF}, s31
        s_add_u32 s27, s27, {ST_SEG}
        s_add_u32 s38, s38, {XN_SEG}
        s_mov_b32 s28, s38
        s_add_u32 s{S_NLS}, s{S_NLS}, 1
        s_add_u32 s{S_NS}, s{S_NS}, 1
        s_xor_b32 s{S_BUF}, s{S_BUF}, 32768
        s_mul_i32 s24, s{S_LS}, {HF_SEG}
        s_add_u32 s24, s24, s30
        s_add_u32 s24, s24, {HF}
        s_add_u32 s25, s24, {56*1024}
        v_add_u32 v5, s{S_BUF}, v1
        s_add_u32 s37, s24, {4*HF_SEG}
        s_cmp_lt_u32 s{S_NS}, 61
        s_cselect_b32 s37, s37, {DUMMY}
        s_add_u32 s36, s37, {56*1024}
        s_cmp_lt_u32 s{S_NS}, 64
        s_cselect_b32 s39, 0x10000000, 0
        s_cmp_eq_u32 s{S_HAVE}, 1
        s_cbranch_scc1 {HV}
        {LD}:
        s_mul_i32 s22, s{S_LS}, {XN_SEG}
        s_add_u32 s22, s22, s31
        s_add_u32 s22, s22, {YN}
        s_add_u32 s23, s31, s{S_BUF}
        {SP}:""")
        for x in sl(G2, 26, SRD): a(x)
        if SPEC & 1:
            dma_frags(a, 7, 22, 23)
            a(f"""s_sub_u32 s{S_TO}, s{S_TO}, 1
            s_cbranch_scc1 {EXIT}
            s_waitcnt vmcnt(7)
            v_max3_u32 v2, v{G2}, v{G2+1}, v{G2+2}
            v_max3_u32 v2, v2, v{G2+3}, v{G2+4}
            v_max3_u32 v2, v2, v{G2+5}, v{G2+6}
            v_max_u32 v2, v2, v{G2+7}
            v_cmp_eq_u32 vcc, -1, v2
            s_cbranch_vccz {LD}_ok
            {f's_sleep {BSLEEP}' if BSLEEP else ''}
            s_branch {LD}
            {LD}_ok:""")
        else:
            a(f"""s_sub_u32 s{S_TO}, s{S_TO}, 1
            s_cbranch_scc1 {EXIT}
            s_waitcnt vmcnt(0)
            v_max3_u32 v2, v{G2}, v{G2+1}, v{G2+2}
            v_max3_u32 v2, v2, v{G2+3}, v{G2+4}
            v_max3_u32 v2, v2, v{G2+5}, v{G2+6}
            v_max_u32 v2, v2, v{G2+7}
            v_cmp_eq_u32 vcc, -1, v2
            s_cbranch_vccz {SOK}
            s_sleep 1
            s_branch {SP}
            {SOK}:""")
            dma_frags(a, 7, 22, 23)
        a(f's_mov_b32 s{S_HAVE}, 0\n{HV}:')
        a(f'v_pk_add_f32 {vr(G,2)}, {vr(G2,2)}, {vr(G2+4,2)}\nv_pk_add_f32 {vr(G+2,2)}, {vr(G2+2,2)}, {vr(G2+6,2)}')
        sf = Asm(); stats_finish(sf, G, MS+4, ())
        for x in sf.lines:
            if 's_mov' not in x: a(x.replace('s20', 's34').replace('s21', 's35'))
        for rt in range(2):
            P = PK+6*rt
            a(f"""v_sub_f32 v{P}, 0, v{G+2*rt}
            v_mul_f32 v{P+2}, s33, v{G+2*rt+1}
            v_mov_b32 v{P+4}, v{MS+4+rt}""")
            for k in range(8): a(f'v_pk_mul_f32 {vr(ACC(rt,0)+2*k,2)}, {vr(P,2)}, {vr(cs+2*k,2)} op_sel_hi:[0,1]')
        a(f"""s_cmp_eq_u32 s{S_HAVE}, 1
        s_cbranch_scc1 {GO}
        s_waitcnt vmcnt(0)
        {GO}:
        s_waitcnt vmcnt(3)
        s_barrier""")
        st.mark()
        def rd(i): return f'ds_read_b128 {vr(yr+4*(i%6),4)}, v5 offset:{i*1024}'
        for i in range(4): a(rd(i))
        def epi(rt, pk):
            P = PK+6*rt; A = ACC(rt, 0); out = []
            if pk: out += [f'v_pk_mul_f32 {vr(A+2*k,2)}, {vr(P+2,2)}, {vr(A+2*k,2)} op_sel_hi:[0,1]' for k in range(4)]
            else: out += [f'v_mul_f32 v{A+k}, v{P+2}, v{A+k}' for k in range(8)]
            out += [f'v_exp_f32 v{A+k}, v{A+k}' for k in range(8)]
            if pk: out += [f'v_pk_fma_f32 {vr(A+2*k,2)}, {vr(A+2*k,2)}, {vr(P+4,2)}, {vr(P+4,2)} op_sel_hi:[1,0,0]' for k in range(4)]
            else: out += [f'v_fma_f32 v{A+k}, v{A+k}, v{P+4}, v{P+4}' for k in range(8)]
            out += [f'v_rcp_f32 v{A+k}, v{A+k}' for k in range(8)]
            if pk: out += [f'v_pk_mul_f32 {vr(A+2*k,2)}, {vr(A+2*k,2)}, {vr(A+8+2*k,2)}' for k in range(4)]
            else: out += [f'v_mul_f32 v{A+k}, v{A+k}, v{A+8+k}' for k in range(8)]
            out += [f'v_cvt_pk_bf16_f32 v{o+4*rt+d}, v{A+2*d}, v{A+2*d+1}' for d in range(4)]
            out.append(f'v_min_u32 v{o+4*rt}, 0xfffffffe, v{o+4*rt}')
            return out
        main = []; lanes = []
        for i in range(28):
            rt, ks = divmod(i, 14); b = 4*i
            main += [mf(vr(ACC(rt,tt),4), W(tt,ks), vr(yr+4*(i%6),4)) for tt in range(4)]
            if i % 2 == 0: lanes.append((b-1, 1, [f's_waitcnt lgkmcnt({max(0, min(2, 26-i))})']))
            if i+4 < 28: lanes.append((b, 1, [rd(i+4)]))
            if i & 1: lanes.append((b-1, 1, [chk2(m, yr+4*((i-1)%6), yr+4*(i%6), i == 1)]))
        free = [p for p in range(1, 62) if p % 4 in (1, 2)]
        nc = ['s_mov_b32 s58, s39'] + sl(G2, 27, SRD2) + ['', f'buffer_store_dwordx4 {vr(SN,4)}, v1, {SRD}, s37 offen {SC}', '', f'buffer_store_dwordx4 {vr(SN,4)}, v1, {SRD}, s36 offen {SC}']
        for p, x in zip(free, nc): lanes.append((p, 1, [x]))
        lanes.append((free[16], 1, [f's_waitcnt vmcnt(2)\nv_max3_u32 v2, v{G2}, v{G2+1}, v{G2+2}\nv_max3_u32 v2, v2, v{G2+3}, v{G2+4}\nv_max3_u32 v2, v2, v{G2+5}, v{G2+6}\nv_max_u32 v2, v2, v{G2+7}']))
        lanes.append((free[17], 1, ['v_cmp_eq_u32 vcc, -1, v2']))
        lanes.append((free[18], 1, [f's_cmp_eq_u64 vcc, 0\ns_cselect_b32 s58, s58, 0\ns_cmp_lg_u32 s58, 0\ns_cselect_b32 s{S_HAVE}, 1, 0']))
        dl = dma_list(7, 28, 29, SRD2)
        for k in range(7): lanes.append((38+4*k, 1, ['\n'.join(dl[k][0] + [dl[k][1]])]))
        e0 = epi(0, False)
        pos = [p for p in range(62, 112) if (p % 4 != 0 or p >= 96) and p != 62]
        for p, x in zip(pos, e0): lanes.append((p, 1, [x]))
        sched(a, main, lanes)
        for x in e0[len(pos):]: a(x)
        st.mark()
        redo_if_bad(a, m, REDO, EXIT)
        a(f'buffer_store_dwordx4 {vr(o,4)}, v1, {SRD}, s24 offen {SC}\ns_nop 3')
        for x in epi(1, True): a(x)
        a(f'buffer_store_dwordx4 {vr(o+4,4)}, v1, {SRD}, s25 offen {SC}')
        hint(a, F_H, S_P, sc=SC)
        st.mark()
        st.flush(2, 20, S_LS)
        a(f's_cmp_lt_u32 s{S_NS}, 64\ns_cbranch_scc1 {LOOP}\n{DONE}:')
        if WBL: a(f's_cmp_lg_u32 s{S_W}, 0\ns_cbranch_scc1 {DONE}_w\ns_cmp_lg_u32 s{S_P}, 0\ns_cbranch_scc1 {DONE}_w\nbuffer_wbl2 sc1\ns_waitcnt vmcnt(0)\n{DONE}_w:')
        if stamps: stamp_dump(a, EXIT)
        else: a(f's_branch {EXIT}')
        a(f'{REDO}:\ns_sub_u32 s{S_TO}, s{S_TO}, 64\ns_cbranch_scc1 {EXIT}\ns_mov_b32 s28, s38\ns_xor_b32 s29, s{S_BUF}, 32768\ns_add_u32 s29, s29, s31\ns_waitcnt vmcnt(0)\ns_barrier\ns_branch {LD}')
    SL = a.label('Lb1slow')
    a(f's_cmp_eq_u32 s{S_FAST}, 1\ns_cbranch_scc0 {SL}')
    variant('' if HLOC and LAYOUT else 'sc1')
    a(f'{SL}:')
    variant('sc1')

S_T = 30
def team_setup(a):
    a(f'''s_lshl_b32 s{S_T}, s{S_P}, 2
    s_add_u32 s{S_T}, s{S_T}, s{S_W}
    v_and_b32 v2, 15, v7
    v_lshrrev_b32 v3, 4, v7
    v_mul_u32_u24 v11, 896, v2
    s_lshl_b32 s20, s{S_T}, 5
    v_add_u32 v11, s20, v11
    v_lshl_add_u32 v10, v3, 3, v11
    v_lshlrev_b32 v12, 4, v2
    v_mul_u32_u24 v13, {7*256}, v3
    v_add_u32 v13, v13, v12
    v_lshl_add_u32 v12, v3, 2, v12
    s_lshl_b32 s20, s{S_T}, 8
    v_add_u32 v12, s20, v12
    v_lshrrev_b32 v4, 1, v3
    v_lshl_add_u32 v11, v4, 4, v11
    v_lshlrev_b32 v6, 8, v4
    v_lshl_add_u32 v6, v2, 4, v6
    s_lshl_b32 s20, s{S_T}, 9
    v_add_u32 v6, s20, v6
    v_and_b32 v4, 1, v3
    v_mul_u32_u24 v9, 14336, v4
    v_add_u32 v5, v6, v9
    v_add_u32 v11, v11, v9
    v_lshl_add_u32 v6, v4, 3, v6''')

def cu_stats_setup(a, lds):
    a(f"""v_lshlrev_b32 v169, 2, v7
    v_add_u32 v169, {lds}, v169
    s_lshl_b32 s20, s{S_W}, 8
    v_add_u32 v168, s20, v169
    v_lshlrev_b32 v13, 4, v2
    v_lshl_add_u32 v12, v3, 2, v13
    s_lshl_b32 s20, s{S_P}, 8
    v_add_u32 v12, s20, v12
    v_lshl_add_u32 v13, v3, 9, v13
    v_add_u32 v170, 256, v13
    v_mov_b32 v171, {OOB}
    v_cmp_gt_u32 vcc, 64, v0
    v_cmp_gt_u32 s[20:21], 3, v3
    s_nop 1
    v_cndmask_b32 v12, v171, v12, vcc
    v_cndmask_b32 v170, v171, v170, s[20:21]""")

def cu_stats(a, q):
    a(f"""ds_write_b32 v168, v{q}
    s_waitcnt lgkmcnt(0)
    s_barrier
    ds_read2st64_b32 {vr(q,2)}, v169 offset0:0 offset1:1
    ds_read2st64_b32 {vr(q+2,2)}, v169 offset0:2 offset1:3
    s_waitcnt lgkmcnt(0)
    v_add_f32 v{q}, v{q}, v{q+1}
    v_add_f32 v{q+2}, v{q+2}, v{q+3}
    v_add_f32 v{q}, v{q}, v{q+2}
    v_min_u32 v{q}, 0xfffffffe, v{q}""")

def add_residual(a, A, RS, XP):
    for rt in range(2):
        for d in range(2):
            x = A+4*rt+2*d; r = RS+2*rt+d
            a(f'''v_lshlrev_b32 v2, 16, v{r}
            v_and_b32 v3, 0xffff0000, v{r}
            v_add_f32 v{x}, v{x}, v2
            v_add_f32 v{x+1}, v{x+1}, v3
            v_cvt_pk_bf16_f32 v{XP+2*rt+d}, v{x}, v{x+1}
            v_lshlrev_b32 v{x}, 16, v{XP+2*rt+d}
            v_and_b32 v{x+1}, 0xffff0000, v{XP+2*rt+d}''')

def pair_swap(a, XP):
    a(f's_nop 1\nv_permlane16_swap_b32 v{XP}, v{XP+2}\nv_permlane16_swap_b32 v{XP+1}, v{XP+3}')

def res_valid(a, RS, s0, EXIT, t=2):
    L = a.label('Lrv'); OK = a.label('Lrok')
    a(f'''{L}:
    v_max3_u32 v{t}, v{RS}, v{RS+1}, v{RS+2}
    v_max_u32 v{t}, v{t}, v{RS+3}
    v_cmp_eq_u32 vcc, -1, v{t}
    s_cbranch_vccz {OK}
    buffer_load_dwordx2 {vr(RS,2)}, v6, {SRD}, s{s0} offen sc1
    buffer_load_dwordx2 {vr(RS+2,2)}, v6, {SRD}, s{s0+1} offen sc1
    s_sub_u32 s{S_TO}, s{S_TO}, 1
    s_cbranch_scc1 {EXIT}
    s_waitcnt vmcnt(0)
    s_branch {L}
    {OK}:''')

def b2_role(a, EXIT, stamps=0, mode_fn=None):
    a('; ================= B2 role =================')
    DONE = a.label('Ldone')
    W = lambda tt, k: ar(4*(28*tt+k), 4)
    hr, A, RSv, XP, AC, G, YP, m = 120, 16, 24, 28, 64, 80, 32, 36
    common_setup(a)
    sched_setup(a, 'B2')
    if HOLD: hold_back(a, EXIT, skip='s_cmp_eq_u32 0, 1')
    team_setup(a)
    cu_stats_setup(a, 124928)
    a(f'''s_load_dwordx2 s[36:37], s[0:1], 80
    s_load_dwordx2 s[48:49], s[0:1], 88
    v_lshrrev_b32 v4, 1, v7
    v_mul_u32_u24 v4, 896, v4
    v_and_b32 v8, 1, v7
    v_lshl_add_u32 v4, v8, 4, v4
    v_min_u32 v8, 13, v2
    v_lshlrev_b32 v8, 7, v8
    s_mul_i32 s31, s{S_W}, 28672
    v_lshlrev_b32 v9, 8, v3
    v_and_b32 v2, 15, v7
    v_lshl_add_u32 v9, v2, 3, v9
    v_add_u32 v9, s31, v9
    s_mov_b32 s38, {1792*896}
    s_mov_b32 s39, 0x20000
    s_mov_b32 s50, {2048*896}
    s_mov_b32 s51, 0x20000
    s_and_b32 s24, s{S_T}, 0xfe
    s_lshl_b32 s24, s24, 5
    s_and_b32 s25, s{S_W}, 1
    s_mul_i32 s25, s25, {28*32*896}
    s_add_u32 s24, s24, s25
    s_waitcnt lgkmcnt(0)''')
    for rr in range(2):
        a(f's_mov_b32 s23, s31\ns_add_u32 s22, s24, {32*rr}')
        for k in range(28):
            a(f'''s_mov_b32 m0, s23
            s_add_u32 s23, s23, 1024
            buffer_load_dwordx4 v4, s[36:39], s22 offen lds
            s_add_u32 s22, s22, {32*896}''')
        for k in range(28):
            if k % 4 == 0: a(f's_waitcnt vmcnt({24-k}) lgkmcnt(0)')
            for jh in range(2): a(f'ds_read_b64_tr_b16 {ar(4*(28*rr+k)+2*jh,2)}, v9 offset:{k*1024+jh*128}')
        a('s_waitcnt lgkmcnt(0)')
    all_done(a, EXIT)
    mode_fn(16, 17, 28 if LAYOUT else 32)
    sent4(a, XP)
    LF = a.label('Lpf'); LFD = a.label('Lpfd')
    a(f's_mov_b32 s{S_K}, 0\n{LF}:')
    merged_task(a, D_B2, LFD)
    a(f'''s_add_u32 s{S_K}, s{S_K}, 1
    s_cmp_eq_u32 s{S_L}, 0
    s_cbranch_scc0 {LF}
    s_mul_i32 s23, s{S_S}, 28672
    s_add_u32 s25, s23, {XN + 64*XN_SEG}
    s_add_u32 s26, s23, {X2}
    buffer_store_dwordx4 {vr(XP,4)}, v5, {SRD}, s25 offen sc1
    buffer_store_dwordx4 {vr(XP,4)}, v5, {SRD}, s26 offen sc1
    s_waitcnt vmcnt(32)
    s_branch {LF}
    {LFD}:
    s_and_b32 s31, s{S_W}, 1
    s_mul_i32 s31, s31, {28*1024}
    v_add_u32 v9, s31, v1
    v_add_u32 v171, 57344, v9
    s_lshr_b32 s25, s{S_W}, 1
    s_mul_i32 s25, s25, {56*1024}
    s_add_u32 s31, s31, s25
    s_lshl_b32 s25, s{S_W}, 11
    s_add_u32 s25, s25, 114688
    v_add_u32 v172, s25, v1
    v_xor_b32 v173, 2048, v172
    s_mov_b32 s{S_K}, 0''')
    st = Stamps(a, stamps)
    LOOP = a.label('Lb2'); LD = a.label('Lld'); REDO = a.label('Lredo')
    def nxt():
        NE = a.label('Lne')
        merged_task(a, D_B2, NE, S_NL, S_NS, S_NLS)
        flag_off(a, 29, F_H, S_NLS)
        a(f'buffer_load_dword v4, v8, {SRD}, s29 offen sc1\n{NE}:')
    nxt()
    a(f'''s_waitcnt vmcnt(0)
    {LOOP}:
    s_mov_b32 s{S_L}, s{S_NL}
    s_mov_b32 s{S_S}, s{S_NS}
    s_mov_b32 s{S_LS}, s{S_NLS}
    v_cmp_eq_u32 vcc, 0, v4
    s_cbranch_vccz {LD}''')
    def hsrc():
        a(f'''s_mul_i32 s22, s{S_LS}, {HF_SEG}
        s_add_u32 s22, s22, {HF}
        s_add_u32 s22, s22, s31
        s_mov_b32 s23, s31''')
    def chunk(c):
        out = [f's_mov_b32 m0, s23', f's_add_u32 s23, s23, 4096']
        out += [f'buffer_load_dwordx4 v1, {SRD}, s22 offen offset:{i*1024} sc1 lds' for i in range(4)]
        out += [f's_add_u32 s22, s22, 4096']
        return out
    if SPEC & 8:
        a('s_barrier')
        wait_spec(a, 8, 29, 4, EXIT, hsrc, lambda: [a(x) for x in chunk(0)+chunk(1)], 8)
        a(f's_branch {LD}_j')
    else: wait_flags(a, 8, 29, 4, EXIT)
    a(f'{LD}:\ns_barrier')
    st.mark()
    hsrc()
    for x in chunk(0)+chunk(1): a(x)
    a(f'{LD}_j:')
    for x in chunk(2): a(x)
    a(f'''s_mul_i32 s26, s{S_LS}, 28672
    s_add_u32 s26, s26, {YN}
    s_add_u32 s27, s26, 14336
    s_lshl_b32 s24, s{S_S}, 13
    s_add_u32 s24, s24, {ST + 64*ST_SEG}''')
    extra = [f'buffer_load_dwordx2 {vr(RSv,2)}, v6, {SRD}, s26 offen sc1', f'buffer_load_dwordx2 {vr(RSv+2,2)}, v6, {SRD}, s27 offen sc1',
             f'buffer_load_dwordx4 {vr(G,4)}, v13, {SRD}, s24 offen sc1', f'buffer_load_dwordx4 {vr(G+4,4)}, v170, {SRD}, s24 offen sc1']
    def rd(k): return [f'ds_read_b128 {vr(hr+8*(k%4),4)}, v9 offset:{k*1024}', f'ds_read_b128 {vr(hr+8*(k%4)+4,4)}, v171 offset:{k*1024}']
    ACC = lambda tt, rt: AC + 8*tt + 4*rt
    for c in range(7):
        younger = 4*(min(c+2, 6)-c) + (4 if c >= 5 else 0)
        a(f's_waitcnt vmcnt({younger})\ns_barrier')
        if c == 0: st.mark()
        k0 = 4*c
        ex = chunk(c+3) if c+3 < 7 else (extra if c == 4 else [])
        for k in range(k0, k0+3):
            for ins in rd(k): a(ins)
        main = []; lanes = []
        for k in range(k0, k0+4):
            b = 4*(k-k0)
            main += [mf(vr(ACC(tt, rt),4), W(tt, k), vr(hr+8*(k%4)+4*rt,4), 0 if k == 0 else None) for rt in range(2) for tt in range(2)]
            lanes.append((b-1, 1, [f's_waitcnt lgkmcnt({(4, 4, 2, 0)[k-k0]})']))
            lanes.append((b+2, 1, [chk2(m, hr+8*(k%4), hr+8*(k%4)+4, k == 0)]))
        lanes.append((0, 1, rd(k0+3)))
        pos = [2, 4, 5, 8, 9, 12, 13]
        if ex and c == 4: pos = [4, 8, 12, 14]
        for p, x in zip(pos, ex): lanes.append((p, 1, [x]))
        sched(a, main, lanes)
    st.mark()
    KH = a.label('Lkh'); KJ = a.label('Lkj')
    a(f'''s_add_u32 s{S_K}, s{S_K}, 1
    s_bitcmp1_b32 s{S_W}, 0
    s_nop 3
    ds_write_b32 v168, v{m} offset:1024
    s_cbranch_scc1 {KH}
    ds_write_b128 v172, {vr(ACC(1,0),4)}
    ds_write_b128 v172, {vr(ACC(1,1),4)} offset:1024
    s_branch {KJ}
    {KH}:
    ds_write_b128 v172, {vr(ACC(0,0),4)}
    ds_write_b128 v172, {vr(ACC(0,1),4)} offset:1024''')
    for r in range(8): a(f'v_mov_b32 v{ACC(0,0)+r}, v{ACC(1,0)+r}')
    a(f'''{KJ}:
    s_waitcnt vmcnt(0) lgkmcnt(0)
    s_barrier
    ds_read_b128 {vr(A,4)}, v173
    ds_read_b128 {vr(A+4,4)}, v173 offset:1024
    ds_read2st64_b32 v[2:3], v169 offset0:4 offset1:5''')
    res_valid(a, RSv, 26, EXIT, t=m)
    a(f'''s_waitcnt lgkmcnt(0)
    v_max_u32 v2, v2, v3
    v_cmp_eq_u32 vcc, -1, v2
    s_cbranch_vccnz {REDO}''')
    for r in range(4): a(f'v_pk_add_f32 {vr(A+2*r,2)}, {vr(A+2*r,2)}, {vr(ACC(0,0)+2*r,2)}')
    add_residual(a, A, RSv, XP)
    L1 = a.label('Lb2l1'); LE = a.label('Lb2e'); LS = a.label('Lsl'); L = a.label('Lst')
    a(f'''s_mul_i32 s23, s{S_S}, 28672
    s_cmp_eq_u32 s{S_L}, 0
    s_cbranch_scc0 {L1}''')
    q = G+28
    stats_partial(a, A, q)
    cu_stats(a, q)
    a(f'''s_cmp_eq_u32 s{S_FAST}, 1
    s_cbranch_scc0 {LS}
    buffer_store_dword v{q}, v12, {SRD}, s24 offen
    s_branch {L}
    {LS}:
    buffer_store_dword v{q}, v12, {SRD}, s24 offen sc1
    {L}:
    buffer_load_dwordx4 {vr(G,4)}, v13, {SRD}, s24 offen sc1
    buffer_load_dwordx4 {vr(G+4,4)}, v170, {SRD}, s24 offen sc1
    s_sub_u32 s{S_TO}, s{S_TO}, 1
    s_cbranch_scc1 {EXIT}
    s_waitcnt vmcnt(0)
    v_max3_u32 v2, v{G}, v{G+1}, v{G+2}
    v_max3_u32 v2, v2, v{G+3}, v{G+4}
    v_max3_u32 v2, v2, v{G+5}, v{G+6}
    v_max_u32 v2, v2, v{G+7}
    v_cmp_eq_u32 vcc, -1, v2
    s_cbranch_vccnz {L}''')
    nxt()
    stats_finish(a, G, None, ((0, 1),))
    for rt in range(2):
        x = A+4*rt
        for r in range(4): a(f'v_sub_f32 v{x+r}, v{x+r}, v{G+2*rt}')
        for r in range(4): a(f'v_mul_f32 v{x+r}, v{x+r}, v{G+2*rt+1}')
        a(f'v_cvt_pk_bf16_f32 v{YP+2*rt}, v{x}, v{x+1}\nv_cvt_pk_bf16_f32 v{YP+2*rt+1}, v{x+2}, v{x+3}')
    guard(a, XP, 4); guard(a, YP, 4)
    pair_swap(a, YP)
    a(f's_add_u32 s25, s23, {XN + 64*XN_SEG}\nbuffer_store_dwordx4 {vr(YP,4)}, v5, {SRD}, s25 offen sc1')
    hint(a, F_XN, S_P, add=64)
    pair_swap(a, XP)
    a(f's_add_u32 s26, s23, {X2}\nbuffer_store_dwordx4 {vr(XP,4)}, v5, {SRD}, s26 offen sc1')
    a(f's_waitcnt vmcnt(3)\ns_branch {LE}\n{L1}:')
    nxt()
    pair_swap(a, XP)
    a(f'buffer_store_dwordx4 {vr(XP,4)}, v11, s[48:51], s23 offen {"sc1" if OUTSC else ""}\ns_waitcnt vmcnt(1)\n{LE}:')
    st.mark()
    st.flush(2, 20, S_LS)
    a(f's_cmp_lt_u32 s{S_NS}, 64\ns_cbranch_scc1 {LOOP}\n{DONE}:')
    if stamps: stamp_dump(a, EXIT)
    else: a(f's_branch {EXIT}')
    a(f'{REDO}:\ns_sub_u32 s{S_K}, s{S_K}, 1\ns_sub_u32 s{S_TO}, s{S_TO}, 64\ns_cbranch_scc1 {EXIT}\ns_branch {LD}')

def pv_role(a, EXIT, stamps=0):
    a('; ================= PV role =================')
    DONE = a.label('Ldone')
    vx, vm, pr, A, RS, XP, AC, q, m = 32, 96, 112, 16, 24, 28, 144, 160, 166
    WD = a.label('Lpvd')
    a(f'''s_branch {WD}
    {chain.PV_ENTRY}:
    s_cmp_ge_u32 s{S_P}, 7
    s_cselect_b32 s{S_U}, 4, 3
    s_cselect_b32 s20, 7, 0
    s_sub_u32 s{S_P}, s{S_P}, s20
    {WD}:''')
    common_setup(a)
    sched_setup(a, 'PV')
    team_setup(a)
    cu_stats_setup(a, 49152)
    a(f'''s_load_dwordx2 s[36:37], s[0:1], 0
    v_lshlrev_b32 v8, 7, v2
    v_mov_b32 v13, v8
    v_and_b32 v4, 1, v7
    s_lshl_b32 s20, s{S_P}, 1
    v_add_u32 v4, s20, v4
    v_lshlrev_b32 v4, 7, v4
    s_mov_b32 s38, {2048*896}
    s_mov_b32 s39, 0x20000
    s_mov_b32 s{S_K}, 0
    s_and_b32 s34, s{S_T}, 0xfe
    s_lshl_b32 s34, s34, 10
    s_and_b32 s20, s{S_W}, 1
    s_mul_i32 s35, s20, {2*28672}
    s_add_u32 s35, s35, s34
    s_mul_i32 s21, s20, {8*28672}
    s_add_u32 s34, s34, s21
    s_lshl_b32 s21, s20, 14
    v_add_u32 v171, s21, v1
    s_lshl_b32 s21, s20, 12
    s_add_u32 s21, s21, 32768
    v_add_u32 v174, s21, v1
    s_lshl_b32 s21, s{S_W}, 11
    s_add_u32 s21, s21, 40960
    v_add_u32 v172, s21, v1
    v_xor_b32 v173, 2048, v172
    s_waitcnt lgkmcnt(0)''')
    sent4(a, XP)
    LF = a.label('Lpf'); LFD = a.label('Lpfd')
    a(f'{LF}:')
    merged_task(a, D_PV, LFD)
    a(f'''s_add_u32 s{S_K}, s{S_K}, 1
    s_mul_i32 s25, s{S_LS}, 28672
    s_add_u32 s25, s25, {YN}
    buffer_store_dwordx4 {vr(XP,4)}, v5, {SRD}, s25 offen sc1
    s_waitcnt vmcnt(32)
    s_branch {LF}
    {LFD}:
    s_mov_b32 s{S_K}, 0''')
    st = Stamps(a, stamps)
    LOOP = a.label('Lpv'); L1 = a.label('Lpv1'); LJ = a.label('Lpvj'); REDO = a.label('Lredo'); RUN = a.label('Lrun'); NR_ = a.label('Lnr')
    def nxt():
        NE = a.label('Lne')
        merged_task(a, D_PV, NE, S_NL, S_NS, S_NLS)
        flag_off(a, 26, F_VX, S_NLS); flag_off(a, 27, F_P, S_NLS); flag_off(a, 28, F_VM, S_NLS)
        a(f'''buffer_load_dword v9, v8, {SRD}, s26 offen sc1
        buffer_load_dword v164, v13, {SRD}, s27 offen sc1
        buffer_load_dword v165, v4, {SRD}, s28 offen sc1
        {NE}:''')
    all_done(a, EXIT)
    nxt()
    a(f'''s_waitcnt vmcnt(0)
    {LOOP}:
    s_mov_b32 s{S_L}, s{S_NL}
    s_mov_b32 s{S_S}, s{S_NS}
    s_mov_b32 s{S_LS}, s{S_NLS}''')
    def need(v, voff, soff):
        LOK = a.label('Lok')
        a(f'v_cmp_eq_u32 vcc, 0, v{v}\ns_cbranch_vccz {LOK}')
        wait_flags(a, voff, soff, v, EXIT)
        a(f'{LOK}:')
    a('s_waitcnt vmcnt(2)')
    need(9, 8, 26)
    st.mark()
    def vxl():
        LA = a.label('La'); LB = a.label('Lb')
        a(f'''s_mul_i32 s22, s{S_LS}, {VX_SEG}
        s_add_u32 s22, s22, s34
        s_add_u32 s22, s22, {VX}''')
        for h in range(8):
            for tt in range(2): a(f'buffer_load_dwordx4 {vr(vx+8*h+4*tt,4)}, v1, {SRD}, s22 offen offset:{tt*1024} sc1')
            if h < 7: a('s_add_u32 s22, s22, 28672')
        a(f'''s_mul_i32 s32, s{S_S}, 28672
        s_cmp_eq_u32 s{S_L}, 0
        s_cbranch_scc0 {LA}
        s_add_u32 s33, s32, 14336
        buffer_load_dwordx2 {vr(RS,2)}, v10, s[36:39], s32 offen
        buffer_load_dwordx2 {vr(RS+2,2)}, v10, s[36:39], s33 offen
        s_branch {LB}
        {LA}:
        s_add_u32 s32, s32, {X2}
        s_add_u32 s33, s32, 14336
        buffer_load_dwordx2 {vr(RS,2)}, v6, {SRD}, s32 offen sc1
        buffer_load_dwordx2 {vr(RS+2,2)}, v6, {SRD}, s33 offen sc1
        {LB}:''')
    def pdma():
        a(f'''s_mul_i32 s22, s{S_LS}, {PF_SEG}
        s_mul_i32 s23, s{S_W}, 10240
        s_add_u32 s22, s22, s23
        s_add_u32 s22, s22, {PF}''')
        dma_frags(a, 10, 22, 23)
    def vml():
        a(f'''s_mul_i32 s22, s{S_LS}, {VM_SEG}
        s_add_u32 s22, s22, s35
        s_add_u32 s22, s22, {VM}''')
        for hq in range(2):
            for tt in range(2): a(f'buffer_load_dwordx4 {vr(vm+8*hq+4*tt,4)}, v1, {SRD}, s22 offen offset:{tt*1024} sc1')
            if hq < 1: a('s_add_u32 s22, s22, 28672')
    JIT = a.label('Ljit')
    a(f'''s_mul_i32 s25, s{S_LS}, 28672
    s_add_u32 s25, s25, {YN}
    s_lshl_b32 s24, s{S_L}, 7
    s_add_u32 s24, s24, s{S_S}
    s_lshl_b32 s24, s24, 13
    s_add_u32 s24, s24, {ST}
    v_min_u32 v2, v164, v165
    v_cmp_eq_u32 vcc, 0, v2
    s_cbranch_vccnz {JIT}''')
    pdma(); vxl(); vml()
    st.mark()
    a(f's_mov_b32 s29, 1\ns_waitcnt vmcnt(22)\ns_branch {RUN}\n{JIT}:')
    st.n -= 1
    vxl()
    if SPEC & 16:
        wait_spec(a, 13, 27, 164, EXIT, lambda: None, pdma, 10)
        st.mark()
    else:
        need(164, 13, 27)
        st.mark()
        pdma()
    a(f'''buffer_load_dword v165, v4, {SRD}, s28 offen sc1
    s_mov_b32 s29, 0
    s_waitcnt vmcnt(0)
    v_cmp_eq_u32 vcc, 0, v165
    s_cbranch_vccnz {RUN}''')
    vml()
    a(f'''s_mov_b32 s29, 1
    {RUN}:
    s_barrier''')
    st.mark()
    NR = 8
    ACC = lambda tt, rt: AC + 8*tt + 4*rt
    def rd(i): return f'ds_read_b128 {vr(pr+4*(i%NR),4)}, v{171 if i < 16 else 174} offset:{(i & 15)*1024}'
    for i in range(6): a(rd(i))
    for i in range(20):
        if i == 16:
            VOK = a.label('Lvok')
            a(f's_cmp_eq_u32 s29, 1\ns_cbranch_scc1 {VOK}')
            need(165, 4, 28)
            vml()
            a(f's_mov_b32 s29, 1\n{VOK}:\ns_waitcnt vmcnt(0)')
        if i % 2 == 0: a(f's_waitcnt lgkmcnt({max(0, min(4, 18-i))})' + (f' vmcnt({20-i})' if i < 16 else ''))
        rt = i & 1
        Aop = vx+8*(i >> 1) if i < 16 else vm+8*((i-16) >> 1)
        a(mf(vr(ACC(0,rt),4), vr(Aop,4), vr(pr+4*(i%NR),4), 0 if i < 2 else None))
        a(chk2(m, pr+4*(i%NR), pr+4*(i%NR)+2, i == 0))
        a(mf(vr(ACC(1,rt),4), vr(Aop+4,4), vr(pr+4*(i%NR),4), 0 if i < 2 else None))
        if i+6 < 20: a(rd(i+6))
    st.mark()
    KH = a.label('Lkh'); KJ = a.label('Lkj')
    a(f'''s_bitcmp1_b32 s{S_W}, 0
    s_nop 4
    ds_write_b32 v168, v{m} offset:1024
    s_cbranch_scc1 {KH}
    ds_write_b128 v172, {vr(ACC(1,0),4)}
    ds_write_b128 v172, {vr(ACC(1,1),4)} offset:1024
    s_branch {KJ}
    {KH}:
    ds_write_b128 v172, {vr(ACC(0,0),4)}
    ds_write_b128 v172, {vr(ACC(0,1),4)} offset:1024''')
    for r in range(8): a(f'v_mov_b32 v{ACC(0,0)+r}, v{ACC(1,0)+r}')
    a(f'''{KJ}:
    s_waitcnt lgkmcnt(0)
    s_barrier
    ds_read_b128 {vr(A,4)}, v173
    ds_read_b128 {vr(A+4,4)}, v173 offset:1024
    ds_read2st64_b32 v[2:3], v169 offset0:4 offset1:5
    s_cmp_eq_u32 s{S_L}, 0
    s_cbranch_scc1 {NR_}''')
    res_valid(a, RS, 32, EXIT, t=m)
    a(f'''{NR_}:
    s_waitcnt lgkmcnt(0)
    v_max_u32 v2, v2, v3
    v_cmp_eq_u32 vcc, -1, v2
    s_cbranch_vccnz {REDO}
    s_add_u32 s{S_K}, s{S_K}, 1''')
    nxt()
    for r in range(4): a(f'v_pk_add_f32 {vr(A+2*r,2)}, {vr(A+2*r,2)}, {vr(ACC(0,0)+2*r,2)}')
    st.mark(2)
    add_residual(a, A, RS, XP)
    guard(a, XP, 4)
    pair_swap(a, XP)
    a(f'buffer_store_dwordx4 {vr(XP,4)}, v5, {SRD}, s25 offen sc1')
    st.mark(2)
    stats_partial(a, A, q)
    cu_stats(a, q)
    a(f'''buffer_store_dword v{q}, v12, {SRD}, s24 offen sc1''')
    st.mark()
    st.flush(2, 20, S_LS)
    a(f's_cmp_lt_u32 s{S_NS}, 64\ns_cbranch_scc1 {LOOP}\n{DONE}:')
    if stamps: stamp_dump(a, EXIT)
    else: a(f's_branch {EXIT}')
    a(f'{REDO}:\ns_sub_u32 s{S_TO}, s{S_TO}, 64\ns_cbranch_scc1 {EXIT}\ns_barrier')
    pdma()
    a(f's_waitcnt vmcnt(0)\ns_branch {RUN}')
```
